```python
import torch

def _softmax(x, axis=-1):
    return torch.softmax(x, dim=axis)
def _gelu(x):
    return torch.nn.functional.gelu(x, approximate="tanh")
def _silu(x):
    return torch.nn.functional.silu(x)
def _sigmoid(x):
    return torch.sigmoid(x)
def _layernorm(x, axis=-1, eps=1e-5):
    m = x.mean(dim=axis, keepdim=True)
    v = x.var(dim=axis, keepdim=True, unbiased=False)
    return (x - m) / torch.sqrt(v + eps)
def _scatter_add(tgt, idx, src, axis=0):
    return tgt.clone().index_add_(axis, idx, src)
def _segment_sum(src, seg, n):
    out = torch.zeros((n,) + src.shape[1:], dtype=src.dtype)
    return out.index_add_(0, seg, src)
def _pad(x, pw):
    flat = tuple(v for pair in reversed(pw) for v in pair)
    return torch.nn.functional.pad(x, flat)

kernel_name = 'parallel_sum__gqa_block_cached__glu_gated_reglu__decode'

def setup_inputs():

    _w = (lambda a: (lambda t: t.to(torch.bfloat16) if t.is_floating_point() else t)(torch.as_tensor(a)))
    def _A_setup():
        B, Sq, D = 4, 1, 640
        Hq, Hkv, Sk, Dh = 32, 32, 8192, 128
        assert Hq % Hkv == 0, (Hq, Hkv)
        return {
            "x": _w((lambda *s: torch.randn(*s, dtype=torch.bfloat16) * 0.05)(B, Sq, D)),
            "k_cache": _w((lambda *s: torch.randn(*s, dtype=torch.bfloat16) * 1.6)(B, Hkv, Sk, Dh)),
            "v_cache": _w((lambda *s: torch.randn(*s, dtype=torch.bfloat16) * 0.8)(B, Hkv, Sk, Dh)),
            "wq": _w((lambda *s: torch.randn(*s, dtype=torch.bfloat16) * 1.6)(D, Hq * Dh) * (D ** -0.5)),
            "wo": _w((lambda *s: torch.randn(*s, dtype=torch.bfloat16) * 0.8)(Hq * Dh, D) * ((Hq * Dh) ** -0.5)),
        }
    _A_in = _A_setup()

    def _B_setup():
        B, S, D, F = 4, 1, 640, 1728
        return {
            "x": _w((lambda *s: torch.randn(*s, dtype=torch.bfloat16) * 0.05)(B, S, D)),
            "W_gate": _w((lambda *s: torch.randn(*s, dtype=torch.bfloat16) * 0.4)(D, F) * (2.0 / D) ** 0.5),
            "W_up": _w((lambda *s: torch.randn(*s, dtype=torch.bfloat16) * 0.4)(D, F) * (2.0 / D) ** 0.5),
            "W_down": _w((lambda *s: torch.randn(*s, dtype=torch.bfloat16) * 0.4)(F, D) * (1.0 / F) ** 0.5),
        }
    _B_in = _B_setup()

    return {
        "A_x": _A_in["x"],
        "A_k_cache": _A_in["k_cache"],
        "A_v_cache": _A_in["v_cache"],
        "A_wq": _A_in["wq"],
        "A_wo": _A_in["wo"],
        "B_x": _B_in["x"],
        "B_W_gate": _B_in["W_gate"],
        "B_W_up": _B_in["W_up"],
        "B_W_down": _B_in["W_down"],
    }

def reference(A_x, A_k_cache, A_v_cache, A_wq, A_wo, B_x, B_W_gate, B_W_up, B_W_down):
    def _A_ref(x, k_cache, v_cache, wq, wo):
        B, Sq, D = x.shape
        Hq, Dh = 32, 128
        Hkv = k_cache.shape[1]
        rep = Hq // Hkv
        q = (lambda x, *d: x.permute(*d))((x @ wq).reshape(B, Sq, Hq, Dh), 0, 2, 1, 3)
        k = (lambda x, n, axis: torch.repeat_interleave(x, n, dim=axis))(k_cache, rep, axis=1)
        v = (lambda x, n, axis: torch.repeat_interleave(x, n, dim=axis))(v_cache, rep, axis=1)
        scores = torch.einsum("bhqd,bhkd->bhqk", q, k) * (Dh ** -0.5)
        p = _softmax(scores, axis=-1)
        o = torch.einsum("bhqk,bhkd->bhqd", p, v)
        return (lambda x, *d: x.permute(*d))(o, 0, 2, 1, 3).reshape(B, Sq, Hq * Dh) @ wo

    def _B_ref(x, W_gate, W_up, W_down):
        gate = torch.einsum("bsd,df->bsf", x, W_gate)
        up = torch.einsum("bsd,df->bsf", x, W_up)
        gate = gate * (lambda x, dt: x.to(dt))(gate > 0, gate.dtype)
        h = gate * up
        return torch.einsum("bsf,fd->bsd", h, W_down)

    x = A_x
    xn = _layernorm(x, axis=-1)
    return x + _A_ref(xn, A_k_cache, A_v_cache, A_wq, A_wo) + _B_ref(xn, B_W_gate, B_W_up, B_W_down)
```

```python
import struct, sys
NAME = "parallel_sum__gqa_block_cached__glu_gated_reglu__decode_kernel"

def f2h(x):
    return "0x%08x" % struct.unpack("<I", struct.pack("<f", x))[0]

LOG2E = f2h(1.4426950408889634)
SCALE = f2h(128 ** -0.5)
INV640 = f2h(1.0 / 640.0)
EPS = f2h(1e-5)

QP, MW, FW, OP, YP, SC, XNL, HL, LDS_SIZE = 0, 2048, 2064, 4096, 6144, 16384, 32768, 43008, 45056
Y_OFF, ML_OFF, Z_OFF = 0x100000, 0x1A0000, 0x1B0000
SPIN_MAX = 200000

class Gen:
    def __init__(self, R=5, PG=1, stamps=False, mapping="m4", sleep=True):
        self.R, self.PG, self.stamps, self.mapping, self.sleep = R, PG, stamps, mapping, sleep
        self.L = []
        self.uid = 0
    def a(self, s):
        for line in s.split("\n"):
            line = line.strip()
            if line: self.L.append("    " + line if not line.endswith(":") else line)
    def c(self, s):
        self.L.append("    ; " + s)
    def label(self, p):
        self.uid += 1
        return f"L_{p}_{self.uid}"
    def stamp(self, k):
        if self.stamps:
            self.a(f"s_memrealtime s[98:99]\ns_waitcnt lgkmcnt(0)\ns_mov_b32 s{88+k}, s98")
    def stamp_flush(self):
        if not self.stamps: return
        a = self.a
        a("s_mov_b32 s56, s86\ns_mov_b32 s57, s87\ns_mov_b32 s58, 0x100000\ns_mov_b32 s59, 0x20000")
        a("s_lshl_b32 s60, s2, 3\ns_add_u32 s60, s60, s3\ns_lshl_b32 s60, s60, 6")
        a("s_mov_b64 exec, 1")
        a("v_mov_b32 v250, 0")
        for k in range(8):
            a(f"v_mov_b32 v251, s{88+k}")
            a(f"buffer_store_dword v251, v250, s[56:59], s60 offen offset:{4*k}")
            a("s_nop 1")
        a("s_mov_b64 exec, -1")

    def srd(self, base, ptr, nrec):
        self.a(f"s_mov_b32 s{base}, s{ptr}\ns_mov_b32 s{base+1}, s{ptr+1}\ns_mov_b32 s{base+2}, {hex(nrec)}\ns_mov_b32 s{base+3}, 0x20000")
    def const64(self, sreg, val):
        self.a(f"s_mov_b32 s{sreg}, {hex(val & 0xffffffff)}\ns_mov_b32 s{sreg+1}, {hex(val >> 32)}")
    def masks16x32(self, m0, tmp):
        a = self.a
        self.const64(60, 0xAAAAAAAAAAAAAAAA)
        a(f"v_mov_b32 v{tmp}, 0xffff\nv_mov_b32 v{tmp+1}, 0xffff0000")
        a(f"v_cndmask_b32_e64 v{tmp}, v{tmp}, v{tmp+1}, s[60:61]")
        for jj in range(4):
            self.const64(60, 0x0303030303030303 << (2 * jj))
            a(f"v_cndmask_b32_e64 v{m0+jj}, 0, v{tmp}, s[60:61]")
    def wave_reduce(self, v, op, sdst):
        a = self.a
        for r in (8, 4, 2, 1):
            a(f"{op}_dpp v{v}, v{v}, v{v} row_ror:{r} row_mask:0xf bank_mask:0xf\ns_nop 1")
        a(f"{op}_dpp v{v}, v{v}, v{v} row_bcast:15 row_mask:0xa bank_mask:0xf\ns_nop 1")
        a(f"{op}_dpp v{v}, v{v}, v{v} row_bcast:31 row_mask:0xc bank_mask:0xf\ns_nop 1")
        a(f"v_readlane_b32 s{sdst}, v{v}, 63\ns_nop 1")
    def rbf16(self, v):
        self.a(f"v_cvt_pk_bf16_f32 v{v}, v{v}, v{v}\nv_and_b32 v{v}, 0xffff0000, v{v}")
    def layernorm(self, xr, n_out, t0, s0):
        a = self.a
        for r in range(10): a(f"v_lshlrev_b32 v{xr+r}, 16, v{xr+r}")
        a(f"v_add_f32 v{t0}, v{xr}, v{xr+1}\nv_add_f32 v{t0+1}, v{xr+2}, v{xr+3}")
        for r in range(4, 10, 2):
            a(f"v_add_f32 v{t0}, v{t0}, v{xr+r}\nv_add_f32 v{t0+1}, v{t0+1}, v{xr+r+1}")
        a(f"v_add_f32 v{t0}, v{t0}, v{t0+1}\ns_nop 1")
        self.wave_reduce(t0, "v_add_f32", s0)
        a(f"v_mov_b32 v{t0}, {INV640}\nv_mul_f32 v{t0}, s{s0}, v{t0}")
        a(f"v_sub_f32 v{t0+1}, v{xr}, v{t0}\nv_mul_f32 v{t0+2}, v{t0+1}, v{t0+1}")
        for r in range(1, 10):
            a(f"v_sub_f32 v{t0+1}, v{xr+r}, v{t0}\nv_fmac_f32 v{t0+2}, v{t0+1}, v{t0+1}")
        a("s_nop 1")
        self.wave_reduce(t0 + 2, "v_add_f32", s0 + 1)
        a(f"v_mov_b32 v{t0+2}, {INV640}\nv_mul_f32 v{t0+2}, s{s0+1}, v{t0+2}")
        self.rbf16(t0); self.rbf16(t0 + 2)
        a(f"v_add_f32 v{t0+2}, {EPS}, v{t0+2}")
        self.rbf16(t0 + 2)
        a(f"v_sqrt_f32 v{t0+2}, v{t0+2}\ns_nop 0")
        self.rbf16(t0 + 2)
        a(f"v_rcp_f32 v{t0+2}, v{t0+2}\ns_nop 0")
        for r in range(n_out):
            a(f"v_sub_f32 v{xr+r}, v{xr+r}, v{t0}")
            self.rbf16(xr + r)
            a(f"v_mul_f32 v{xr+r}, v{xr+r}, v{t0+2}")
            a(f"v_cvt_pk_bf16_f32 v{xr+r}, v{xr+r}, v{xr+r}")
    def spin_head(self, name, scnt):
        l = self.label(name); d = self.label(name + "_done")
        self.a(f"s_mov_b32 s{scnt}, {SPIN_MAX}\n{l}:")
        return l, d
    def reduce_hq(self, v0, n, t):
        a = self.a
        a("s_nop 1")
        for i in range(n): a(f"v_add_f32_dpp v{v0+i}, v{v0+i}, v{v0+i} row_ror:8 row_mask:0xf bank_mask:0xf")
        for sw in ("v_permlane16_swap_b32", "v_permlane32_swap_b32"):
            for i in range(n): a(f"v_mov_b32 v{t+i}, v{v0+i}")
            a("s_nop 1")
            for i in range(n): a(f"{sw} v{t+i}, v{v0+i}")
            a("s_nop 1")
            for i in range(n): a(f"v_add_f32 v{v0+i}, v{v0+i}, v{t+i}")

    def stream(self):
        a, R, PG = self.a, self.R, self.PG
        vK, vV, vSW, vSR, vMax, vS, vT0, vT1, vP, vSn, vE = 1, 2, 3, 4, 5, 6, 7, 8, 9, 10, 11
        MK, AQ, D, ACC, PA = 12, 16, 32, 40, 44
        RING = 64
        TQ = 192
        self.c("==== streaming waves (0..3): K then V of this workgroup's 4096 keys ====")
        a(f"v_and_b32 v7, 15, v0\nv_lshrrev_b32 v8, 4, v0")
        a(f"v_lshrrev_b32 v9, 2, v7\nv_lshlrev_b32 v{vK}, 8, v9")
        a(f"v_lshlrev_b32 v10, 6, v8\nv_or_b32 v{vK}, v{vK}, v10")
        a(f"v_and_b32 v10, 3, v7\nv_lshlrev_b32 v10, 4, v10\nv_or_b32 v{vK}, v{vK}, v10")
        a(f"v_lshlrev_b32 v{vV}, 4, v0")
        a("s_lshl_b32 s16, s47, 20\ns_lshl_b32 s17, s3, 12\ns_add_u32 s16, s16, s17\ns_mov_b32 s17, s16")
        a("s_waitcnt lgkmcnt(0)")
        self.srd(8, 66, 0x10000000)
        self.srd(12, 68, 0x10000000)
        st = {"issued": 0}
        def slot(n):
            if n < 16 * PG: return RING + 4 * n
            return RING + 4 * (n % 16)
        def issue(n):
            t = n & 3
            if n < 256:
                a(f"buffer_load_dwordx4 v[{slot(n)}:{slot(n)+3}], v{vK}, s[8:11], s16 offen offset:{t*1024} nt")
                if t == 3: a("s_add_u32 s16, s16, 0x4000")
            else:
                a(f"buffer_load_dwordx4 v[{slot(n)}:{slot(n)+3}], v{vV}, s[12:15], s17 offen offset:{t*1024} nt")
                if t == 3: a("s_add_u32 s17, s17, 0x4000")
        for n in range(16 * PG): issue(n)
        self.stamp(0)
        self.masks16x32(MK, 7)
        self.const64(48, 0x2222222222222222); self.const64(50, 0x4444444444444444); self.const64(52, 0x8888888888888888)
        a("v_and_b32 v7, 15, v0\nv_lshrrev_b32 v8, 4, v0\nv_lshrrev_b32 v9, 2, v7\nv_and_b32 v10, 3, v7")
        a(f"v_lshlrev_b32 v9, 4, v9\nv_lshlrev_b32 v{vSW}, 2, v8\nv_add_u32 v{vSW}, v{vSW}, v9\nv_add_u32 v{vSW}, v{vSW}, v10")
        a(f"v_lshlrev_b32 v{vSW}, 2, v{vSW}")
        a(f"s_lshl_b32 s18, s3, 12\ns_add_u32 s18, s18, {SC}")
        a(f"v_add_u32 v{vSW}, s18, v{vSW}")
        a(f"v_lshlrev_b32 v{vSR}, 2, v0\nv_add_u32 v{vSR}, s18, v{vSR}")
        a(f"v_mov_b32 v{vMax}, 0xff800000")
        a(f"v_lshlrev_b32 v9, 2, v8\nv_add_u32 v9, v9, v10\nv_lshlrev_b32 v9, 5, v9")
        a("s_barrier")
        for hw in range(4):
            a(f"ds_read_b128 v[{TQ+8*hw}:{TQ+8*hw+3}], v9 offset:{QP+512*hw}")
            a(f"ds_read_b128 v[{TQ+8*hw+4}:{TQ+8*hw+7}], v9 offset:{QP+512*hw+16}")
        a("s_waitcnt lgkmcnt(0)")
        for j in range(8): a(f"v_add_f32 v{TQ+j}, v{TQ+j}, v{TQ+8+j}\nv_add_f32 v{TQ+16+j}, v{TQ+16+j}, v{TQ+24+j}")
        for j in range(8): a(f"v_add_f32 v{TQ+j}, v{TQ+j}, v{TQ+16+j}")
        for jj in range(4): a(f"v_cvt_pk_bf16_f32 v{TQ+8+jj}, v{TQ+2*jj}, v{TQ+2*jj+1}")
        for t in range(4):
            self.const64(60, 0x000F000F000F000F << (4 * t))
            for jj in range(4): a(f"v_cndmask_b32_e64 v{AQ+4*t+jj}, 0, v{TQ+8+jj}, s[60:61]")
        a("s_nop 1")
        self.stamp(1)

        issued = [16 * PG]
        def kgroup(G, mode):
            for s in range(16):
                n = 16 * G + s
                tau, t = s >> 2, s & 3
                a(f"s_waitcnt vmcnt({issued[0]-1-n})")
                cin = "0" if t == 0 else f"v[{D}:{D+3}]"
                a(f"v_mfma_f32_16x16x32_bf16 v[{D}:{D+3}], v[{AQ+4*t}:{AQ+4*t+3}], v[{slot(n)}:{slot(n)+3}], {cin}")
                nxt = None
                if n < 16 * PG:
                    if n < R: nxt = 16 * PG + n
                else:
                    nxt = n + R
                if nxt is not None:
                    assert nxt == issued[0], (n, nxt, issued)
                    issue(nxt); issued[0] += 1
                if t == 3:
                    a("s_nop 7")
                    a(f"v_mov_b32_dpp v{vT0}, v{D} quad_perm:[0,0,0,0] row_mask:0xf bank_mask:0xf")
                    a(f"v_mov_b32_dpp v{vT1}, v{D+2} quad_perm:[2,2,2,2] row_mask:0xf bank_mask:0xf")
                    a("s_nop 0")
                    a(f"v_add_f32_dpp v{vT0}, v{D+1}, v{vT0} quad_perm:[1,1,1,1] row_mask:0xf bank_mask:0xf")
                    a(f"v_add_f32_dpp v{vT1}, v{D+3}, v{vT1} quad_perm:[3,3,3,3] row_mask:0xf bank_mask:0xf")
                    if tau == 0:
                        a(f"v_add_f32 v{vS}, v{vT0}, v{vT1}")
                    else:
                        a(f"v_add_f32 v{vT0}, v{vT0}, v{vT1}")
                        a(f"v_cndmask_b32_e64 v{vS}, v{vS}, v{vT0}, s[{46+2*tau}:{47+2*tau}]")
            self.rbf16(vS)
            a(f"v_mul_f32 v{vS}, {SCALE}, v{vS}")
            self.rbf16(vS)
            a(f"v_max_f32 v{vMax}, v{vMax}, v{vS}")
            a(f"ds_write_b32 v{vSW}, v{vS}")
            a(f"v_add_u32 v{vSW}, 0x100, v{vSW}")
        for G in range(PG): kgroup(G, "first")
        a(f"s_mov_b32 s19, {15-PG}")
        lk = self.label("K")
        a(f"{lk}:")
        save = issued[0]
        kgroup(PG, "steady")
        a(f"s_sub_u32 s19, s19, 1\ns_cmp_lg_u32 s19, 0\ns_cbranch_scc1 {lk}")
        issued[0] = save + 16 * (15 - PG)
        kgroup(15, "last")
        a("s_nop 1")
        self.wave_reduce(vMax, "v_max_f32", 20)
        a(f"v_mov_b32 v{vMax}, s20")
        a(f"s_lshl_b32 s18, s3, 2\ns_add_u32 s18, s18, {MW}\nv_mov_b32 v7, s18")
        a(f"ds_write_b32 v7, v{vMax}")
        a(f"ds_read_b32 v{vSn}, v{vSR}\nv_add_u32 v{vSR}, 0x100, v{vSR}")
        for j in range(4): a(f"v_mov_b32 v{ACC+j}, 0")
        self.stamp(2)
        def abuild(s):
            tau, t = s >> 2, s & 3
            for jj in range(4):
                a(f"v_and_b32_dpp v{PA+4*(s&1)+jj}, v{vP}, v{MK+jj} row_newbcast:{4*t+tau} row_mask:0xf bank_mask:0xf")
        def vgroup(G, last):
            a("s_waitcnt lgkmcnt(0)")
            a(f"v_sub_f32 v{vE}, v{vSn}, v{vMax}\nv_mul_f32 v{vE}, {LOG2E}, v{vE}\nv_exp_f32 v{vE}, v{vE}")
            if not last:
                a(f"ds_read_b32 v{vSn}, v{vSR}\nv_add_u32 v{vSR}, 0x100, v{vSR}")
            else:
                a("s_nop 0")
            a(f"v_cvt_pk_bf16_f32 v{vP}, v{vE}, v{vE}\ns_nop 1")
            abuild(0)
            for s in range(16):
                n = 256 + 16 * G + s
                a(f"s_waitcnt vmcnt({issued[0]-1-n})\ns_nop 0")
                A = PA + 4 * (s & 1)
                a(f"v_mfma_f32_16x16x32_bf16 v[{ACC}:{ACC+3}], v[{A}:{A+3}], v[{slot(n)}:{slot(n)+3}], v[{ACC}:{ACC+3}]")
                nxt = n + R
                if nxt < 512:
                    assert nxt == issued[0]
                    issue(nxt); issued[0] += 1
                if s < 15: abuild(s + 1)
        a("s_mov_b32 s19, 15")
        lv = self.label("V")
        a(f"{lv}:")
        save = issued[0]
        vgroup(0, False)
        a(f"s_sub_u32 s19, s19, 1\ns_cmp_lg_u32 s19, 0\ns_cbranch_scc1 {lv}")
        issued[0] = save + 16 * 15
        vgroup(15, True)
        a("v_and_b32 v7, 15, v0\nv_lshrrev_b32 v8, 4, v0\nv_and_b32 v8, 1, v8\nv_lshlrev_b32 v7, 5, v7\nv_lshlrev_b32 v8, 4, v8\nv_add_u32 v7, v7, v8")
        a(f"s_lshl_b32 s18, s3, 9\ns_add_u32 s18, s18, {OP}\nv_add_u32 v7, s18, v7")
        a(f"s_nop 1\nds_write_b128 v7, v[{ACC}:{ACC+3}]\ns_waitcnt lgkmcnt(0)")
        self.stamp(3)
        a("s_barrier")
        self.stamp_flush()
        a("s_endpgm")

    def helper(self):
        a = self.a
        MK, A0, D, YA, W = 4, 20, 28, 32, 64
        self.c("==== helper waves (4..7): q projection, FFN, softmax denominators, output projection, final sum ====")
        a("s_sub_u32 s5, s3, 4")
        HW = 5
        self.HW = HW
        a("v_and_b32 v1, 15, v0\nv_lshrrev_b32 v2, 4, v0")
        a(f"s_mul_i32 s48, s{HW}, 160\nv_lshlrev_b32 v8, 2, v1\nv_add_u32 v8, v8, v2\nv_add_u32 v8, s48, v8")
        a("s_mul_i32 s49, s44, 1280")
        a("v_lshlrev_b32 v3, 13, v2\nv_lshlrev_b32 v9, 4, v1\nv_add_u32 v3, v3, v9")
        a(f"s_mul_i32 s50, s{HW}, {160*8192}\ns_lshl_b32 s51, s45, 8\ns_add_u32 s50, s50, s51")
        a("s_waitcnt lgkmcnt(0)")
        self.srd(8, 64, 5120)
        self.srd(12, 70, 5242880)
        for r in range(10):
            t = 52 + (r & 3)
            a(f"v_add_u32 v{t}, {64*r}, v8\nv_subrev_u32 v9, 640, v{t}\nv_min_u32 v{t}, v{t}, v9\nv_lshlrev_b32 v{t}, 1, v{t}")
            a(f"buffer_load_ushort v{10+r}, v{t}, s[8:11], s49 offen")
        for u in range(40):
            a(f"buffer_load_dwordx4 v[{W+4*u}:{W+4*u+3}], v3, s[12:15], s50 offen")
            if u < 39: a("s_add_u32 s50, s50, 0x8000")
        self.stamp(0)
        self.masks16x32(MK, 8)
        a(f"v_mov_b32 v52, -1\nv_mov_b32 v53, -1\nv_mov_b32 v54, -1\nv_mov_b32 v55, -1\nv_mov_b32 v9, {MW}\nds_write_b128 v9, v[52:55]")
        self.srd(16, 72, 5242880)
        self.srd(20, 86, 0x40000000)
        self.srd(24, 84, 256)
        self.srd(28, 82, 5120)
        a("s_waitcnt vmcnt(40)")
        self.layernorm(10, 3, 52, 52)
        def abuild(src, u, buf, MKr=MK):
            for jj in range(4):
                a(f"v_and_b32_dpp v{A0+4*buf+jj}, v{src}, v{MKr+jj} row_newbcast:{u} row_mask:0xf bank_mask:0xf")
        a("s_nop 1")
        abuild(10, 0, 0)
        for u in range(40):
            if u < 39: abuild(10 + ((u + 1) >> 4), (u + 1) & 15, (u + 1) & 1)
            else: a("s_nop 1")
            a(f"s_waitcnt vmcnt({39-u})")
            A = A0 + 4 * (u & 1)
            cin = "0" if u == 0 else f"v[{D}:{D+3}]"
            a(f"v_mfma_f32_16x16x32_bf16 v[{D}:{D+3}], v[{A}:{A+3}], v[{W+4*u}:{W+4*u+3}], {cin}")
        a("v_lshlrev_b32 v8, 5, v1\nv_and_b32 v9, 1, v2\nv_lshlrev_b32 v9, 4, v9\nv_add_u32 v8, v8, v9")
        a(f"s_lshl_b32 s48, s{HW}, 9\nv_add_u32 v9, s48, v8")
        a(f"s_nop 3\nds_write_b128 v9, v[{D}:{D+3}] offset:{QP}\ns_waitcnt lgkmcnt(0)")
        a("s_barrier")
        self.stamp(1)
        l_wo = self.label("wo")
        a(f"s_cmp_eq_u32 s{HW}, 1\ns_cbranch_scc0 {l_wo}\ns_cmp_lt_u32 s2, 27\ns_cbranch_scc0 {l_wo}")
        self.ffn()
        a(f"{l_wo}:")
        l_nc = self.label("noclear")
        a(f"s_cmp_eq_u32 s{HW}, 0\ns_cbranch_scc0 {l_nc}")
        a("v_mov_b32 v52, -1\nv_mov_b32 v53, -1\nv_mov_b32 v54, -1\nv_mov_b32 v55, -1")
        a(f"s_mul_i32 s48, s47, 2560\ns_add_u32 s48, s48, {Y_OFF}\nv_lshlrev_b32 v9, 4, v0")
        a("buffer_store_dwordx4 v[52:55], v9, s[20:23], s48 offen sc1")
        a("buffer_store_dwordx4 v[52:55], v9, s[20:23], s48 offen offset:1024 sc1")
        a("s_mov_b32 exec_hi, 0")
        a("buffer_store_dwordx4 v[52:55], v9, s[20:23], s48 offen offset:2048 sc1")
        a("s_mov_b64 exec, 1")
        a(f"s_lshl_b32 s49, s47, 7\ns_add_u32 s49, s49, {ML_OFF}")
        a("buffer_store_dwordx2 v[52:53], v9, s[20:23], s49 offen sc1")
        a("s_waitcnt vmcnt(0)")
        a("v_mov_b32 v52, 1")
        a("buffer_atomic_add v52, off, s[24:27], 0 sc1")
        a("s_mov_b64 exec, -1")
        a(f"{l_nc}:")
        a("v_mul_u32_u24 v3, 1280, v2\nv_lshlrev_b32 v9, 4, v1\nv_add_u32 v3, v3, v9")
        a(f"s_lshl_b32 s48, s45, 7\ns_lshl_b32 s49, s{HW}, 5\ns_add_u32 s48, s48, s49\ns_mul_i32 s48, s48, 1280")
        for u in range(8):
            for cb in range(5):
                r = W + 4 * (5 * u + cb)
                a(f"buffer_load_dwordx4 v[{r}:{r+3}], v3, s[16:19], s48 offen offset:{256*cb}")
            if u < 7: a(f"s_add_u32 s48, s48, {4*1280}")
        l_b2 = self.label("toB2")
        a(f"s_cmp_eq_u32 s{HW}, 0\ns_cbranch_scc0 {l_b2}")
        self.wave4_mid()
        a(f"{l_b2}:")
        a("s_waitcnt vmcnt(0)")
        a(f"v_and_b32 v8, 7, v1\nv_lshlrev_b32 v8, 2, v8\nv_add_u32 v8, v8, v2\nv_lshlrev_b32 v8, 2, v8\ns_lshl_b32 s48, s{HW}, 7\nv_add_u32 v8, s48, v8")
        a(f"v_mov_b32 v9, {FW}")
        a("v_lshlrev_b32 v10, 5, v1\nv_and_b32 v11, 1, v2\nv_lshlrev_b32 v11, 4, v11\nv_add_u32 v10, v10, v11")
        a(f"s_mul_i32 s48, s{HW}, 2560\nv_add_u32 v10, s48, v10")
        a(f"s_mul_i32 s48, s{HW}, 640\nv_lshlrev_b32 v11, 4, v0\nv_add_u32 v11, s48, v11")
        a(f"s_mul_i32 s49, s47, 2560\ns_add_u32 s49, s49, {Y_OFF}")
        self.stamp(2)
        a("s_barrier")
        self.stamp(3)
        a("ds_read_b128 v[52:55], v9")
        for w in range(4): a(f"ds_read_b32 v{56+w}, v8 offset:{OP+512*w}")
        a("s_waitcnt lgkmcnt(0)")
        a("v_mul_f32 v56, v52, v56\nv_mul_f32 v58, v54, v58\nv_fmac_f32 v56, v53, v57\nv_fmac_f32 v58, v55, v59\nv_add_f32 v56, v56, v58")
        a("v_cvt_pk_bf16_f32 v56, v56, v56\ns_nop 1")
        abuild(56, 0, 0)
        for u in range(8):
            if u < 7: abuild(56, u + 1, (u + 1) & 1)
            else: a("s_nop 1")
            A = A0 + 4 * (u & 1)
            for cb in range(5):
                r = W + 4 * (5 * u + cb)
                acc = YA + 4 * cb
                cin = "0" if u == 0 else f"v[{acc}:{acc+3}]"
                a(f"v_mfma_f32_16x16x32_bf16 v[{acc}:{acc+3}], v[{A}:{A+3}], v[{r}:{r+3}], {cin}")
        a("s_nop 3")
        for cb in range(5):
            if cb == 4: a("s_nop 3")
            a(f"ds_write_b128 v10, v[{YA+4*cb}:{YA+4*cb+3}] offset:{YP+512*cb}")
        a("s_waitcnt lgkmcnt(0)")
        a("s_barrier")
        a("s_mov_b32 exec_hi, 0xff")
        for w in range(4): a(f"ds_read_b128 v[{64+4*w}:{64+4*w+3}], v11 offset:{YP+2560*w}")
        a("s_waitcnt lgkmcnt(0)")
        a("v_pk_add_f32 v[64:65], v[64:65], v[68:69]\nv_pk_add_f32 v[66:67], v[66:67], v[70:71]")
        a("v_pk_add_f32 v[72:73], v[72:73], v[76:77]\nv_pk_add_f32 v[74:75], v[74:75], v[78:79]")
        a("v_pk_add_f32 v[64:65], v[64:65], v[72:73]\nv_pk_add_f32 v[66:67], v[66:67], v[74:75]")
        a("buffer_store_dwordx4 v[64:67], v11, s[20:23], s49 offen sc1")
        a("s_mov_b64 exec, -1")
        self.stamp(4)
        l_fin = self.label("fin")
        a(f"s_cmp_eq_u32 s{HW}, 0\ns_cbranch_scc0 {l_fin}\ns_cmp_lt_u32 s2, 80\ns_cbranch_scc0 {l_fin}")
        self.final_reduce()
        a(f"{l_fin}:")
        self.stamp(5)
        self.stamp_flush()
        a("s_endpgm")

    def wave4_mid(self):
        a = self.a
        self.c("---- wave 4: softmax statistics of this half, exchange with the other half ----")
        l, d = self.spin_head("mw", 48)
        a(f"v_mov_b32 v9, {MW}\nds_read_b128 v[52:55], v9\ns_waitcnt lgkmcnt(0)")
        a("v_max3_u32 v9, v52, v53, v54\nv_max_u32 v9, v9, v55\nv_cmp_eq_u32 vcc, -1, v9")
        a(f"s_cbranch_vccz {d}")
        if self.sleep: a("s_sleep 16")
        a(f"s_sub_u32 s48, s48, 1\ns_cmp_lg_u32 s48, 0\ns_cbranch_scc1 {l}")
        a(f"{d}:")
        self.stamp(6)
        a("v_max3_f32 v56, v52, v53, v54\nv_max_f32 v56, v56, v55")
        a(f"v_lshlrev_b32 v9, 4, v0\nv_add_u32 v9, {SC}, v9\nv_mov_b32 v57, 0\ns_mov_b32 s48, 4")
        lp = self.label("lsum")
        a(f"{lp}:")
        for i in range(4): a(f"ds_read_b128 v[{224+4*i}:{227+4*i}], v9 offset:{1024*i}")
        a("v_add_u32 v9, 4096, v9\ns_waitcnt lgkmcnt(0)")
        for i in range(16): a(f"v_sub_f32 v{224+i}, v{224+i}, v56")
        for i in range(16): a(f"v_mul_f32 v{224+i}, {LOG2E}, v{224+i}")
        for i in range(16): a(f"v_exp_f32 v{224+i}, v{224+i}")
        a("s_nop 0")
        for i in range(16): a(f"v_add_f32 v57, v57, v{224+i}")
        a(f"s_sub_u32 s48, s48, 1\ns_cmp_lg_u32 s48, 0\ns_cbranch_scc1 {lp}")
        a("s_nop 1")
        self.wave_reduce(57, "v_add_f32", 50)
        a("v_mov_b32 v57, s50")
        a(f"s_lshl_b32 s49, s47, 7\ns_add_u32 s49, s49, {ML_OFF}")
        a("v_mov_b32 v9, 0\ns_mov_b64 exec, 1")
        a("buffer_store_dwordx2 v[56:57], v9, s[20:23], s49 offen sc1")
        a("s_mov_b64 exec, -1")
        l, d = self.spin_head("clr", 48)
        a("buffer_load_dword v58, off, s[24:27], 0 sc1\ns_waitcnt vmcnt(0)")
        a("v_cmp_gt_u32 vcc, 256, v58")
        a(f"s_cbranch_vccz {d}")
        a(f"s_sub_u32 s48, s48, 1\ns_cmp_lg_u32 s48, 0\ns_cbranch_scc1 {l}")
        a(f"{d}:")
        a(f"s_xor_b32 s49, s47, 1\ns_lshl_b32 s49, s49, 7\ns_add_u32 s49, s49, {ML_OFF}\nv_mov_b32 v9, 0")
        l, d = self.spin_head("ml", 48)
        a("buffer_load_dwordx2 v[58:59], v9, s[20:23], s49 offen sc1\ns_waitcnt vmcnt(0)")
        a("v_max_u32 v60, v58, v59\nv_cmp_eq_u32 vcc, -1, v60")
        a(f"s_cbranch_vccz {d}")
        a(f"s_sub_u32 s48, s48, 1\ns_cmp_lg_u32 s48, 0\ns_cbranch_scc1 {l}")
        a(f"{d}:")
        a("v_max_f32 v60, v56, v58")
        a("v_sub_f32 v56, v56, v60\nv_sub_f32 v58, v58, v60")
        for i in range(4): a(f"v_sub_f32 v{52+i}, v{52+i}, v60")
        a(f"v_mul_f32 v56, {LOG2E}, v56\nv_mul_f32 v58, {LOG2E}, v58")
        for i in range(4): a(f"v_mul_f32 v{52+i}, {LOG2E}, v{52+i}")
        a("v_exp_f32 v56, v56\nv_exp_f32 v58, v58")
        for i in range(4): a(f"v_exp_f32 v{52+i}, v{52+i}")
        a("v_mul_f32 v57, v57, v56\nv_fmac_f32 v57, v59, v58\nv_rcp_f32 v57, v57\ns_nop 0")
        for i in range(4): a(f"v_mul_f32 v{52+i}, v{52+i}, v57")
        a(f"v_mov_b32 v9, {FW}\nds_write_b128 v9, v[52:55]\ns_waitcnt lgkmcnt(0)")
        l_nr = self.label("nored")
        a(f"s_cmp_lt_u32 s2, 80\ns_cbranch_scc0 {l_nr}")
        a("s_mul_i32 s62, s2, 205\ns_lshr_b32 s62, s62, 12\ns_mul_i32 s63, s62, 20\ns_sub_u32 s63, s2, s63")
        l, d = self.spin_head("zc", 48)
        a("buffer_load_dword v58, off, s[24:27], 0 offset:128 sc1\ns_waitcnt vmcnt(0)")
        a("v_cmp_gt_u32 vcc, 27, v58")
        a(f"s_cbranch_vccz {d}")
        a(f"s_sub_u32 s48, s48, 1\ns_cmp_lg_u32 s48, 0\ns_cbranch_scc1 {l}")
        a(f"{d}:")
        a("v_lshrrev_b32 v58, 3, v0\nv_and_b32 v59, 7, v0")
        a("v_mul_u32_u24 v60, 10240, v58\nv_lshlrev_b32 v61, 4, v59\nv_add_u32 v60, v60, v61")
        a(f"s_mul_i32 s48, s62, 2560\ns_lshl_b32 s49, s63, 7\ns_add_u32 s48, s48, s49\ns_add_u32 s48, s48, {Z_OFF}")
        for i in range(3):
            a(f"buffer_load_dwordx4 v[{224+4*i}:{227+4*i}], v60, s[20:23], s48 offen sc1")
            a(f"s_add_u32 s48, s48, {8*10240}")
        a("v_cmp_gt_u32 vcc, 3, v58\nv_mov_b32 v61, 0x7ffffff0\ns_nop 0\nv_cndmask_b32 v60, v61, v60, vcc")
        a("buffer_load_dwordx4 v[236:239], v60, s[20:23], s48 offen sc1")
        a("s_mul_i32 s48, s62, 1280\ns_lshl_b32 s49, s63, 6\ns_add_u32 s48, s48, s49\nv_lshlrev_b32 v61, 3, v59")
        a("buffer_load_dwordx2 v[246:247], v61, s[8:11], s48 offen")
        a("s_waitcnt vmcnt(0)")
        for j in range(4):
            a(f"v_add_f32 v{224+j}, v{224+j}, v{228+j}\nv_add_f32 v{232+j}, v{232+j}, v{236+j}\nv_add_f32 v{240+j}, v{224+j}, v{232+j}")
        self.reduce_hq(240, 4, 248)
        for j in range(4): self.rbf16(240 + j)
        a("v_lshlrev_b32 v244, 16, v246\nv_and_b32 v245, 0xffff0000, v246\nv_lshlrev_b32 v246, 16, v247\nv_and_b32 v247, 0xffff0000, v247")
        a(f"{l_nr}:")

    def final_reduce(self):
        a = self.a
        self.c("---- final sum over the 64 (head, half) rows for 32 output columns of one batch row ----")
        a("v_lshrrev_b32 v58, 3, v0\nv_and_b32 v59, 7, v0")
        a("v_mul_u32_u24 v60, 2560, v58\nv_lshlrev_b32 v61, 4, v59\nv_add_u32 v60, v60, v61")
        a(f"s_mul_i32 s48, s62, {64*2560}\ns_lshl_b32 s49, s63, 7\ns_add_u32 s48, s48, s49\ns_add_u32 s48, s48, {Y_OFF}")
        for i in range(1, 8): a(f"s_add_u32 s{48+i}, s{47+i}, {8*2560}")
        l, d = self.spin_head("y", 56)
        for i in range(8):
            a(f"buffer_load_dwordx4 v[{64+4*i}:{67+4*i}], v60, s[20:23], s{48+i} offen sc1")
        a("s_waitcnt vmcnt(0)")
        for st in (16, 8, 4):
            for i in range(0, st, 2):
                a(f"v_pk_add_f32 v[{64+i}:{65+i}], v[{64+i}:{65+i}], v[{64+st+i}:{65+st+i}]")
        a("v_add_f32 v68, v64, v65\nv_add_f32 v69, v66, v67\nv_add_f32 v68, v68, v69\nv_cmp_u_f32 vcc, v68, v68")
        a(f"s_cbranch_vccz {d}")
        a(f"s_sub_u32 s56, s56, 1\ns_cmp_lg_u32 s56, 0\ns_cbranch_scc1 {l}")
        a(f"{d}:")
        self.reduce_hq(64, 4, 68)
        for j in range(4): self.rbf16(64 + j)
        for j in range(4): a(f"v_add_f32 v{64+j}, v{244+j}, v{64+j}")
        for j in range(4): self.rbf16(64 + j)
        for j in range(4): a(f"v_add_f32 v{64+j}, v{64+j}, v{240+j}")
        a("v_cvt_pk_bf16_f32 v64, v64, v65\nv_cvt_pk_bf16_f32 v65, v66, v67")
        a("s_mul_i32 s48, s62, 1280\ns_lshl_b32 s49, s63, 6\ns_add_u32 s48, s48, s49\nv_lshlrev_b32 v61, 3, v59")
        a("s_mov_b64 exec, 0xff")
        a("buffer_store_dwordx2 v[64:65], v61, s[28:31], s48 offen")
        a("s_mov_b64 exec, -1")

    def ffn(self):
        a = self.a
        self.c("---- FFN unit s2: 64 hidden columns for all four rows ----")
        X, M2, A0, DG, DU = 64, 44, 20, 28, 32
        self.srd(32, 76, 2211840); self.srd(36, 78, 2211840); self.srd(40, 80, 2211840)
        a("v_lshlrev_b32 v8, 2, v1\nv_add_u32 v8, v8, v2\nv_lshlrev_b32 v8, 1, v8")
        a("s_mov_b32 s48, 0\ns_mov_b32 s49, 1280\ns_mov_b32 s50, 2560\ns_mov_b32 s51, 3840")
        for b in range(4):
            for r in range(10):
                a(f"buffer_load_ushort v{X+10*b+r}, v8, s[8:11], s{48+b} offen offset:{128*r}")
        self.const64(60, 0xAAAAAAAAAAAAAAAA)
        a("v_mov_b32 v52, 0xffff\nv_mov_b32 v53, 0xffff0000\nv_cndmask_b32_e64 v52, v52, v53, s[60:61]")
        for jj in range(2):
            self.const64(60, 0x3333333333333333 << (2 * jj))
            a(f"v_cndmask_b32_e64 v{M2+jj}, 0, v52, s[60:61]")
        a(f"v_mul_u32_u24 v9, 640, v2\nv_lshlrev_b32 v52, 2, v1\nv_add_u32 v9, v9, v52")
        for b in range(4):
            a(f"s_waitcnt vmcnt({30-10*b})")
            self.layernorm(X + 10 * b, 10, 52, 52)
            for r in range(10):
                a(f"ds_write_b32 v9, v{X+10*b+r} offset:{XNL+2560*b+64*r}")
        a("v_lshrrev_b32 v9, 2, v1\nv_lshlrev_b32 v9, 2, v9\nv_add_u32 v9, v9, v2\nv_mul_u32_u24 v10, 640, v9")
        a(f"v_add_u32 v10, {XNL}, v10")
        a("v_mul_u32_u24 v11, 3456, v2\nv_lshlrev_b32 v12, 3, v1\nv_add_u32 v11, v11, v12")
        a("s_lshl_b32 s48, s2, 7")
        def issue(u):
            a(f"buffer_load_dwordx2 v[{64+4*u}:{65+4*u}], v11, s[32:35], s48 offen nt")
            a(f"buffer_load_dwordx2 v[{66+4*u}:{67+4*u}], v11, s[36:39], s48 offen nt")
            a(f"s_add_u32 s48, s48, {4*3456}")
        a("s_waitcnt lgkmcnt(0)")
        for u in range(16): issue(u)
        for j in range(8): a(f"v_mov_b32 v{DG+j}, 0")
        def rnd(last):
            for i in range(4): a(f"ds_read_b128 v[{128+4*i}:{131+4*i}], v10 offset:{16*i}")
            a("v_add_u32 v10, 64, v10\ns_waitcnt lgkmcnt(0)")
            for u in range(16):
                A = A0 + 2 * (u & 1)
                for jj in range(2): a(f"v_and_b32 v{A+jj}, v{128+u}, v{M2+jj}")
                a(f"s_waitcnt vmcnt({30 if not last else 2*(15-u)})\ns_nop 0")
                a(f"v_mfma_f32_16x16x16_bf16 v[{DG}:{DG+3}], v[{A}:{A+1}], v[{64+4*u}:{65+4*u}], v[{DG}:{DG+3}]")
                a(f"v_mfma_f32_16x16x16_bf16 v[{DU}:{DU+3}], v[{A}:{A+1}], v[{66+4*u}:{67+4*u}], v[{DU}:{DU+3}]")
                if not last: issue(u)
        a("s_mov_b32 s49, 9")
        lp = self.label("gu")
        a(f"{lp}:")
        rnd(False)
        a(f"s_sub_u32 s49, s49, 1\ns_cmp_lg_u32 s49, 0\ns_cbranch_scc1 {lp}")
        rnd(True)
        a("v_mul_u32_u24 v11, 1280, v2\nv_lshlrev_b32 v12, 3, v1\nv_add_u32 v11, v11, v12")
        a(f"s_mul_i32 s48, s2, {64*1280}")
        def issue2(uu):
            for cb in range(10):
                r = 64 + 2 * (10 * uu + cb)
                a(f"buffer_load_dwordx2 v[{r}:{r+1}], v11, s[40:43], s48 offen offset:{128*cb} nt")
            a(f"s_add_u32 s48, s48, {4*1280}")
        a("s_nop 7")
        for j in range(8): self.rbf16(DG + j)
        for uu in range(4): issue2(uu)
        for j in range(4):
            a(f"v_max_f32 v{DG+j}, 0, v{DG+j}\nv_mul_f32 v{DG+j}, v{DG+j}, v{DU+j}\nv_cvt_pk_bf16_f32 v{DG+j}, v{DG+j}, v{DG+j}")
        a("v_lshlrev_b32 v12, 8, v2\nv_lshlrev_b32 v13, 2, v1\nv_add_u32 v12, v12, v13")
        for j in range(4): a(f"ds_write_b32 v12, v{DG+j} offset:{HL+64*j}")
        a(f"s_waitcnt lgkmcnt(0)\nv_lshlrev_b32 v12, 6, v9\nv_add_u32 v12, {HL}, v12")
        for i in range(4): a(f"ds_read_b128 v[{208+4*i}:{211+4*i}], v12 offset:{16*i}")
        for j in range(40): a(f"v_mov_b32 v{144+j}, 0")
        a("s_waitcnt lgkmcnt(0)")
        for rd in range(4):
            last = rd == 3
            for uu in range(4):
                u2 = 4 * rd + uu
                A = A0 + 2 * (uu & 1)
                for jj in range(2): a(f"v_and_b32 v{A+jj}, v{208+u2}, v{M2+jj}")
                for cb in range(10):
                    r = 64 + 2 * (10 * uu + cb)
                    left = 39 if not last else 39 - (10 * uu + cb)
                    if not last: left = 39 - cb
                    a(f"s_waitcnt vmcnt({left})")
                    if cb == 0: a("s_nop 0")
                    a(f"v_mfma_f32_16x16x16_bf16 v[{144+4*cb}:{147+4*cb}], v[{A}:{A+1}], v[{r}:{r+1}], v[{144+4*cb}:{147+4*cb}]")
                if not last: issue2(uu)
        a("v_mul_u32_u24 v12, 2560, v2\nv_lshlrev_b32 v13, 4, v1\nv_add_u32 v12, v12, v13")
        a(f"s_mul_i32 s48, s2, 10240\ns_add_u32 s48, s48, {Z_OFF}\ns_nop 7")
        for cb in range(10):
            a(f"buffer_store_dwordx4 v[{144+4*cb}:{147+4*cb}], v12, s[20:23], s48 offen offset:{256*cb} sc1")
        a("s_waitcnt vmcnt(0)\nv_mov_b32 v52, 1\ns_mov_b64 exec, 1")
        a("buffer_atomic_add v52, off, s[24:27], 0 offset:128 sc1")
        a("s_mov_b64 exec, -1")

    def build(self):
        a = self.a
        a("s_cmp_ge_u32 s2, 256\ns_cbranch_scc1 L_exit")
        a("s_load_dwordx16 s[64:79], s[0:1], 0\ns_load_dwordx8 s[80:87], s[0:1], 64")
        a("v_lshrrev_b32 v1, 6, v0\nv_and_b32 v0, 63, v0\nv_readfirstlane_b32 s3, v1")
        if self.stamps:
            for k in range(8): a(f"s_mov_b32 s{88+k}, 0")
        a("s_and_b32 s40, s2, 7\ns_lshr_b32 s41, s2, 3")
        if self.mapping == "m4":
            a("s_lshr_b32 s43, s41, 1\ns_and_b32 s43, s43, 3\ns_lshl_b32 s45, s43, 3\ns_add_u32 s45, s45, s40")
            a("s_lshr_b32 s44, s41, 3\ns_and_b32 s46, s41, 1")
        elif self.mapping == "m3":
            a("s_and_b32 s43, s41, 3\ns_lshl_b32 s45, s43, 3\ns_add_u32 s45, s45, s40")
            a("s_lshr_b32 s44, s41, 2\ns_and_b32 s44, s44, 3\ns_lshr_b32 s46, s41, 4")
        elif self.mapping == "n":
            a("s_and_b32 s46, s2, 1\ns_lshr_b32 s45, s2, 1\ns_and_b32 s45, s45, 31\ns_lshr_b32 s44, s2, 6")
        a("s_lshl_b32 s47, s44, 5\ns_add_u32 s47, s47, s45\ns_lshl_b32 s47, s47, 1\ns_add_u32 s47, s47, s46")
        a("s_cmp_ge_u32 s3, 4\ns_cbranch_scc1 L_helper")
        self.stream()
        a("L_helper:")
        self.helper()
        a("L_exit:\ns_endpgm")
        return "\n".join(self.L)

HEADER = open("parallel_sum__gqa_block_cached__glu_gated_reglu__decode.s.ref").read().split("; Override launch")[0]

def full_source(g, nfv=256):
    body = g.build()
    s = HEADER
    s += "; Override launch geometry by editing the next line (default: block=256,\n"
    s += f"; @launch grid=(256,1,1) block=(512,1,1) lds={LDS_SIZE}\n"
    s += f""".amdgcn_target "amdgcn-amd-amdhsa--gfx950"
.text
.globl {NAME}
.p2align 8
.type {NAME},@function
{NAME}:
{body}
.section .rodata,"a"
.p2align 6
.amdhsa_kernel {NAME}
  .amdhsa_next_free_vgpr {nfv}
  .amdhsa_next_free_sgpr 102
  .amdhsa_accum_offset 256
  .amdhsa_group_segment_fixed_size 0
  .amdhsa_kernarg_size 96
  .amdhsa_user_sgpr_count 2
  .amdhsa_user_sgpr_kernarg_segment_ptr 1
  .amdhsa_system_sgpr_workgroup_id_x 1
.end_amdhsa_kernel
"""
    return s

if __name__ == "__main__":
    import argparse
    p = argparse.ArgumentParser()
    p.add_argument("-R", type=int, default=5); p.add_argument("--PG", type=int, default=1)
    p.add_argument("--stamps", action="store_true"); p.add_argument("--map", default="m4")
    p.add_argument("-o", default="/dev/stdout")
    x = p.parse_args()
    g = Gen(R=x.R, PG=x.PG, stamps=x.stamps, mapping=x.map)
    open(x.o, "w").write(full_source(g))
```

```python
import struct, sys
NAME = "parallel_sum__gqa_block_cached__glu_gated_reglu__decode_kernel"

def f2h(x):
    return "0x%08x" % struct.unpack("<I", struct.pack("<f", x))[0]

LOG2E = f2h(1.4426950408889634)
SCALE = f2h(128 ** -0.5)
INV640 = f2h(1.0 / 640.0)
EPS = f2h(1e-5)

QP, MW, FW, OP, YP, SC, XNL, HL, LDS_SIZE = 0, 2048, 2064, 4096, 6144, 16384, 32768, 43008, 45056
Y_OFF, ML_OFF, Z_OFF, PS_OFF = 0x100000, 0x1A0000, 0x1B0000, 0x280000
P_OFF = Z_OFF
PRG, MODE = 3072, 2304
SPIN_MAX = 200000

class Gen:
    def __init__(self, R=5, PG=1, stamps=False, mapping="m4", sleep=True, b0=True, rot=True, pre=0, wo_win=2, ffn_gu=8, ffn_dn=2, skip_wo=False, skip_ffn=False, wo_flags='nt', wo_rot=False, wq_flags='', early=False, ffn_exp=0, Rsplit=None, ctl=False, Rlo=5, Rhi=8, csh=11, cbias=1024, pstep=4, cthr=896, cloc=True, mld='nt', mst='', f2=False):
        self.f2 = f2
        self.cloc, self.mld, self.mst = cloc, mld, mst
        self.Rsplit = Rsplit
        self.ctl, self.Rlo, self.Rhi, self.csh, self.cbias, self.pstep, self.cthr = ctl, Rlo, Rhi, csh, cbias, pstep, cthr
        self.R, self.PG, self.stamps, self.mapping, self.sleep = R, PG, stamps, mapping, sleep
        self.skip_wo, self.skip_ffn, self.wo_flags, self.wo_rot = skip_wo, skip_ffn, wo_flags, wo_rot
        self.wq_flags, self.early, self.ffn_exp = wq_flags, early, ffn_exp
        self.b0, self.rot, self.pre, self.wo_win, self.ffn_gu, self.ffn_dn = b0, rot, pre, wo_win, ffn_gu, ffn_dn
        self.L = []
        self.uid = 0
        self.block = 512
        self.lds = LDS_SIZE
    def a(self, s):
        for line in s.split("\n"):
            line = line.strip()
            if line: self.L.append("    " + line if not line.endswith(":") else line)
    def c(self, s):
        self.L.append("    ; " + s)
    def label(self, p):
        self.uid += 1
        return f"L_{p}_{self.uid}"
    def stamp(self, k):
        if self.stamps:
            self.a(f"s_memrealtime s[98:99]\ns_waitcnt lgkmcnt(0)\ns_mov_b32 s{88+k}, s98")
    def stamp_flush(self):
        if not self.stamps: return
        a = self.a
        a("s_mov_b32 s56, s86\ns_mov_b32 s57, s87\ns_mov_b32 s58, 0x100000\ns_mov_b32 s59, 0x20000")
        a("s_lshl_b32 s60, s2, 3\ns_add_u32 s60, s60, s3\ns_lshl_b32 s60, s60, 6")
        a("s_mov_b64 exec, 1")
        a("v_mov_b32 v250, 0")
        for k in range(8):
            a(f"v_mov_b32 v251, s{88+k}")
            a(f"buffer_store_dword v251, v250, s[56:59], s60 offen offset:{4*k}")
            a("s_nop 1")
        a("s_mov_b64 exec, -1")

    def srd(self, base, ptr, nrec):
        self.a(f"s_mov_b32 s{base}, s{ptr}\ns_mov_b32 s{base+1}, s{ptr+1}\ns_mov_b32 s{base+2}, {hex(nrec)}\ns_mov_b32 s{base+3}, 0x20000")
    def const64(self, sreg, val):
        self.a(f"s_mov_b32 s{sreg}, {hex(val & 0xffffffff)}\ns_mov_b32 s{sreg+1}, {hex(val >> 32)}")
    def masks16x32(self, m0, tmp):
        a = self.a
        self.const64(60, 0xAAAAAAAAAAAAAAAA)
        a(f"v_mov_b32 v{tmp}, 0xffff\nv_mov_b32 v{tmp+1}, 0xffff0000")
        a(f"v_cndmask_b32_e64 v{tmp}, v{tmp}, v{tmp+1}, s[60:61]")
        for jj in range(4):
            self.const64(60, 0x0303030303030303 << (2 * jj))
            a(f"v_cndmask_b32_e64 v{m0+jj}, 0, v{tmp}, s[60:61]")
    def wave_reduce(self, v, op, sdst):
        a = self.a
        for r in (8, 4, 2, 1):
            a(f"{op}_dpp v{v}, v{v}, v{v} row_ror:{r} row_mask:0xf bank_mask:0xf\ns_nop 1")
        a(f"{op}_dpp v{v}, v{v}, v{v} row_bcast:15 row_mask:0xa bank_mask:0xf\ns_nop 1")
        a(f"{op}_dpp v{v}, v{v}, v{v} row_bcast:31 row_mask:0xc bank_mask:0xf\ns_nop 1")
        a(f"v_readlane_b32 s{sdst}, v{v}, 63\ns_nop 1")
    def rbf16(self, v):
        self.a(f"v_cvt_pk_bf16_f32 v{v}, v{v}, v{v}\nv_and_b32 v{v}, 0xffff0000, v{v}")
    def layernorm(self, xr, n_out, t0, s0):
        a = self.a
        for r in range(10): a(f"v_lshlrev_b32 v{xr+r}, 16, v{xr+r}")
        a(f"v_add_f32 v{t0}, v{xr}, v{xr+1}\nv_add_f32 v{t0+1}, v{xr+2}, v{xr+3}")
        for r in range(4, 10, 2):
            a(f"v_add_f32 v{t0}, v{t0}, v{xr+r}\nv_add_f32 v{t0+1}, v{t0+1}, v{xr+r+1}")
        a(f"v_add_f32 v{t0}, v{t0}, v{t0+1}\ns_nop 1")
        self.wave_reduce(t0, "v_add_f32", s0)
        a(f"v_mov_b32 v{t0}, {INV640}\nv_mul_f32 v{t0}, s{s0}, v{t0}")
        a(f"v_sub_f32 v{t0+1}, v{xr}, v{t0}\nv_mul_f32 v{t0+2}, v{t0+1}, v{t0+1}")
        for r in range(1, 10):
            a(f"v_sub_f32 v{t0+1}, v{xr+r}, v{t0}\nv_fmac_f32 v{t0+2}, v{t0+1}, v{t0+1}")
        a("s_nop 1")
        self.wave_reduce(t0 + 2, "v_add_f32", s0 + 1)
        a(f"v_mov_b32 v{t0+2}, {INV640}\nv_mul_f32 v{t0+2}, s{s0+1}, v{t0+2}")
        self.rbf16(t0); self.rbf16(t0 + 2)
        a(f"v_add_f32 v{t0+2}, {EPS}, v{t0+2}")
        self.rbf16(t0 + 2)
        a(f"v_sqrt_f32 v{t0+2}, v{t0+2}\ns_nop 0")
        self.rbf16(t0 + 2)
        a(f"v_rcp_f32 v{t0+2}, v{t0+2}\ns_nop 0")
        for r in range(n_out):
            a(f"v_sub_f32 v{xr+r}, v{xr+r}, v{t0}")
            self.rbf16(xr + r)
            a(f"v_mul_f32 v{xr+r}, v{xr+r}, v{t0+2}")
            a(f"v_cvt_pk_bf16_f32 v{xr+r}, v{xr+r}, v{xr+r}")
    def spin_head(self, name, scnt):
        l = self.label(name); d = self.label(name + "_done")
        self.a(f"s_mov_b32 s{scnt}, {SPIN_MAX}\n{l}:")
        return l, d
    def reduce_hq(self, v0, n, t):
        a = self.a
        a("s_nop 1")
        for i in range(n): a(f"v_add_f32_dpp v{v0+i}, v{v0+i}, v{v0+i} row_ror:8 row_mask:0xf bank_mask:0xf")
        for sw in ("v_permlane16_swap_b32", "v_permlane32_swap_b32"):
            for i in range(n): a(f"v_mov_b32 v{t+i}, v{v0+i}")
            a("s_nop 1")
            for i in range(n): a(f"{sw} v{t+i}, v{v0+i}")
            a("s_nop 1")
            for i in range(n): a(f"v_add_f32 v{v0+i}, v{v0+i}, v{t+i}")

    def stream(self):
        a, R, PG = self.a, self.R, self.PG
        vK, vV, vSW, vSR, vMax, vS, vT0, vT1, vP, vSn, vE = 1, 2, 3, 4, 5, 6, 7, 8, 9, 10, 11
        MK, AQ, D, ACC, PA = 12, 16, 32, 40, 44
        RING = 64
        TQ = 192
        self.c("==== streaming waves (0..3): K then V of this workgroup's 4096 keys ====")
        a(f"v_and_b32 v7, 15, v0\nv_lshrrev_b32 v8, 4, v0")
        a(f"v_lshrrev_b32 v9, 2, v7\nv_lshlrev_b32 v{vK}, 8, v9")
        a(f"v_lshlrev_b32 v10, 6, v8\nv_or_b32 v{vK}, v{vK}, v10")
        a(f"v_and_b32 v10, 3, v7\nv_lshlrev_b32 v10, 4, v10\nv_or_b32 v{vK}, v{vK}, v10")
        a(f"v_lshlrev_b32 v{vV}, 4, v0")
        a("s_lshl_b32 s16, s47, 20\ns_lshl_b32 s17, s3, 12\ns_add_u32 s16, s16, s17\ns_mov_b32 s17, s16")
        a("s_waitcnt lgkmcnt(0)")
        self.srd(8, 66, 0x10000000)
        self.srd(12, 68, 0x10000000)
        if self.ctl: a("s_add_u32 s14, s47, 1\ns_lshl_b32 s14, s14, 20")
        st = {"issued": 0}
        def slot(n):
            if n < 16 * PG: return RING + 4 * n
            return RING + 4 * (n % 16)
        def issue(n):
            t = n & 3
            if n < 256:
                a(f"buffer_load_dwordx4 v[{slot(n)}:{slot(n)+3}], v{vK}, s[8:11], s16 offen offset:{t*1024} nt")
                if t == 3: a("s_add_u32 s16, s16, 0x4000")
            else:
                a(f"buffer_load_dwordx4 v[{slot(n)}:{slot(n)+3}], v{vV}, s[12:15], s17 offen offset:{t*1024} nt")
                if t == 3: a("s_add_u32 s17, s17, 0x4000")
        for n in range(16 * PG):
            if self.b0 and n == self.pre: a("s_barrier")
            issue(n)
        self.stamp(0)
        self.masks16x32(MK, 7)
        self.const64(48, 0x2222222222222222); self.const64(50, 0x4444444444444444); self.const64(52, 0x8888888888888888)
        a("v_and_b32 v7, 15, v0\nv_lshrrev_b32 v8, 4, v0\nv_lshrrev_b32 v9, 2, v7\nv_and_b32 v10, 3, v7")
        a(f"v_lshlrev_b32 v9, 4, v9\nv_lshlrev_b32 v{vSW}, 2, v8\nv_add_u32 v{vSW}, v{vSW}, v9\nv_add_u32 v{vSW}, v{vSW}, v10")
        a(f"v_lshlrev_b32 v{vSW}, 2, v{vSW}")
        a(f"s_lshl_b32 s18, s3, 12\ns_add_u32 s18, s18, {SC}")
        a(f"v_add_u32 v{vSW}, s18, v{vSW}")
        a(f"v_lshlrev_b32 v{vSR}, 2, v0\nv_add_u32 v{vSR}, s18, v{vSR}")
        a(f"v_mov_b32 v{vMax}, 0xff800000")
        a(f"v_lshlrev_b32 v9, 2, v8\nv_add_u32 v9, v9, v10\nv_lshlrev_b32 v9, 5, v9")
        vProg, vPA, vMode, vMA = 52, 53, 54, 55
        if self.ctl:
            a(f"s_lshl_b32 s21, s3, 8\ns_add_u32 s21, s21, {PRG}\nv_lshlrev_b32 v{vPA}, 2, v0\nv_add_u32 v{vPA}, s21, v{vPA}")
            a(f"s_lshl_b32 s21, s3, 2\ns_add_u32 s21, s21, {MODE}\nv_mov_b32 v{vMA}, s21")
            a(f"v_mov_b32 v{vProg}, 0\nv_mov_b32 v{vMode}, {R}")
            a(f"ds_write_b32 v{vPA}, v{vProg}\nds_write_b32 v{vMA}, v{vMode}\ns_waitcnt lgkmcnt(0)")
        a("s_barrier")
        for hw in range(4):
            a(f"ds_read_b128 v[{TQ+8*hw}:{TQ+8*hw+3}], v9 offset:{QP+512*hw}")
            a(f"ds_read_b128 v[{TQ+8*hw+4}:{TQ+8*hw+7}], v9 offset:{QP+512*hw+16}")
        a("s_waitcnt lgkmcnt(0)")
        for j in range(8): a(f"v_add_f32 v{TQ+j}, v{TQ+j}, v{TQ+8+j}\nv_add_f32 v{TQ+16+j}, v{TQ+16+j}, v{TQ+24+j}")
        for j in range(8): a(f"v_add_f32 v{TQ+j}, v{TQ+j}, v{TQ+16+j}")
        for jj in range(4): a(f"v_cvt_pk_bf16_f32 v{TQ+8+jj}, v{TQ+2*jj}, v{TQ+2*jj+1}")
        for t in range(4):
            self.const64(60, 0x000F000F000F000F << (4 * t))
            for jj in range(4): a(f"v_cndmask_b32_e64 v{AQ+4*t+jj}, 0, v{TQ+8+jj}, s[60:61]")
        a("s_nop 1")
        self.stamp(1)

        issued = [16 * PG]
        def kgroup(G, mode):
            for s in range(16):
                n = 16 * G + s
                tau, t = s >> 2, s & 3
                a(f"s_waitcnt vmcnt({issued[0]-1-n})")
                cin = "0" if t == 0 else f"v[{D}:{D+3}]"
                mf = f"v_mfma_f32_16x16x32_bf16 v[{D}:{D+3}], v[{AQ+4*t}:{AQ+4*t+3}], v[{slot(n)}:{slot(n)+3}], {cin}"
                nxt = None
                if n < 16 * PG:
                    if n < R: nxt = 16 * PG + n
                else:
                    nxt = n + R
                early = self.early and nxt is not None and slot(nxt) != slot(n)
                if not early: a(mf)
                if nxt is not None:
                    assert nxt == issued[0], (n, nxt, issued)
                    issue(nxt); issued[0] += 1
                if early: a(mf)
                if t == 3:
                    a("s_nop 7")
                    a(f"v_mov_b32_dpp v{vT0}, v{D} quad_perm:[0,0,0,0] row_mask:0xf bank_mask:0xf")
                    a(f"v_mov_b32_dpp v{vT1}, v{D+2} quad_perm:[2,2,2,2] row_mask:0xf bank_mask:0xf")
                    a("s_nop 0")
                    a(f"v_add_f32_dpp v{vT0}, v{D+1}, v{vT0} quad_perm:[1,1,1,1] row_mask:0xf bank_mask:0xf")
                    a(f"v_add_f32_dpp v{vT1}, v{D+3}, v{vT1} quad_perm:[3,3,3,3] row_mask:0xf bank_mask:0xf")
                    if tau == 0:
                        a(f"v_add_f32 v{vS}, v{vT0}, v{vT1}")
                    else:
                        a(f"v_add_f32 v{vT0}, v{vT0}, v{vT1}")
                        a(f"v_cndmask_b32_e64 v{vS}, v{vS}, v{vT0}, s[{46+2*tau}:{47+2*tau}]")
            self.rbf16(vS)
            a(f"v_mul_f32 v{vS}, {SCALE}, v{vS}")
            self.rbf16(vS)
            a(f"v_max_f32 v{vMax}, v{vMax}, v{vS}")
            a(f"ds_write_b32 v{vSW}, v{vS}")
            a(f"v_add_u32 v{vSW}, 0x100, v{vSW}")
        for G in range(PG): kgroup(G, "first")
        a(f"s_mov_b32 s19, {15-PG}")
        lk = self.label("K")
        a(f"{lk}:")
        save = issued[0]
        kgroup(PG, "steady")
        a(f"s_sub_u32 s19, s19, 1\ns_cmp_lg_u32 s19, 0\ns_cbranch_scc1 {lk}")
        issued[0] = save + 16 * (15 - PG)
        kgroup(15, "last")
        a("s_nop 1")
        self.wave_reduce(vMax, "v_max_f32", 20)
        a(f"v_mov_b32 v{vMax}, s20")
        a(f"s_lshl_b32 s18, s3, 2\ns_add_u32 s18, s18, {MW}\nv_mov_b32 v7, s18")
        a(f"ds_write_b32 v7, v{vMax}")
        a(f"ds_read_b32 v{vSn}, v{vSR}\nv_add_u32 v{vSR}, 0x100, v{vSR}")
        for j in range(4): a(f"v_mov_b32 v{ACC+j}, 0")
        self.stamp(2)
        def abuild(s):
            tau, t = s >> 2, s & 3
            for jj in range(4):
                a(f"v_and_b32_dpp v{PA+4*(s&1)+jj}, v{vP}, v{MK+jj} row_newbcast:{4*t+tau} row_mask:0xf bank_mask:0xf")
        def vgroup(G, last):
            a("s_waitcnt lgkmcnt(0)")
            a(f"v_sub_f32 v{vE}, v{vSn}, v{vMax}\nv_mul_f32 v{vE}, {LOG2E}, v{vE}\nv_exp_f32 v{vE}, v{vE}")
            if not last:
                a(f"ds_read_b32 v{vSn}, v{vSR}\nv_add_u32 v{vSR}, 0x100, v{vSR}")
            else:
                a("s_nop 0")
            a(f"v_cvt_pk_bf16_f32 v{vP}, v{vE}, v{vE}\ns_nop 1")
            abuild(0)
            for s in range(16):
                n = 256 + 16 * G + s
                A = PA + 4 * (s & 1)
                mf = f"v_mfma_f32_16x16x32_bf16 v[{ACC}:{ACC+3}], v[{A}:{A+3}], v[{slot(n)}:{slot(n)+3}], v[{ACC}:{ACC+3}]"
                nxt = n + R
                early = self.early and nxt < 512
                a(f"s_waitcnt vmcnt({issued[0]-1-n})")
                if not early: a("s_nop 0\n" + mf)
                if nxt < 512:
                    assert nxt == issued[0]
                    issue(nxt); issued[0] += 1
                if early: a(mf)
                if s < 15: abuild(s + 1)
        if not self.ctl:
            a("s_mov_b32 s19, 15")
            lv = self.label("V")
            a(f"{lv}:")
            save = issued[0]
            vgroup(0, False)
            a(f"s_sub_u32 s19, s19, 1\ns_cmp_lg_u32 s19, 0\ns_cbranch_scc1 {lv}")
            issued[0] = save + 16 * 15
            vgroup(15, True)
        else:
            def vissue(n):
                t = n & 3
                a(f"buffer_load_dwordx4 v[{RING+4*(n%16)}:{RING+4*(n%16)+3}], v{vV}, s[12:15], s17 offen offset:{t*1024} nt")
                if t == 3: a("s_add_u32 s17, s17, 0x4000")
            def vhead():
                a("s_waitcnt lgkmcnt(0)")
                a(f"v_sub_f32 v{vE}, v{vSn}, v{vMax}\nv_mul_f32 v{vE}, {LOG2E}, v{vE}\nv_exp_f32 v{vE}, v{vE}")
                a(f"ds_read_b32 v{vSn}, v{vSR}\nv_add_u32 v{vSR}, 0x100, v{vSR}")
                a(f"v_cvt_pk_bf16_f32 v{vP}, v{vE}, v{vE}\ns_nop 1")
                abuild(0)
            def vstep(s, Rw, Ri):
                A = PA + 4 * (s & 1)
                a(f"s_waitcnt vmcnt({Rw-1})\ns_nop 0")
                a(f"v_mfma_f32_16x16x32_bf16 v[{ACC}:{ACC+3}], v[{A}:{A+3}], v[{RING+4*s}:{RING+4*s+3}], v[{ACC}:{ACC+3}]")
                if Ri is not None: vissue(s + Ri)
                if s < 15: abuild(s + 1)
                if (s + 1) % self.pstep == 0:
                    a(f"v_add_u32 v{vProg}, {self.pstep}, v{vProg}\nds_write_b32 v{vPA}, v{vProg}")
                if s == 13: a(f"ds_read_b32 v{vMode}, v{vMA}")
            uid = self.label("vc")
            modes = list(range(self.Rlo, self.Rhi + 1))
            assert R in modes
            a(f"s_mov_b32 s19, 16\ns_branch {uid}_top{R}")
            for m in modes:
                a(f"{uid}_top{m}:")
                vhead(); vstep(0, m, m)
                a(f"{uid}_s1_{m}:")
                for s in range(1, 16): vstep(s, m, m)
                a(f"s_sub_u32 s19, s19, 1\ns_cmp_eq_u32 s19, 0\ns_cbranch_scc1 {uid}_done")
                a(f"s_waitcnt lgkmcnt(0)\nv_readfirstlane_b32 s21, v{vMode}")
                if m < self.Rhi: a(f"s_cmp_gt_u32 s21, {m}\ns_cbranch_scc1 {uid}_up{m}")
                if m > self.Rlo: a(f"s_cmp_lt_u32 s21, {m}\ns_cbranch_scc1 {uid}_dn{m}")
                a(f"s_branch {uid}_top{m}")
                if m < self.Rhi:
                    a(f"{uid}_up{m}:")
                    vissue(m)
                    a(f"s_branch {uid}_top{m+1}")
                if m > self.Rlo:
                    a(f"{uid}_dn{m}:")
                    vhead(); vstep(0, m, None)
                    a(f"s_branch {uid}_s1_{m-1}")
            a(f"{uid}_done:\ns_waitcnt vmcnt(0)")
        a("v_and_b32 v7, 15, v0\nv_lshrrev_b32 v8, 4, v0\nv_and_b32 v8, 1, v8\nv_lshlrev_b32 v7, 5, v7\nv_lshlrev_b32 v8, 4, v8\nv_add_u32 v7, v7, v8")
        a(f"s_lshl_b32 s18, s3, 9\ns_add_u32 s18, s18, {OP}\nv_add_u32 v7, s18, v7")
        a(f"s_nop 1\nds_write_b128 v7, v[{ACC}:{ACC+3}]\ns_waitcnt lgkmcnt(0)")
        self.stamp(3)
        a("s_barrier")
        self.stamp_flush()
        a("s_endpgm")

    def helper(self):
        a = self.a
        MK, A0, D, YA, W = 4, 20, 28, 32, 64
        self.c("==== helper waves (4..7): q projection, FFN, softmax denominators, output projection, final sum ====")
        a("s_sub_u32 s5, s3, 4")
        HW = 5
        self.HW = HW
        a("v_and_b32 v1, 15, v0\nv_lshrrev_b32 v2, 4, v0")
        a(f"s_mul_i32 s48, s{HW}, 40")
        a("s_lshl_b32 s52, s44, 1\ns_add_u32 s52, s52, s46\ns_mul_i32 s52, s52, 5" if self.rot else "s_mov_b32 s52, 0")
        a("s_mul_i32 s49, s44, 1280")
        a("v_lshlrev_b32 v3, 13, v2\nv_lshlrev_b32 v9, 4, v1\nv_add_u32 v3, v3, v9")
        a(f"s_mul_i32 s53, s{HW}, {160*8192}\ns_lshl_b32 s51, s45, 8\ns_add_u32 s53, s53, s51")
        a(f"s_lshl_b32 s50, s52, 15\ns_add_u32 s50, s50, s53\ns_add_u32 s51, s53, {40*32768}")
        a("s_waitcnt lgkmcnt(0)")
        self.srd(8, 64, 5120)
        self.srd(12, 70, 5242880)
        for r in range(10):
            t = 52 + (r & 3)
            a(f"v_add_u32 v{t}, {16*r}, v1")
            if r <= 2:
                a(f"v_add_u32 v8, s52, v{t}\nv_subrev_u32 v9, 40, v8\nv_min_u32 v8, v8, v9\nv_add_u32 v8, s48, v8")
            if r >= 2:
                a(f"v_add_u32 v{t}, s48, v{t}\nv_subrev_u32 v9, 160, v{t}\nv_min_u32 v{t}, v{t}, v9")
            if r < 2:
                a(f"v_mov_b32 v{t}, v8")
            elif r == 2:
                a(f"v_cmp_gt_u32 vcc, 8, v1\ns_nop 1\nv_cndmask_b32 v{t}, v{t}, v8, vcc")
            a(f"v_lshlrev_b32 v{t}, 2, v{t}\nv_add_u32 v{t}, v{t}, v2\nv_lshlrev_b32 v{t}, 1, v{t}")
            a(f"buffer_load_ushort v{10+r}, v{t}, s[8:11], s49 offen")
        for u in range(40):
            a(f"buffer_load_dwordx4 v[{W+4*u}:{W+4*u+3}], v3, s[12:15], s50 offen {self.wq_flags}")
            if u < 39: a("s_add_u32 s50, s50, 0x8000\ns_cmp_eq_u32 s50, s51\ns_cselect_b32 s50, s53, s50")
        if self.b0: a("s_barrier")
        self.stamp(0)
        self.masks16x32(MK, 8)
        a(f"v_mov_b32 v52, -1\nv_mov_b32 v53, -1\nv_mov_b32 v54, -1\nv_mov_b32 v55, -1\nv_mov_b32 v9, {MW}\nds_write_b128 v9, v[52:55]")
        self.srd(16, 72, 5242880)
        self.srd(20, 86, 0x40000000)
        self.srd(24, 84, 256)
        self.srd(28, 82, 5120)
        a("s_waitcnt vmcnt(40)")
        self.layernorm(10, 3, 52, 52)
        def abuild(src, u, buf, MKr=MK):
            for jj in range(4):
                a(f"v_and_b32_dpp v{A0+4*buf+jj}, v{src}, v{MKr+jj} row_newbcast:{u} row_mask:0xf bank_mask:0xf")
        a("s_nop 1")
        abuild(10, 0, 0)
        for u in range(40):
            if u < 39: abuild(10 + ((u + 1) >> 4), (u + 1) & 15, (u + 1) & 1)
            else: a("s_nop 1")
            a(f"s_waitcnt vmcnt({39-u})")
            A = A0 + 4 * (u & 1)
            cin = "0" if u == 0 else f"v[{D}:{D+3}]"
            a(f"v_mfma_f32_16x16x32_bf16 v[{D}:{D+3}], v[{A}:{A+3}], v[{W+4*u}:{W+4*u+3}], {cin}")
        a("v_lshlrev_b32 v8, 5, v1\nv_and_b32 v9, 1, v2\nv_lshlrev_b32 v9, 4, v9\nv_add_u32 v8, v8, v9")
        a(f"s_lshl_b32 s48, s{HW}, 9\nv_add_u32 v9, s48, v8")
        a(f"s_nop 3\nds_write_b128 v9, v[{D}:{D+3}] offset:{QP}\ns_waitcnt lgkmcnt(0)")
        a("s_barrier")
        self.stamp(1)
        l_wo = self.label("wo")
        a(f"s_cmp_eq_u32 s{HW}, 1\ns_cbranch_scc0 {l_wo}\ns_cmp_lt_u32 s2, {216 if self.f2 else 27}\ns_cbranch_scc0 {l_wo}")
        if self.skip_ffn:
            a("v_mov_b32 v52, 1\ns_mov_b64 exec, 1\nbuffer_atomic_add v52, off, s[24:27], 0 offset:128 sc1\ns_mov_b64 exec, -1")
        elif self.f2:
            self.ffn1()
        else:
            self.ffn()
        a(f"{l_wo}:")
        l_nc = self.label("noclear")
        a(f"s_cmp_eq_u32 s{HW}, 0\ns_cbranch_scc0 {l_nc}")
        a("v_mov_b32 v52, -1\nv_mov_b32 v53, -1\nv_mov_b32 v54, -1\nv_mov_b32 v55, -1")
        a(f"s_mul_i32 s48, s47, 2560\ns_add_u32 s48, s48, {Y_OFF}\nv_lshlrev_b32 v9, 4, v0")
        a("buffer_store_dwordx4 v[52:55], v9, s[20:23], s48 offen sc1")
        a("buffer_store_dwordx4 v[52:55], v9, s[20:23], s48 offen offset:1024 sc1")
        a("s_mov_b32 exec_hi, 0")
        a("buffer_store_dwordx4 v[52:55], v9, s[20:23], s48 offen offset:2048 sc1")
        a("s_mov_b64 exec, 1")
        a(f"s_lshl_b32 s49, s47, 7\ns_add_u32 s49, s49, {ML_OFF}")
        a("buffer_store_dwordx2 v[52:53], v9, s[20:23], s49 offen sc1")
        if self.ctl:
            self.slot_addr(49, 50)
            a("v_mov_b32 v56, 0\nbuffer_store_dword v56, v9, s[20:23], s49 offen sc1")
        a("s_waitcnt vmcnt(0)")
        a("v_mov_b32 v52, 1")
        a("buffer_atomic_add v52, off, s[24:27], 0 sc1")
        a("s_mov_b64 exec, -1")
        a(f"{l_nc}:")
        a("v_mul_u32_u24 v3, 1280, v2\nv_lshlrev_b32 v9, 4, v1\nv_add_u32 v3, v3, v9")
        a(f"s_lshl_b32 s48, s45, 7\ns_lshl_b32 s49, s{HW}, 5\ns_add_u32 s48, s48, s49\ns_mul_i32 s48, s48, 1280")
        for u in range(8):
            if self.skip_wo: break
            for cb in range(5):
                r = W + 4 * (5 * u + cb)
                if self.wo_win and 5 * u + cb >= self.wo_win: a(f"s_waitcnt vmcnt({self.wo_win-1})")
                a(f"buffer_load_dwordx4 v[{r}:{r+3}], v3, s[16:19], s48 offen offset:{256*cb} {self.wo_flags}")
            if u < 7: a(f"s_add_u32 s48, s48, {4*1280}")
        l_b2 = self.label("toB2")
        a(f"s_cmp_eq_u32 s{HW}, 0\ns_cbranch_scc0 {l_b2}")
        self.wave4_mid()
        l_b3 = self.label("toB2b")
        if self.ctl or self.f2: a(f"s_branch {l_b3}")
        a(f"{l_b2}:")
        if self.f2:
            for j in range(20): a(f"v_mov_b32 v{YA+j}, 0")
        if self.ctl:
            a(f"s_cmp_eq_u32 s{HW}, 2\ns_cbranch_scc0 {l_b3}")
            self.monitor()
        if self.ctl or self.f2: a(f"{l_b3}:")
        a("s_waitcnt vmcnt(0)")
        a(f"v_and_b32 v8, 7, v1\nv_lshlrev_b32 v8, 2, v8\nv_add_u32 v8, v8, v2\nv_lshlrev_b32 v8, 2, v8\ns_lshl_b32 s48, s{HW}, 7\nv_add_u32 v8, s48, v8")
        a(f"v_mov_b32 v9, {FW}")
        a("v_lshlrev_b32 v10, 5, v1\nv_and_b32 v11, 1, v2\nv_lshlrev_b32 v11, 4, v11\nv_add_u32 v10, v10, v11")
        a(f"s_mul_i32 s48, s{HW}, 2560\nv_add_u32 v10, s48, v10")
        a(f"s_mul_i32 s48, s{HW}, 640\nv_lshlrev_b32 v11, 4, v0\nv_add_u32 v11, s48, v11")
        a(f"s_mul_i32 s49, s47, 2560\ns_add_u32 s49, s49, {Y_OFF}")
        self.stamp(2)
        a("s_barrier")
        self.stamp(3)
        a("ds_read_b128 v[52:55], v9")
        for w in range(4): a(f"ds_read_b32 v{56+w}, v8 offset:{OP+512*w}")
        a("s_waitcnt lgkmcnt(0)")
        a("v_mul_f32 v56, v52, v56\nv_mul_f32 v58, v54, v58\nv_fmac_f32 v56, v53, v57\nv_fmac_f32 v58, v55, v59\nv_add_f32 v56, v56, v58")
        a("v_cvt_pk_bf16_f32 v56, v56, v56\ns_nop 1")
        abuild(56, 0, 0)
        for u in range(8):
            if u < 7: abuild(56, u + 1, (u + 1) & 1)
            else: a("s_nop 1")
            A = A0 + 4 * (u & 1)
            for cb in range(5):
                r = W + 4 * (5 * u + cb)
                acc = YA + 4 * cb
                cin = "0" if (u == 0 and not self.f2) else f"v[{acc}:{acc+3}]"
                a(f"v_mfma_f32_16x16x32_bf16 v[{acc}:{acc+3}], v[{A}:{A+3}], v[{r}:{r+3}], {cin}")
        a("s_nop 3")
        for cb in range(5):
            if cb == 4: a("s_nop 3")
            a(f"ds_write_b128 v10, v[{YA+4*cb}:{YA+4*cb+3}] offset:{YP+512*cb}")
        a("s_waitcnt lgkmcnt(0)")
        a("s_barrier")
        a("s_mov_b32 exec_hi, 0xff")
        for w in range(4): a(f"ds_read_b128 v[{64+4*w}:{64+4*w+3}], v11 offset:{YP+2560*w}")
        a("s_waitcnt lgkmcnt(0)")
        a("v_pk_add_f32 v[64:65], v[64:65], v[68:69]\nv_pk_add_f32 v[66:67], v[66:67], v[70:71]")
        a("v_pk_add_f32 v[72:73], v[72:73], v[76:77]\nv_pk_add_f32 v[74:75], v[74:75], v[78:79]")
        a("v_pk_add_f32 v[64:65], v[64:65], v[72:73]\nv_pk_add_f32 v[66:67], v[66:67], v[74:75]")
        a("buffer_store_dwordx4 v[64:67], v11, s[20:23], s49 offen sc1")
        a("s_mov_b64 exec, -1")
        self.stamp(4)
        l_fin = self.label("fin")
        a(f"s_cmp_eq_u32 s{HW}, 0\ns_cbranch_scc0 {l_fin}\ns_cmp_lt_u32 s2, 80\ns_cbranch_scc0 {l_fin}")
        self.final_reduce()
        a(f"{l_fin}:")
        self.stamp(5)
        self.stamp_flush()
        a("s_endpgm")

    def slot_addr(self, sa, sb):
        a = self.a
        if self.cloc:
            a(f"s_lshr_b32 s{sa}, s2, 3\ns_and_b32 s{sb}, s2, 7\ns_lshl_b32 s{sb}, s{sb}, 8\ns_add_u32 s{sb}, s{sb}, {PS_OFF}")
        else:
            a(f"s_lshr_b32 s{sa}, s2, 3\ns_add_u32 s{sb}, s{sa}, s2\ns_and_b32 s{sb}, s{sb}, 7\ns_lshl_b32 s{sb}, s{sb}, 7\ns_add_u32 s{sb}, s{sb}, {PS_OFF}")
        a(f"s_lshl_b32 s{sa}, s{sa}, 2\ns_add_u32 s{sa}, s{sa}, s{sb}")
    def monitor(self):
        a = self.a
        self.c("---- wave 6: balances the V phase by steering each streaming wave's lookahead depth ----")
        l, d = self.spin_head("mw6", 48)
        a(f"v_mov_b32 v9, {MW}\nds_read_b128 v[52:55], v9\ns_waitcnt lgkmcnt(0)")
        a("v_max3_u32 v9, v52, v53, v54\nv_max_u32 v9, v9, v55\nv_cmp_eq_u32 vcc, -1, v9")
        a(f"s_cbranch_vccz {d}")
        a(f"s_sub_u32 s48, s48, 1\ns_cmp_lg_u32 s48, 0\ns_cbranch_scc1 {l}")
        a(f"{d}:")
        l, d = self.spin_head("clr6", 48)
        a("buffer_load_dword v58, off, s[24:27], 0 sc1\ns_waitcnt vmcnt(0)")
        a("v_cmp_gt_u32 vcc, 256, v58")
        a(f"s_cbranch_vccz {d}")
        a(f"s_sub_u32 s48, s48, 1\ns_cmp_lg_u32 s48, 0\ns_cbranch_scc1 {l}")
        a(f"{d}:")
        self.slot_addr(49, 50)
        a(f"v_and_b32 v52, 3, v0\nv_lshlrev_b32 v53, 2, v52\nv_add_u32 v53, {MODE}, v53")
        a(f"v_lshlrev_b32 v52, 8, v52\nv_add_u32 v52, {PRG}, v52")
        a("v_and_b32 v54, 31, v0\nv_lshlrev_b32 v54, 2, v54\nv_mov_b32 v9, 0\ns_mov_b32 s51, 0")
        l, d = self.spin_head("mon", 48)
        a("ds_read_b32 v55, v52\ns_waitcnt lgkmcnt(0)")
        a("v_add_u32_dpp v56, v55, v55 quad_perm:[1,0,3,2] row_mask:0xf bank_mask:0xf\ns_nop 1")
        a("v_add_u32_dpp v56, v56, v56 quad_perm:[2,3,0,1] row_mask:0xf bank_mask:0xf\ns_nop 1")
        a("v_readfirstlane_b32 s52, v56")
        a(f"s_nop 1\ns_cmp_ge_u32 s52, {self.cthr}\ns_cbranch_scc1 {d}")
        a(f"s_mov_b64 exec, 1\nbuffer_store_dword v56, v9, s[20:23], s49 offen {self.mst}\ns_mov_b64 exec, -1")
        a(f"buffer_load_dword v57, v54, s[20:23], s50 offen {self.mld}\ns_waitcnt vmcnt(0)")
        self.wave_reduce(57, "v_add_u32", 53)
        a("s_sub_u32 s54, s52, s51\ns_lshl_b32 s54, s54, 6\ns_add_u32 s54, s54, s53")
        a(f"s_add_u32 s54, s54, {self.cbias}\ns_mov_b32 s51, s52")
        a("v_lshlrev_b32 v55, 8, v55\nv_sub_u32 v55, s54, v55")
        a(f"v_ashrrev_i32 v55, {self.csh}, v55\nv_add_u32 v55, {self.R}, v55")
        a(f"v_max_i32 v55, {self.Rlo}, v55\nv_min_i32 v55, {self.Rhi}, v55")
        a("ds_write_b32 v53, v55")
        a(f"s_sub_u32 s48, s48, 1\ns_cmp_lg_u32 s48, 0\ns_cbranch_scc1 {l}")
        a(f"{d}:")
        a(f"v_mov_b32 v56, 0x400\ns_mov_b64 exec, 1\nbuffer_store_dword v56, v9, s[20:23], s49 offen {self.mst}\ns_mov_b64 exec, -1")

    def wave4_mid(self):
        a = self.a
        self.c("---- wave 4: softmax statistics of this half, exchange with the other half ----")
        l, d = self.spin_head("mw", 48)
        a(f"v_mov_b32 v9, {MW}\nds_read_b128 v[52:55], v9\ns_waitcnt lgkmcnt(0)")
        a("v_max3_u32 v9, v52, v53, v54\nv_max_u32 v9, v9, v55\nv_cmp_eq_u32 vcc, -1, v9")
        a(f"s_cbranch_vccz {d}")
        if self.sleep: a("s_sleep 16")
        a(f"s_sub_u32 s48, s48, 1\ns_cmp_lg_u32 s48, 0\ns_cbranch_scc1 {l}")
        a(f"{d}:")
        self.stamp(6)
        a("v_max3_f32 v56, v52, v53, v54\nv_max_f32 v56, v56, v55")
        a(f"v_lshlrev_b32 v9, 4, v0\nv_add_u32 v9, {SC}, v9\nv_mov_b32 v57, 0\ns_mov_b32 s48, 4")
        lp = self.label("lsum")
        a(f"{lp}:")
        for i in range(4): a(f"ds_read_b128 v[{224+4*i}:{227+4*i}], v9 offset:{1024*i}")
        a("v_add_u32 v9, 4096, v9\ns_waitcnt lgkmcnt(0)")
        for i in range(16): a(f"v_sub_f32 v{224+i}, v{224+i}, v56")
        for i in range(16): a(f"v_mul_f32 v{224+i}, {LOG2E}, v{224+i}")
        for i in range(16): a(f"v_exp_f32 v{224+i}, v{224+i}")
        a("s_nop 0")
        for i in range(16): a(f"v_add_f32 v57, v57, v{224+i}")
        a(f"s_sub_u32 s48, s48, 1\ns_cmp_lg_u32 s48, 0\ns_cbranch_scc1 {lp}")
        a("s_nop 1")
        self.wave_reduce(57, "v_add_f32", 50)
        a("v_mov_b32 v57, s50")
        a(f"s_lshl_b32 s49, s47, 7\ns_add_u32 s49, s49, {ML_OFF}")
        a("v_mov_b32 v9, 0\ns_mov_b64 exec, 1")
        a("buffer_store_dwordx2 v[56:57], v9, s[20:23], s49 offen sc1")
        a("s_mov_b64 exec, -1")
        if self.f2: self.ffn2()
        l, d = self.spin_head("clr", 48)
        a("buffer_load_dword v58, off, s[24:27], 0 sc1\ns_waitcnt vmcnt(0)")
        a("v_cmp_gt_u32 vcc, 256, v58")
        a(f"s_cbranch_vccz {d}")
        a(f"s_sub_u32 s48, s48, 1\ns_cmp_lg_u32 s48, 0\ns_cbranch_scc1 {l}")
        a(f"{d}:")
        a(f"s_xor_b32 s49, s47, 1\ns_lshl_b32 s49, s49, 7\ns_add_u32 s49, s49, {ML_OFF}\nv_mov_b32 v9, 0")
        l, d = self.spin_head("ml", 48)
        a("buffer_load_dwordx2 v[58:59], v9, s[20:23], s49 offen sc1\ns_waitcnt vmcnt(0)")
        a("v_max_u32 v60, v58, v59\nv_cmp_eq_u32 vcc, -1, v60")
        a(f"s_cbranch_vccz {d}")
        a(f"s_sub_u32 s48, s48, 1\ns_cmp_lg_u32 s48, 0\ns_cbranch_scc1 {l}")
        a(f"{d}:")
        a("v_max_f32 v60, v56, v58")
        a("v_sub_f32 v56, v56, v60\nv_sub_f32 v58, v58, v60")
        for i in range(4): a(f"v_sub_f32 v{52+i}, v{52+i}, v60")
        a(f"v_mul_f32 v56, {LOG2E}, v56\nv_mul_f32 v58, {LOG2E}, v58")
        for i in range(4): a(f"v_mul_f32 v{52+i}, {LOG2E}, v{52+i}")
        a("v_exp_f32 v56, v56\nv_exp_f32 v58, v58")
        for i in range(4): a(f"v_exp_f32 v{52+i}, v{52+i}")
        a("v_mul_f32 v57, v57, v56\nv_fmac_f32 v57, v59, v58\nv_rcp_f32 v57, v57\ns_nop 0")
        for i in range(4): a(f"v_mul_f32 v{52+i}, v{52+i}, v57")
        a(f"v_mov_b32 v9, {FW}\nds_write_b128 v9, v[52:55]\ns_waitcnt lgkmcnt(0)")
        l_nr = self.label("nored")
        a(f"s_cmp_lt_u32 s2, 80\ns_cbranch_scc0 {l_nr}")
        a("s_mul_i32 s62, s2, 205\ns_lshr_b32 s62, s62, 12\ns_mul_i32 s63, s62, 20\ns_sub_u32 s63, s2, s63")
        if self.f2:
            a("v_and_b32 v59, 7, v0\ns_mul_i32 s48, s62, 1280\ns_lshl_b32 s49, s63, 6\ns_add_u32 s48, s48, s49\nv_lshlrev_b32 v61, 3, v59")
            a("buffer_load_dwordx2 v[246:247], v61, s[8:11], s48 offen\ns_waitcnt vmcnt(0)")
            a("v_lshlrev_b32 v244, 16, v246\nv_and_b32 v245, 0xffff0000, v246\nv_lshlrev_b32 v246, 16, v247\nv_and_b32 v247, 0xffff0000, v247")
            a(f"{l_nr}:")
            return
        l, d = self.spin_head("zc", 48)
        a("buffer_load_dword v58, off, s[24:27], 0 offset:128 sc1\ns_waitcnt vmcnt(0)")
        a("v_cmp_gt_u32 vcc, 27, v58")
        a(f"s_cbranch_vccz {d}")
        a(f"s_sub_u32 s48, s48, 1\ns_cmp_lg_u32 s48, 0\ns_cbranch_scc1 {l}")
        a(f"{d}:")
        a("v_lshrrev_b32 v58, 3, v0\nv_and_b32 v59, 7, v0")
        a("v_mul_u32_u24 v60, 10240, v58\nv_lshlrev_b32 v61, 4, v59\nv_add_u32 v60, v60, v61")
        a(f"s_mul_i32 s48, s62, 2560\ns_lshl_b32 s49, s63, 7\ns_add_u32 s48, s48, s49\ns_add_u32 s48, s48, {Z_OFF}")
        for i in range(3):
            a(f"buffer_load_dwordx4 v[{224+4*i}:{227+4*i}], v60, s[20:23], s48 offen sc1")
            a(f"s_add_u32 s48, s48, {8*10240}")
        a("v_cmp_gt_u32 vcc, 3, v58\nv_mov_b32 v61, 0x7ffffff0\ns_nop 0\nv_cndmask_b32 v60, v61, v60, vcc")
        a("buffer_load_dwordx4 v[236:239], v60, s[20:23], s48 offen sc1")
        a("s_mul_i32 s48, s62, 1280\ns_lshl_b32 s49, s63, 6\ns_add_u32 s48, s48, s49\nv_lshlrev_b32 v61, 3, v59")
        a("buffer_load_dwordx2 v[246:247], v61, s[8:11], s48 offen")
        a("s_waitcnt vmcnt(0)")
        for j in range(4):
            a(f"v_add_f32 v{224+j}, v{224+j}, v{228+j}\nv_add_f32 v{232+j}, v{232+j}, v{236+j}\nv_add_f32 v{240+j}, v{224+j}, v{232+j}")
        self.reduce_hq(240, 4, 248)
        for j in range(4): self.rbf16(240 + j)
        a("v_lshlrev_b32 v244, 16, v246\nv_and_b32 v245, 0xffff0000, v246\nv_lshlrev_b32 v246, 16, v247\nv_and_b32 v247, 0xffff0000, v247")
        a(f"{l_nr}:")

    def final_reduce(self):
        a = self.a
        self.c("---- final sum over the 64 (head, half) rows for 32 output columns of one batch row ----")
        a("v_lshrrev_b32 v58, 3, v0\nv_and_b32 v59, 7, v0")
        a("v_mul_u32_u24 v60, 2560, v58\nv_lshlrev_b32 v61, 4, v59\nv_add_u32 v60, v60, v61")
        a(f"s_mul_i32 s48, s62, {64*2560}\ns_lshl_b32 s49, s63, 7\ns_add_u32 s48, s48, s49\ns_add_u32 s48, s48, {Y_OFF}")
        for i in range(1, 8): a(f"s_add_u32 s{48+i}, s{47+i}, {8*2560}")
        l, d = self.spin_head("y", 56)
        for i in range(8):
            a(f"buffer_load_dwordx4 v[{64+4*i}:{67+4*i}], v60, s[20:23], s{48+i} offen sc1")
        a("s_waitcnt vmcnt(0)")
        for st in (16, 8, 4):
            for i in range(0, st, 2):
                a(f"v_pk_add_f32 v[{64+i}:{65+i}], v[{64+i}:{65+i}], v[{64+st+i}:{65+st+i}]")
        a("v_add_f32 v68, v64, v65\nv_add_f32 v69, v66, v67\nv_add_f32 v68, v68, v69\nv_cmp_u_f32 vcc, v68, v68")
        a(f"s_cbranch_vccz {d}")
        a(f"s_sub_u32 s56, s56, 1\ns_cmp_lg_u32 s56, 0\ns_cbranch_scc1 {l}")
        a(f"{d}:")
        self.reduce_hq(64, 4, 68)
        if self.f2:
            for j in range(4): a(f"v_add_f32 v{64+j}, v{244+j}, v{64+j}")
        else:
            for j in range(4): self.rbf16(64 + j)
            for j in range(4): a(f"v_add_f32 v{64+j}, v{244+j}, v{64+j}")
            for j in range(4): self.rbf16(64 + j)
            for j in range(4): a(f"v_add_f32 v{64+j}, v{64+j}, v{240+j}")
        a("v_cvt_pk_bf16_f32 v64, v64, v65\nv_cvt_pk_bf16_f32 v65, v66, v67")
        a("s_mul_i32 s48, s62, 1280\ns_lshl_b32 s49, s63, 6\ns_add_u32 s48, s48, s49\nv_lshlrev_b32 v61, 3, v59")
        a("s_mov_b64 exec, 0xff")
        a("buffer_store_dwordx2 v[64:65], v61, s[28:31], s48 offen")
        a("s_mov_b64 exec, -1")

    def ffn1(self):
        a = self.a
        self.c("---- FFN stage 1: columns 64*(s2>>3).., rows 80*(s2&7).. ----")
        Wg, X, M2, A0, DG, DU, XA = 64, 144, 44, 20, 28, 32, 184
        self.srd(32, 76, 2211840); self.srd(36, 78, 2211840)
        a("v_mul_u32_u24 v11, 3456, v2\nv_lshlrev_b32 v12, 3, v1\nv_add_u32 v11, v11, v12")
        a("s_lshr_b32 s54, s2, 3\ns_and_b32 s55, s2, 7")
        a(f"s_lshl_b32 s48, s54, 7\ns_mul_i32 s49, s55, {80*3456}\ns_add_u32 s48, s48, s49")
        for u in range(20):
            a(f"buffer_load_dwordx2 v[{Wg+4*u}:{Wg+1+4*u}], v11, s[32:35], s48 offen nt")
            a(f"buffer_load_dwordx2 v[{Wg+2+4*u}:{Wg+3+4*u}], v11, s[36:39], s48 offen nt")
            if u < 19: a(f"s_add_u32 s48, s48, {4*3456}")
        a("v_lshlrev_b32 v8, 2, v1\nv_add_u32 v8, v8, v2\nv_lshlrev_b32 v8, 1, v8")
        a("s_mov_b32 s48, 0\ns_mov_b32 s49, 1280\ns_mov_b32 s50, 2560\ns_mov_b32 s51, 3840")
        for b in range(4):
            for r in range(10):
                a(f"buffer_load_ushort v{X+10*b+r}, v8, s[8:11], s{48+b} offen offset:{128*r}")
        self.const64(60, 0xAAAAAAAAAAAAAAAA)
        a("v_mov_b32 v52, 0xffff\nv_mov_b32 v53, 0xffff0000\nv_cndmask_b32_e64 v52, v52, v53, s[60:61]")
        for jj in range(2):
            self.const64(60, 0x3333333333333333 << (2 * jj))
            a(f"v_cndmask_b32_e64 v{M2+jj}, 0, v52, s[60:61]")
        a(f"v_mul_u32_u24 v9, 640, v2\nv_lshlrev_b32 v52, 2, v1\nv_add_u32 v9, v9, v52")
        for b in range(4):
            a(f"s_waitcnt vmcnt({30-10*b})")
            self.layernorm(X + 10 * b, 10, 52, 52)
            for r in range(10):
                a(f"ds_write_b32 v9, v{X+10*b+r} offset:{XNL+2560*b+64*r}")
        a("v_lshrrev_b32 v9, 2, v1\nv_lshlrev_b32 v9, 2, v9\nv_add_u32 v9, v9, v2\nv_mul_u32_u24 v10, 640, v9")
        a(f"s_mul_i32 s48, s55, 80\ns_add_u32 s48, s48, {XNL}\nv_add_u32 v10, s48, v10")
        a("s_waitcnt lgkmcnt(0)")
        for i in range(5): a(f"ds_read_b128 v[{XA+4*i}:{XA+3+4*i}], v10 offset:{16*i}")
        a("s_waitcnt lgkmcnt(0)")
        for u in range(20):
            A = A0 + 2 * (u & 1)
            for jj in range(2): a(f"v_and_b32 v{A+jj}, v{XA+u}, v{M2+jj}")
            a("s_nop 1")
            cg = "0" if u == 0 else f"v[{DG}:{DG+3}]"
            cu = "0" if u == 0 else f"v[{DU}:{DU+3}]"
            a(f"v_mfma_f32_16x16x16_bf16 v[{DG}:{DG+3}], v[{A}:{A+1}], v[{Wg+4*u}:{Wg+1+4*u}], {cg}")
            a(f"v_mfma_f32_16x16x16_bf16 v[{DU}:{DU+3}], v[{A}:{A+1}], v[{Wg+2+4*u}:{Wg+3+4*u}], {cu}")
        a("v_mul_u32_u24 v12, 6912, v2\nv_lshlrev_b32 v13, 4, v1\nv_add_u32 v12, v12, v13")
        a(f"s_mul_i32 s48, s55, {2*27648}\ns_lshl_b32 s49, s54, 8\ns_add_u32 s48, s48, s49\ns_add_u32 s48, s48, {P_OFF}\ns_add_u32 s49, s48, 27648")
        a("s_nop 7")
        a(f"buffer_store_dwordx4 v[{DG}:{DG+3}], v12, s[20:23], s48 offen sc1")
        a(f"buffer_store_dwordx4 v[{DU}:{DU+3}], v12, s[20:23], s49 offen sc1")
        a("s_waitcnt vmcnt(0)\nv_mov_b32 v52, 1\ns_mov_b64 exec, 1")
        a("buffer_atomic_add v52, off, s[24:27], 0 offset:128 sc1")
        a("s_mov_b64 exec, -1")

    def ffn2(self):
        a = self.a
        MK, A0, YA, T = 4, 20, 32, 224
        self.c("---- FFN stage 2: hidden columns 27*(2h+half).. of batch row b ----")
        self.srd(40, 80, 2211840)
        l, d = self.spin_head("zc", 48)
        a("buffer_load_dword v58, off, s[24:27], 0 offset:128 sc1\ns_waitcnt vmcnt(0)")
        a("v_cmp_gt_u32 vcc, 216, v58")
        a(f"s_cbranch_vccz {d}")
        a(f"s_sub_u32 s48, s48, 1\ns_cmp_lg_u32 s48, 0\ns_cbranch_scc1 {l}")
        a(f"{d}:")
        a("s_lshl_b32 s54, s45, 1\ns_add_u32 s54, s54, s46\ns_mul_i32 s54, s54, 27")
        a("v_lshrrev_b32 v58, 2, v0\nv_mul_u32_u24 v58, 27648, v58\nv_and_b32 v59, 3, v0\nv_lshlrev_b32 v60, 5, v59\nv_add_u32 v58, v58, v60")
        a(f"s_mul_i32 s48, s44, 6912\ns_lshl_b32 s49, s54, 2\ns_add_u32 s48, s48, s49\ns_add_u32 s48, s48, {P_OFF}")
        a(f"buffer_load_dwordx4 v[{T}:{T+3}], v58, s[20:23], s48 offen sc1")
        a(f"buffer_load_dwordx4 v[{T+4}:{T+7}], v58, s[20:23], s48 offen offset:16 sc1")
        a("s_waitcnt vmcnt(0)")
        self.reduce_hq(T, 8, T + 8)
        for j in range(8): self.rbf16(T + j)
        a("s_nop 1")
        for j in range(8): a(f"v_mov_b32_dpp v{T+8+j}, v{T+j} row_ror:12 row_mask:0xf bank_mask:0xf")
        for j in range(8):
            a(f"v_max_f32 v{T+j}, 0, v{T+j}\nv_mul_f32 v{T+j}, v{T+j}, v{T+8+j}\nv_cvt_pk_bf16_f32 v{T+j}, v{T+j}, v{T+j}")
        a("v_cmp_gt_u32 vcc, 3, v59\ns_nop 1")
        for j in range(3, 8): a(f"v_cndmask_b32 v{T+j}, 0, v{T+j}, vcc")
        a(f"v_add_u32 v60, {HL}, v60\ns_mov_b64 exec, 15")
        a(f"ds_write_b128 v60, v[{T}:{T+3}]\nds_write_b128 v60, v[{T+4}:{T+7}] offset:16")
        a("s_mov_b64 exec, -1\ns_waitcnt lgkmcnt(0)")
        a(f"v_and_b32 v60, 7, v1\nv_lshlrev_b32 v60, 2, v60\nv_add_u32 v60, v60, v2\nv_lshlrev_b32 v60, 2, v60\nv_add_u32 v60, {HL}, v60")
        a("ds_read_b32 v61, v60")
        a("v_mul_u32_u24 v58, 1280, v2\nv_lshlrev_b32 v59, 4, v1\nv_add_u32 v58, v58, v59")
        a("s_mul_i32 s48, s54, 1280")
        for i in range(7):
            for cb in range(5):
                a(f"buffer_load_dwordx4 v[{T+4*cb}:{T+3+4*cb}], v58, s[40:43], s48 offen offset:{256*cb} nt")
            if i < 6: a(f"s_add_u32 s48, s48, {4*1280}")
            if i == 0: a("s_waitcnt lgkmcnt(0)")
            for jj in range(4):
                a(f"v_and_b32_dpp v{A0+4*(i&1)+jj}, v61, v{MK+jj} row_newbcast:{i} row_mask:0xf bank_mask:0xf")
            A = A0 + 4 * (i & 1)
            a("s_nop 1")
            for cb in range(5):
                acc = YA + 4 * cb
                cin = "0" if i == 0 else f"v[{acc}:{acc+3}]"
                a(f"s_waitcnt vmcnt({4-cb})")
                a(f"v_mfma_f32_16x16x32_bf16 v[{acc}:{acc+3}], v[{A}:{A+3}], v[{T+4*cb}:{T+3+4*cb}], {cin}")
            a("s_nop 7")

    def ffn(self):
        a = self.a
        self.c("---- FFN unit s2: 64 hidden columns for all four rows ----")
        X, M2, A0, DG, DU = 64, 44, 20, 28, 32
        self.srd(32, 76, 2211840); self.srd(36, 78, 2211840); self.srd(40, 80, 2211840)
        a("v_lshlrev_b32 v8, 2, v1\nv_add_u32 v8, v8, v2\nv_lshlrev_b32 v8, 1, v8")
        a("s_mov_b32 s48, 0\ns_mov_b32 s49, 1280\ns_mov_b32 s50, 2560\ns_mov_b32 s51, 3840")
        for b in range(4):
            for r in range(10):
                a(f"buffer_load_ushort v{X+10*b+r}, v8, s[8:11], s{48+b} offen offset:{128*r}")
        self.const64(60, 0xAAAAAAAAAAAAAAAA)
        a("v_mov_b32 v52, 0xffff\nv_mov_b32 v53, 0xffff0000\nv_cndmask_b32_e64 v52, v52, v53, s[60:61]")
        for jj in range(2):
            self.const64(60, 0x3333333333333333 << (2 * jj))
            a(f"v_cndmask_b32_e64 v{M2+jj}, 0, v52, s[60:61]")
        a(f"v_mul_u32_u24 v9, 640, v2\nv_lshlrev_b32 v52, 2, v1\nv_add_u32 v9, v9, v52")
        for b in range(4):
            a(f"s_waitcnt vmcnt({30-10*b})")
            self.layernorm(X + 10 * b, 10, 52, 52)
            for r in range(10):
                a(f"ds_write_b32 v9, v{X+10*b+r} offset:{XNL+2560*b+64*r}")
        a("v_lshrrev_b32 v9, 2, v1\nv_lshlrev_b32 v9, 2, v9\nv_add_u32 v9, v9, v2\nv_mul_u32_u24 v10, 640, v9")
        a(f"v_add_u32 v10, {XNL}, v10")
        a("v_mul_u32_u24 v11, 3456, v2\nv_lshlrev_b32 v12, 3, v1\nv_add_u32 v11, v11, v12")
        a("s_lshl_b32 s48, s2, 7")
        GUSTEP = 4 * 3456
        if self.ffn_exp == 2:
            a("v_lshlrev_b32 v11, 3, v0\ns_mul_i32 s48, s2, 81920")
            GUSTEP = 512
        G = self.ffn_gu
        def issue(u):
            u %= G
            a(f"buffer_load_dwordx2 v[{64+4*u}:{65+4*u}], v11, s[32:35], s48 offen nt")
            a(f"buffer_load_dwordx2 v[{66+4*u}:{67+4*u}], v11, s[36:39], s48 offen nt")
            a(f"s_add_u32 s48, s48, {GUSTEP}")
        a("s_waitcnt lgkmcnt(0)")
        for u in range(G): issue(u)
        for j in range(8): a(f"v_mov_b32 v{DG+j}, 0")
        def rnd(last):
            for i in range(4): a(f"ds_read_b128 v[{128+4*i}:{131+4*i}], v10 offset:{16*i}")
            a("v_add_u32 v10, 64, v10\ns_waitcnt lgkmcnt(0)")
            for u in range(16):
                A = A0 + 2 * (u & 1)
                r = 64 + 4 * (u % G)
                for jj in range(2): a(f"v_and_b32 v{A+jj}, v{128+u}, v{M2+jj}")
                a(f"s_waitcnt vmcnt({2*(G-1) if not last else 2*min(G-1, 15-u)})\ns_nop 0")
                if self.ffn_exp != 1:
                    a(f"v_mfma_f32_16x16x16_bf16 v[{DG}:{DG+3}], v[{A}:{A+1}], v[{r}:{r+1}], v[{DG}:{DG+3}]")
                    a(f"v_mfma_f32_16x16x16_bf16 v[{DU}:{DU+3}], v[{A}:{A+1}], v[{r+2}:{r+3}], v[{DU}:{DU+3}]")
                if not last or u + G < 16: issue(u)
        a("s_mov_b32 s49, 9")
        lp = self.label("gu")
        a(f"{lp}:")
        rnd(False)
        a(f"s_sub_u32 s49, s49, 1\ns_cmp_lg_u32 s49, 0\ns_cbranch_scc1 {lp}")
        rnd(True)
        DN = self.ffn_dn
        a("v_mul_u32_u24 v11, 1280, v2\nv_lshlrev_b32 v12, 3, v1\nv_add_u32 v11, v11, v12")
        a(f"s_mul_i32 s48, s2, {64*1280}")
        def issue2(u2):
            for cb in range(10):
                r = 64 + 2 * (10 * (u2 % DN) + cb)
                a(f"buffer_load_dwordx2 v[{r}:{r+1}], v11, s[40:43], s48 offen offset:{128*cb} nt")
            a(f"s_add_u32 s48, s48, {4*1280}")
        a("s_nop 7")
        for j in range(8): self.rbf16(DG + j)
        for uu in range(DN): issue2(uu)
        for j in range(4):
            a(f"v_max_f32 v{DG+j}, 0, v{DG+j}\nv_mul_f32 v{DG+j}, v{DG+j}, v{DU+j}\nv_cvt_pk_bf16_f32 v{DG+j}, v{DG+j}, v{DG+j}")
        a("v_lshlrev_b32 v12, 8, v2\nv_lshlrev_b32 v13, 2, v1\nv_add_u32 v12, v12, v13")
        for j in range(4): a(f"ds_write_b32 v12, v{DG+j} offset:{HL+64*j}")
        a(f"s_waitcnt lgkmcnt(0)\nv_lshlrev_b32 v12, 6, v9\nv_add_u32 v12, {HL}, v12")
        for i in range(4): a(f"ds_read_b128 v[{208+4*i}:{211+4*i}], v12 offset:{16*i}")
        for j in range(40): a(f"v_mov_b32 v{144+j}, 0")
        a("s_waitcnt lgkmcnt(0)")
        for u2 in range(16):
            A = A0 + 2 * (u2 & 1)
            for jj in range(2): a(f"v_and_b32 v{A+jj}, v{208+u2}, v{M2+jj}")
            for cb in range(10):
                r = 64 + 2 * (10 * (u2 % DN) + cb)
                left = (9 - cb) + 10 * (min(u2 + DN - 1, 15) - u2)
                a(f"s_waitcnt vmcnt({left})")
                if cb == 0: a("s_nop 0")
                a(f"v_mfma_f32_16x16x16_bf16 v[{144+4*cb}:{147+4*cb}], v[{A}:{A+1}], v[{r}:{r+1}], v[{144+4*cb}:{147+4*cb}]")
            if u2 + DN < 16: issue2(u2)
        a("v_mul_u32_u24 v12, 2560, v2\nv_lshlrev_b32 v13, 4, v1\nv_add_u32 v12, v12, v13")
        a(f"s_mul_i32 s48, s2, 10240\ns_add_u32 s48, s48, {Z_OFF}\ns_nop 7")
        for cb in range(10):
            a(f"buffer_store_dwordx4 v[{144+4*cb}:{147+4*cb}], v12, s[20:23], s48 offen offset:{256*cb} sc1")
        a("s_waitcnt vmcnt(0)\nv_mov_b32 v52, 1\ns_mov_b64 exec, 1")
        a("buffer_atomic_add v52, off, s[24:27], 0 offset:128 sc1")
        a("s_mov_b64 exec, -1")

    def build(self):
        a = self.a
        a("s_cmp_ge_u32 s2, 256\ns_cbranch_scc1 L_exit")
        a("s_load_dwordx16 s[64:79], s[0:1], 0\ns_load_dwordx8 s[80:87], s[0:1], 64")
        a("v_lshrrev_b32 v1, 6, v0\nv_and_b32 v0, 63, v0\nv_readfirstlane_b32 s3, v1")
        if self.stamps:
            for k in range(8): a(f"s_mov_b32 s{88+k}, 0")
        a("s_and_b32 s40, s2, 7\ns_lshr_b32 s41, s2, 3")
        if self.mapping == "m4":
            a("s_lshr_b32 s43, s41, 1\ns_and_b32 s43, s43, 3\ns_lshl_b32 s45, s43, 3\ns_add_u32 s45, s45, s40")
            a("s_lshr_b32 s44, s41, 3\ns_and_b32 s46, s41, 1")
        elif self.mapping == "m3":
            a("s_and_b32 s43, s41, 3\ns_lshl_b32 s45, s43, 3\ns_add_u32 s45, s45, s40")
            a("s_lshr_b32 s44, s41, 2\ns_and_b32 s44, s44, 3\ns_lshr_b32 s46, s41, 4")
        elif self.mapping == "n":
            a("s_and_b32 s46, s2, 1\ns_lshr_b32 s45, s2, 1\ns_and_b32 s45, s45, 31\ns_lshr_b32 s44, s2, 6")
        a("s_lshl_b32 s47, s44, 5\ns_add_u32 s47, s47, s45\ns_lshl_b32 s47, s47, 1\ns_add_u32 s47, s47, s46")
        a("s_cmp_ge_u32 s3, 4\ns_cbranch_scc1 L_helper")
        if self.Rsplit:
            a("s_cmp_eq_u32 s46, 0\ns_cbranch_scc0 L_streamB")
            self.R = self.Rsplit[0]; self.stream()
            a("L_streamB:")
            self.R = self.Rsplit[1]; self.stream()
        else:
            self.stream()
        a("L_helper:")
        self.helper()
        a("L_exit:\ns_endpgm")
        return "\n".join(self.L)

HEADER = open("parallel_sum__gqa_block_cached__glu_gated_reglu__decode.s.ref").read().split("; Override launch")[0]

def full_source(g, nfv=256):
    body = g.build()
    s = HEADER
    s += "; Override launch geometry by editing the next line (default: block=256,\n"
    s += f"; @launch grid=(256,1,1) block=(512,1,1) lds={LDS_SIZE}\n"
    s += f""".amdgcn_target "amdgcn-amd-amdhsa--gfx950"
.text
.globl {NAME}
.p2align 8
.type {NAME},@function
{NAME}:
{body}
.section .rodata,"a"
.p2align 6
.amdhsa_kernel {NAME}
  .amdhsa_next_free_vgpr {nfv}
  .amdhsa_next_free_sgpr 102
  .amdhsa_accum_offset 256
  .amdhsa_group_segment_fixed_size 0
  .amdhsa_kernarg_size 96
  .amdhsa_user_sgpr_count 2
  .amdhsa_user_sgpr_kernarg_segment_ptr 1
  .amdhsa_system_sgpr_workgroup_id_x 1
.end_amdhsa_kernel
"""
    return s

if __name__ == "__main__":
    import argparse
    p = argparse.ArgumentParser()
    p.add_argument("-R", type=int, default=5); p.add_argument("--PG", type=int, default=1)
    p.add_argument("--stamps", action="store_true"); p.add_argument("--map", default="m4")
    p.add_argument("-o", default="/dev/stdout")
    x = p.parse_args()
    g = Gen(R=x.R, PG=x.PG, stamps=x.stamps, mapping=x.map)
    open(x.o, "w").write(full_source(g))
```

```python
import struct, sys
NAME = "parallel_sum__gqa_block_cached__glu_gated_reglu__decode_kernel"

def f2h(x):
    return "0x%08x" % struct.unpack("<I", struct.pack("<f", x))[0]

LOG2E = f2h(1.4426950408889634)
SCALE = f2h(128 ** -0.5)
INV640 = f2h(1.0 / 640.0)
EPS = f2h(1e-5)

QP, MW, FW, OP, YP, SC, XNL, HL, LDS_SIZE = 0, 2048, 2064, 4096, 6144, 16384, 32768, 43008, 45056
Y_OFF, ML_OFF, Z_OFF, PS_OFF = 0x100000, 0x1A0000, 0x1B0000, 0x280000
GL_OFF = 0x40000
P_OFF = Z_OFF
PRG, MODE = 3072, 2304
SPIN_MAX = 200000

class Gen:
    def __init__(self, R=5, PG=1, stamps=False, mapping="m4", sleep=True, b0=True, rot=True, pre=0, wo_win=2, ffn_gu=8, ffn_dn=2, skip_wo=False, skip_ffn=False, wo_flags='nt', wo_rot=False, wq_flags='', early=False, ffn_exp=0, Rsplit=None, ctl=False, Rlo=5, Rhi=8, csh=11, cbias=1024, pstep=4, cthr=896, cloc=True, mld='nt', mst='', f2=False, dbgst=False, kst=None, vst=None, splitx=False, gx=0, gsh=0, xclr=0, xzc=0, clw='w4', psp=0, flag='at'):
        self.xclr, self.xzc = xclr, xzc
        self.clw, self.psp, self.flag = clw, psp, flag
        self.gx, self.gsh = gx, gsh
        self.splitx = splitx
        self.kst, self.vst = kst, vst
        self.f2 = f2
        self.dbgst = dbgst
        if dbgst: stamps = True
        self.cloc, self.mld, self.mst = cloc, mld, mst
        self.Rsplit = Rsplit
        self.ctl, self.Rlo, self.Rhi, self.csh, self.cbias, self.pstep, self.cthr = ctl, Rlo, Rhi, csh, cbias, pstep, cthr
        self.R, self.PG, self.stamps, self.mapping, self.sleep = R, PG, stamps, mapping, sleep
        self.skip_wo, self.skip_ffn, self.wo_flags, self.wo_rot = skip_wo, skip_ffn, wo_flags, wo_rot
        self.wq_flags, self.early, self.ffn_exp = wq_flags, early, ffn_exp
        self.b0, self.rot, self.pre, self.wo_win, self.ffn_gu, self.ffn_dn = b0, rot, pre, wo_win, ffn_gu, ffn_dn
        self.L = []
        self.uid = 0
        self.block = 512
        self.lds = LDS_SIZE
    def a(self, s):
        for line in s.split("\n"):
            line = line.strip()
            if line: self.L.append("    " + line if not line.endswith(":") else line)
    def c(self, s):
        self.L.append("    ; " + s)
    def label(self, p):
        self.uid += 1
        return f"L_{p}_{self.uid}"
    def stamp(self, k):
        if self.stamps:
            self.a(f"s_memrealtime s[98:99]\ns_waitcnt lgkmcnt(0)\ns_mov_b32 s{88+k}, s98")
    def stamp_flush(self, role="s"):
        if not self.stamps: return
        a = self.a
        if self.dbgst:
            skip = self.label("nodbg")
            a(f"s_and_b32 s56, s3, 3\ns_cmp_eq_u32 s56, 0\ns_cbranch_scc0 {skip}")
            if role == "s": a(f"s_lshr_b32 s56, s2, 3\ns_and_b32 s56, s56, 3\ns_cmp_eq_u32 s56, 0\ns_cbranch_scc0 {skip}")
            else: a(f"s_cmp_lt_u32 s2, 80\ns_cbranch_scc0 {skip}")
            a("s_mov_b32 s56, s84\ns_mov_b32 s57, s85\ns_mov_b32 s58, 256\ns_mov_b32 s59, 0x20000")
            a("s_mov_b64 exec, 1")
            def at(op, word, sreg, inv=False, low=False):
                a(f"v_mov_b32 v251, s{sreg}")
                if inv: a("v_not_b32 v251, v251")
                if low: a("v_and_b32 v251, 0xfffff, v251")
                a(f"buffer_atomic_{op} v251, off, s[56:59], 0 offset:{4*word} sc1\ns_nop 1")
            at("umax", 1, 96, inv=True); at("umax", 2, 96)
            if role == "s":
                at("umax", 3, 89, inv=True); at("umax", 4, 89); at("umax", 5, 90, inv=True); at("umax", 6, 90)
                at("umax", 7, 91, inv=True); at("umax", 8, 91); at("add", 11, 91, low=True); at("add", 12, 90, low=True)
            else:
                at("umax", 9, 93); at("umax", 10, 92); at("umax", 13, 88, inv=True); at("umax", 14, 88)
            a("s_mov_b64 exec, -1")
            a(f"{skip}:")
            return
        a("s_mov_b32 s56, s86\ns_mov_b32 s57, s87\ns_mov_b32 s58, 0x100000\ns_mov_b32 s59, 0x20000")
        a("s_lshl_b32 s60, s2, 3\ns_add_u32 s60, s60, s3\ns_lshl_b32 s60, s60, 6")
        a("s_mov_b64 exec, 1")
        a("v_mov_b32 v250, 0\ns_mov_b32 s95, s96")
        for k in range(8):
            a(f"v_mov_b32 v251, s{88+k}")
            a(f"buffer_store_dword v251, v250, s[56:59], s60 offen offset:{4*k}")
            a("s_nop 1")
        a("s_mov_b64 exec, -1")

    def srd(self, base, ptr, nrec):
        self.a(f"s_mov_b32 s{base}, s{ptr}\ns_mov_b32 s{base+1}, s{ptr+1}\ns_mov_b32 s{base+2}, {hex(nrec)}\ns_mov_b32 s{base+3}, 0x20000")
    def const64(self, sreg, val):
        self.a(f"s_mov_b32 s{sreg}, {hex(val & 0xffffffff)}\ns_mov_b32 s{sreg+1}, {hex(val >> 32)}")
    def masks16x32(self, m0, tmp):
        a = self.a
        self.const64(60, 0xAAAAAAAAAAAAAAAA)
        a(f"v_mov_b32 v{tmp}, 0xffff\nv_mov_b32 v{tmp+1}, 0xffff0000")
        a(f"v_cndmask_b32_e64 v{tmp}, v{tmp}, v{tmp+1}, s[60:61]")
        for jj in range(4):
            self.const64(60, 0x0303030303030303 << (2 * jj))
            a(f"v_cndmask_b32_e64 v{m0+jj}, 0, v{tmp}, s[60:61]")
    def wave_reduce(self, v, op, sdst):
        a = self.a
        for r in (8, 4, 2, 1):
            a(f"{op}_dpp v{v}, v{v}, v{v} row_ror:{r} row_mask:0xf bank_mask:0xf\ns_nop 1")
        a(f"{op}_dpp v{v}, v{v}, v{v} row_bcast:15 row_mask:0xa bank_mask:0xf\ns_nop 1")
        a(f"{op}_dpp v{v}, v{v}, v{v} row_bcast:31 row_mask:0xc bank_mask:0xf\ns_nop 1")
        a(f"v_readlane_b32 s{sdst}, v{v}, 63\ns_nop 1")
    def rbf16(self, v):
        self.a(f"v_cvt_pk_bf16_f32 v{v}, v{v}, v{v}\nv_and_b32 v{v}, 0xffff0000, v{v}")
    def layernorm(self, xr, n_out, t0, s0):
        a = self.a
        for r in range(10): a(f"v_lshlrev_b32 v{xr+r}, 16, v{xr+r}")
        a(f"v_add_f32 v{t0}, v{xr}, v{xr+1}\nv_add_f32 v{t0+1}, v{xr+2}, v{xr+3}")
        for r in range(4, 10, 2):
            a(f"v_add_f32 v{t0}, v{t0}, v{xr+r}\nv_add_f32 v{t0+1}, v{t0+1}, v{xr+r+1}")
        a(f"v_add_f32 v{t0}, v{t0}, v{t0+1}\ns_nop 1")
        self.wave_reduce(t0, "v_add_f32", s0)
        a(f"v_mov_b32 v{t0}, {INV640}\nv_mul_f32 v{t0}, s{s0}, v{t0}")
        a(f"v_sub_f32 v{t0+1}, v{xr}, v{t0}\nv_mul_f32 v{t0+2}, v{t0+1}, v{t0+1}")
        for r in range(1, 10):
            a(f"v_sub_f32 v{t0+1}, v{xr+r}, v{t0}\nv_fmac_f32 v{t0+2}, v{t0+1}, v{t0+1}")
        a("s_nop 1")
        self.wave_reduce(t0 + 2, "v_add_f32", s0 + 1)
        a(f"v_mov_b32 v{t0+2}, {INV640}\nv_mul_f32 v{t0+2}, s{s0+1}, v{t0+2}")
        self.rbf16(t0); self.rbf16(t0 + 2)
        a(f"v_add_f32 v{t0+2}, {EPS}, v{t0+2}")
        self.rbf16(t0 + 2)
        a(f"v_sqrt_f32 v{t0+2}, v{t0+2}\ns_nop 0")
        self.rbf16(t0 + 2)
        a(f"v_rcp_f32 v{t0+2}, v{t0+2}\ns_nop 0")
        for r in range(n_out):
            a(f"v_sub_f32 v{xr+r}, v{xr+r}, v{t0}")
            self.rbf16(xr + r)
            a(f"v_mul_f32 v{xr+r}, v{xr+r}, v{t0+2}")
            a(f"v_cvt_pk_bf16_f32 v{xr+r}, v{xr+r}, v{xr+r}")
    def spin_head(self, name, scnt):
        l = self.label(name); d = self.label(name + "_done")
        self.a(f"s_mov_b32 s{scnt}, {SPIN_MAX}\n{l}:")
        return l, d
    def reduce_hq(self, v0, n, t):
        a = self.a
        a("s_nop 1")
        for i in range(n): a(f"v_add_f32_dpp v{v0+i}, v{v0+i}, v{v0+i} row_ror:8 row_mask:0xf bank_mask:0xf")
        for sw in ("v_permlane16_swap_b32", "v_permlane32_swap_b32"):
            for i in range(n): a(f"v_mov_b32 v{t+i}, v{v0+i}")
            a("s_nop 1")
            for i in range(n): a(f"{sw} v{t+i}, v{v0+i}")
            a("s_nop 1")
            for i in range(n): a(f"v_add_f32 v{v0+i}, v{v0+i}, v{t+i}")

    def stream(self):
        a, R, PG = self.a, self.R, self.PG
        vK, vV, vSW, vSR, vMax, vS, vT0, vT1, vP, vSn, vE = 1, 2, 3, 4, 5, 6, 7, 8, 9, 10, 11
        MK, AQ, D, ACC, PA = 12, 16, 32, 40, 44
        RING = 64
        TQ = 192
        self.c("==== streaming waves (0..3): K then V of this workgroup's 4096 keys ====")
        a(f"v_and_b32 v7, 15, v0\nv_lshrrev_b32 v8, 4, v0")
        a(f"v_lshrrev_b32 v9, 2, v7\nv_lshlrev_b32 v{vK}, 8, v9")
        a(f"v_lshlrev_b32 v10, 6, v8\nv_or_b32 v{vK}, v{vK}, v10")
        a(f"v_and_b32 v10, 3, v7\nv_lshlrev_b32 v10, 4, v10\nv_or_b32 v{vK}, v{vK}, v10")
        a(f"v_lshlrev_b32 v{vV}, 4, v0")
        a("s_lshl_b32 s16, s47, 20\ns_lshl_b32 s17, s3, 12\ns_add_u32 s16, s16, s17\ns_mov_b32 s17, s16")
        a("s_waitcnt lgkmcnt(0)")
        self.stamp(6)
        self.srd(8, 66, 0x10000000)
        self.srd(12, 68, 0x10000000)
        if self.ctl: a("s_add_u32 s14, s47, 1\ns_lshl_b32 s14, s14, 20")
        if self.clw == 's':
            self.srd(24, 86, 0x40000000)
            l3, ld = self.label("clr3"), self.label("clrd")
            a("v_mov_b32 v56, -1\nv_mov_b32 v57, -1\nv_mov_b32 v58, -1\nv_mov_b32 v59, -1\nv_lshlrev_b32 v60, 4, v0")
            a(f"s_cmp_eq_u32 s3, 3\ns_cbranch_scc1 {l3}")
            a(f"s_mul_i32 s48, s47, 2560\ns_add_u32 s48, s48, {Y_OFF}\ns_lshl_b32 s49, s3, 10\ns_add_u32 s48, s48, s49")
            a("s_cmp_eq_u32 s3, 2\ns_cselect_b32 exec_hi, 0, -1")
            a("buffer_store_dwordx4 v[56:59], v60, s[24:27], s48 offen sc1")
            a(f"s_mov_b64 exec, -1\ns_branch {ld}")
            a(f"{l3}:")
            a(f"s_lshl_b32 s48, s47, 7\ns_add_u32 s48, s48, {ML_OFF}\ns_mov_b64 exec, 1")
            a("buffer_store_dwordx2 v[56:57], v60, s[24:27], s48 offen sc1")
            if self.ctl:
                self.slot_addr(49, 50)
                a(f"v_mov_b32 v58, 0\nbuffer_store_dword v58, v60, s[24:27], s49 offen {'' if self.psp else 'sc1'}")
            a("s_mov_b64 exec, -1")
            a(f"{ld}:")
            if self.pre == 0: a("s_waitcnt vmcnt(0)")
        st = {"issued": 0}
        def slot(n):
            if n < 16 * PG: return RING + 4 * n
            return RING + 4 * (n % 16)
        def issue(n):
            t = n & 3
            if n < 256:
                a(f"buffer_load_dwordx4 v[{slot(n)}:{slot(n)+3}], v{vK}, s[8:11], s16 offen offset:{t*1024} nt")
                if t == 3: a("s_add_u32 s16, s16, 0x4000")
            else:
                a(f"buffer_load_dwordx4 v[{slot(n)}:{slot(n)+3}], v{vV}, s[12:15], s17 offen offset:{t*1024} nt")
                if t == 3: a("s_add_u32 s17, s17, 0x4000")
        for n in range(16 * PG):
            if self.b0 and n == self.pre:
                if self.clw == 's' and self.pre: a(f"s_waitcnt vmcnt({self.pre})")
                a("s_barrier")
            issue(n)
        self.stamp(0)
        self.masks16x32(MK, 7)
        self.const64(48, 0x2222222222222222); self.const64(50, 0x4444444444444444); self.const64(52, 0x8888888888888888)
        a("v_and_b32 v7, 15, v0\nv_lshrrev_b32 v8, 4, v0\nv_lshrrev_b32 v9, 2, v7\nv_and_b32 v10, 3, v7")
        a(f"v_lshlrev_b32 v9, 4, v9\nv_lshlrev_b32 v{vSW}, 2, v8\nv_add_u32 v{vSW}, v{vSW}, v9\nv_add_u32 v{vSW}, v{vSW}, v10")
        a(f"v_lshlrev_b32 v{vSW}, 2, v{vSW}")
        a(f"s_lshl_b32 s18, s3, 12\ns_add_u32 s18, s18, {SC}")
        a(f"v_add_u32 v{vSW}, s18, v{vSW}")
        a(f"v_lshlrev_b32 v{vSR}, 2, v0\nv_add_u32 v{vSR}, s18, v{vSR}")
        a(f"v_mov_b32 v{vMax}, 0xff800000")
        a(f"v_lshlrev_b32 v9, 2, v8\nv_add_u32 v9, v9, v10\nv_lshlrev_b32 v9, 5, v9")
        vProg, vPA, vMode, vMA = 52, 53, 54, 55
        if self.ctl:
            a(f"s_lshl_b32 s21, s3, 8\ns_add_u32 s21, s21, {PRG}\nv_lshlrev_b32 v{vPA}, 2, v0\nv_add_u32 v{vPA}, s21, v{vPA}")
            a(f"s_lshl_b32 s21, s3, 2\ns_add_u32 s21, s21, {MODE}\nv_mov_b32 v{vMA}, s21")
            a(f"v_mov_b32 v{vProg}, 0\nv_mov_b32 v{vMode}, {R}")
            a(f"ds_write_b32 v{vPA}, v{vProg}\nds_write_b32 v{vMA}, v{vMode}\ns_waitcnt lgkmcnt(0)")
        a("s_barrier")
        for hw in range(4):
            a(f"ds_read_b128 v[{TQ+8*hw}:{TQ+8*hw+3}], v9 offset:{QP+512*hw}")
            a(f"ds_read_b128 v[{TQ+8*hw+4}:{TQ+8*hw+7}], v9 offset:{QP+512*hw+16}")
        a("s_waitcnt lgkmcnt(0)")
        for j in range(8): a(f"v_add_f32 v{TQ+j}, v{TQ+j}, v{TQ+8+j}\nv_add_f32 v{TQ+16+j}, v{TQ+16+j}, v{TQ+24+j}")
        for j in range(8): a(f"v_add_f32 v{TQ+j}, v{TQ+j}, v{TQ+16+j}")
        for jj in range(4): a(f"v_cvt_pk_bf16_f32 v{TQ+8+jj}, v{TQ+2*jj}, v{TQ+2*jj+1}")
        for t in range(4):
            self.const64(60, 0x000F000F000F000F << (4 * t))
            for jj in range(4): a(f"v_cndmask_b32_e64 v{AQ+4*t+jj}, 0, v{TQ+8+jj}, s[60:61]")
        a("s_nop 1")
        self.stamp(1)

        issued = [16 * PG]
        def kgroup(G, mode):
            for s in range(16):
                n = 16 * G + s
                tau, t = s >> 2, s & 3
                a(f"s_waitcnt vmcnt({issued[0]-1-n})")
                cin = "0" if t == 0 else f"v[{D}:{D+3}]"
                mf = f"v_mfma_f32_16x16x32_bf16 v[{D}:{D+3}], v[{AQ+4*t}:{AQ+4*t+3}], v[{slot(n)}:{slot(n)+3}], {cin}"
                nxt = None
                if n < 16 * PG:
                    if n < R: nxt = 16 * PG + n
                else:
                    nxt = n + R
                early = self.early and nxt is not None and slot(nxt) != slot(n)
                if not early: a(mf)
                if nxt is not None:
                    assert nxt == issued[0], (n, nxt, issued)
                    issue(nxt); issued[0] += 1
                if early: a(mf)
                if t == 3:
                    a("s_nop 7")
                    a(f"v_mov_b32_dpp v{vT0}, v{D} quad_perm:[0,0,0,0] row_mask:0xf bank_mask:0xf")
                    a(f"v_mov_b32_dpp v{vT1}, v{D+2} quad_perm:[2,2,2,2] row_mask:0xf bank_mask:0xf")
                    a("s_nop 0")
                    a(f"v_add_f32_dpp v{vT0}, v{D+1}, v{vT0} quad_perm:[1,1,1,1] row_mask:0xf bank_mask:0xf")
                    a(f"v_add_f32_dpp v{vT1}, v{D+3}, v{vT1} quad_perm:[3,3,3,3] row_mask:0xf bank_mask:0xf")
                    if tau == 0:
                        a(f"v_add_f32 v{vS}, v{vT0}, v{vT1}")
                    else:
                        a(f"v_add_f32 v{vT0}, v{vT0}, v{vT1}")
                        a(f"v_cndmask_b32_e64 v{vS}, v{vS}, v{vT0}, s[{46+2*tau}:{47+2*tau}]")
            self.rbf16(vS)
            a(f"v_mul_f32 v{vS}, {SCALE}, v{vS}")
            self.rbf16(vS)
            a(f"v_max_f32 v{vMax}, v{vMax}, v{vS}")
            a(f"ds_write_b32 v{vSW}, v{vS}")
            a(f"v_add_u32 v{vSW}, 0x100, v{vSW}")
        for G in range(PG): kgroup(G, "first")
        a(f"s_mov_b32 s19, {15-PG}")
        lk = self.label("K")
        a(f"{lk}:")
        save = issued[0]
        kgroup(PG, "steady")
        if self.kst and self.stamps:
            a("s_memrealtime s[98:99]\ns_waitcnt lgkmcnt(0)")
            for slot_, G_ in zip((4, 5), self.kst):
                a(f"s_cmp_eq_u32 s19, {15-G_}\ns_cselect_b32 s{88+slot_}, s98, s{88+slot_}")
        a(f"s_sub_u32 s19, s19, 1\ns_cmp_lg_u32 s19, 0\ns_cbranch_scc1 {lk}")
        issued[0] = save + 16 * (15 - PG)
        kgroup(15, "last")
        a("s_nop 1")
        self.wave_reduce(vMax, "v_max_f32", 20)
        a(f"v_mov_b32 v{vMax}, s20")
        a(f"s_lshl_b32 s18, s3, 2\ns_add_u32 s18, s18, {MW}\nv_mov_b32 v7, s18")
        a(f"ds_write_b32 v7, v{vMax}")
        a(f"ds_read_b32 v{vSn}, v{vSR}\nv_add_u32 v{vSR}, 0x100, v{vSR}")
        for j in range(4): a(f"v_mov_b32 v{ACC+j}, 0")
        self.stamp(2)
        def abuild(s):
            tau, t = s >> 2, s & 3
            for jj in range(4):
                a(f"v_and_b32_dpp v{PA+4*(s&1)+jj}, v{vP}, v{MK+jj} row_newbcast:{4*t+tau} row_mask:0xf bank_mask:0xf")
        def vgroup(G, last):
            a("s_waitcnt lgkmcnt(0)")
            a(f"v_sub_f32 v{vE}, v{vSn}, v{vMax}\nv_mul_f32 v{vE}, {LOG2E}, v{vE}\nv_exp_f32 v{vE}, v{vE}")
            if not last:
                a(f"ds_read_b32 v{vSn}, v{vSR}\nv_add_u32 v{vSR}, 0x100, v{vSR}")
            else:
                a("s_nop 0")
            a(f"v_cvt_pk_bf16_f32 v{vP}, v{vE}, v{vE}\ns_nop 1")
            abuild(0)
            for s in range(16):
                n = 256 + 16 * G + s
                A = PA + 4 * (s & 1)
                mf = f"v_mfma_f32_16x16x32_bf16 v[{ACC}:{ACC+3}], v[{A}:{A+3}], v[{slot(n)}:{slot(n)+3}], v[{ACC}:{ACC+3}]"
                nxt = n + R
                early = self.early and nxt < 512
                a(f"s_waitcnt vmcnt({issued[0]-1-n})")
                if not early: a("s_nop 0\n" + mf)
                if nxt < 512:
                    assert nxt == issued[0]
                    issue(nxt); issued[0] += 1
                if early: a(mf)
                if s < 15: abuild(s + 1)
        if not self.ctl:
            a("s_mov_b32 s19, 15")
            lv = self.label("V")
            a(f"{lv}:")
            save = issued[0]
            vgroup(0, False)
            a(f"s_sub_u32 s19, s19, 1\ns_cmp_lg_u32 s19, 0\ns_cbranch_scc1 {lv}")
            issued[0] = save + 16 * 15
            vgroup(15, True)
        else:
            def vissue(n):
                t = n & 3
                a(f"buffer_load_dwordx4 v[{RING+4*(n%16)}:{RING+4*(n%16)+3}], v{vV}, s[12:15], s17 offen offset:{t*1024} nt")
                if t == 3: a("s_add_u32 s17, s17, 0x4000")
            def vhead():
                a("s_waitcnt lgkmcnt(0)")
                a(f"v_sub_f32 v{vE}, v{vSn}, v{vMax}\nv_mul_f32 v{vE}, {LOG2E}, v{vE}\nv_exp_f32 v{vE}, v{vE}")
                a(f"ds_read_b32 v{vSn}, v{vSR}\nv_add_u32 v{vSR}, 0x100, v{vSR}")
                a(f"v_cvt_pk_bf16_f32 v{vP}, v{vE}, v{vE}\ns_nop 1")
                abuild(0)
            def vstep(s, Rw, Ri):
                A = PA + 4 * (s & 1)
                a(f"s_waitcnt vmcnt({Rw-1})\ns_nop 0")
                a(f"v_mfma_f32_16x16x32_bf16 v[{ACC}:{ACC+3}], v[{A}:{A+3}], v[{RING+4*s}:{RING+4*s+3}], v[{ACC}:{ACC+3}]")
                if Ri is not None: vissue(s + Ri)
                if s < 15: abuild(s + 1)
                if (s + 1) % self.pstep == 0:
                    a(f"v_add_u32 v{vProg}, {self.pstep}, v{vProg}\nds_write_b32 v{vPA}, v{vProg}")
                if s == 13: a(f"ds_read_b32 v{vMode}, v{vMA}")
            uid = self.label("vc")
            modes = list(range(self.Rlo, self.Rhi + 1))
            assert R in modes
            a(f"s_mov_b32 s19, 16\ns_branch {uid}_top{R}")
            for m in modes:
                a(f"{uid}_top{m}:")
                vhead(); vstep(0, m, m)
                a(f"{uid}_s1_{m}:")
                for s in range(1, 16): vstep(s, m, m)
                a(f"s_sub_u32 s19, s19, 1\ns_cmp_eq_u32 s19, 0\ns_cbranch_scc1 {uid}_done")
                a(f"s_waitcnt lgkmcnt(0)\nv_readfirstlane_b32 s21, v{vMode}")
                if m < self.Rhi: a(f"s_cmp_gt_u32 s21, {m}\ns_cbranch_scc1 {uid}_up{m}")
                if m > self.Rlo: a(f"s_cmp_lt_u32 s21, {m}\ns_cbranch_scc1 {uid}_dn{m}")
                a(f"s_branch {uid}_top{m}")
                if m < self.Rhi:
                    a(f"{uid}_up{m}:")
                    vissue(m)
                    a(f"s_branch {uid}_top{m+1}")
                if m > self.Rlo:
                    a(f"{uid}_dn{m}:")
                    vhead(); vstep(0, m, None)
                    a(f"s_branch {uid}_s1_{m-1}")
            a(f"{uid}_done:\ns_waitcnt vmcnt(0)")
        a("v_and_b32 v7, 15, v0\nv_lshrrev_b32 v8, 4, v0\nv_and_b32 v8, 1, v8\nv_lshlrev_b32 v7, 5, v7\nv_lshlrev_b32 v8, 4, v8\nv_add_u32 v7, v7, v8")
        a(f"s_lshl_b32 s18, s3, 9\ns_add_u32 s18, s18, {OP}\nv_add_u32 v7, s18, v7")
        a(f"s_nop 1\nds_write_b128 v7, v[{ACC}:{ACC+3}]\ns_waitcnt lgkmcnt(0)")
        self.stamp(3)
        a("s_barrier")
        self.stamp_flush()
        a("s_endpgm")

    def helper(self):
        a = self.a
        MK, A0, D, YA, W = 4, 20, 28, 32, 64
        self.c("==== helper waves (4..7): q projection, FFN, softmax denominators, output projection, final sum ====")
        a("s_sub_u32 s5, s3, 4")
        HW = 5
        self.HW = HW
        a("v_and_b32 v1, 15, v0\nv_lshrrev_b32 v2, 4, v0")
        a(f"s_mul_i32 s48, s{HW}, 40")
        a("s_lshl_b32 s52, s44, 1\ns_add_u32 s52, s52, s46\ns_mul_i32 s52, s52, 5" if self.rot else "s_mov_b32 s52, 0")
        a("s_mul_i32 s49, s44, 1280")
        a("v_lshlrev_b32 v3, 13, v2\nv_lshlrev_b32 v9, 4, v1\nv_add_u32 v3, v3, v9")
        a(f"s_mul_i32 s53, s{HW}, {160*8192}\ns_lshl_b32 s51, s45, 8\ns_add_u32 s53, s53, s51")
        a(f"s_lshl_b32 s50, s52, 15\ns_add_u32 s50, s50, s53\ns_add_u32 s51, s53, {40*32768}")
        a("s_waitcnt lgkmcnt(0)")
        self.stamp(6)
        self.srd(8, 64, 5120)
        self.srd(12, 70, 5242880)
        for r in range(10):
            t = 52 + (r & 3)
            a(f"v_add_u32 v{t}, {16*r}, v1")
            if r <= 2:
                a(f"v_add_u32 v8, s52, v{t}\nv_subrev_u32 v9, 40, v8\nv_min_u32 v8, v8, v9\nv_add_u32 v8, s48, v8")
            if r >= 2:
                a(f"v_add_u32 v{t}, s48, v{t}\nv_subrev_u32 v9, 160, v{t}\nv_min_u32 v{t}, v{t}, v9")
            if r < 2:
                a(f"v_mov_b32 v{t}, v8")
            elif r == 2:
                a(f"v_cmp_gt_u32 vcc, 8, v1\ns_nop 1\nv_cndmask_b32 v{t}, v{t}, v8, vcc")
            a(f"v_lshlrev_b32 v{t}, 2, v{t}\nv_add_u32 v{t}, v{t}, v2\nv_lshlrev_b32 v{t}, 1, v{t}")
            a(f"buffer_load_ushort v{10+r}, v{t}, s[8:11], s49 offen")
        for u in range(40):
            a(f"buffer_load_dwordx4 v[{W+4*u}:{W+4*u+3}], v3, s[12:15], s50 offen {self.wq_flags}")
            if u < 39: a("s_add_u32 s50, s50, 0x8000\ns_cmp_eq_u32 s50, s51\ns_cselect_b32 s50, s53, s50")
        if self.b0: a("s_barrier")
        self.stamp(0)
        self.masks16x32(MK, 8)
        a(f"v_mov_b32 v52, -1\nv_mov_b32 v53, -1\nv_mov_b32 v54, -1\nv_mov_b32 v55, -1\nv_mov_b32 v9, {MW}\nds_write_b128 v9, v[52:55]")
        self.srd(16, 72, 5242880)
        self.srd(20, 86, 0x40000000)
        self.srd(24, 84, 256)
        self.srd(28, 82, 5120)
        a("s_waitcnt vmcnt(40)")
        self.layernorm(10, 3, 52, 52)
        def abuild(src, u, buf, MKr=MK):
            for jj in range(4):
                a(f"v_and_b32_dpp v{A0+4*buf+jj}, v{src}, v{MKr+jj} row_newbcast:{u} row_mask:0xf bank_mask:0xf")
        a("s_nop 1")
        abuild(10, 0, 0)
        for u in range(40):
            if u < 39: abuild(10 + ((u + 1) >> 4), (u + 1) & 15, (u + 1) & 1)
            else: a("s_nop 1")
            a(f"s_waitcnt vmcnt({39-u})")
            A = A0 + 4 * (u & 1)
            cin = "0" if u == 0 else f"v[{D}:{D+3}]"
            a(f"v_mfma_f32_16x16x32_bf16 v[{D}:{D+3}], v[{A}:{A+3}], v[{W+4*u}:{W+4*u+3}], {cin}")
        a("v_lshlrev_b32 v8, 5, v1\nv_and_b32 v9, 1, v2\nv_lshlrev_b32 v9, 4, v9\nv_add_u32 v8, v8, v9")
        a(f"s_lshl_b32 s48, s{HW}, 9\nv_add_u32 v9, s48, v8")
        a(f"s_nop 3\nds_write_b128 v9, v[{D}:{D+3}] offset:{QP}\ns_waitcnt lgkmcnt(0)")
        a("s_barrier")
        self.stamp(1)
        l_wo = self.label("wo")
        l_w5 = self.label("w5") if self.clw == 's' else l_wo
        a(f"s_cmp_eq_u32 s{HW}, 1\ns_cbranch_scc0 {l_wo}\ns_cmp_lt_u32 s2, {216 if self.f2 else 27}\ns_cbranch_scc0 {l_w5}")
        if self.skip_ffn:
            a("v_mov_b32 v52, 1\ns_mov_b64 exec, 1\nbuffer_atomic_add v52, off, s[24:27], 0 offset:128 sc1\ns_mov_b64 exec, -1")
        elif self.f2:
            self.ffn1()
        else:
            self.ffn()
        if self.clw == 's':
            l_sg = self.label("sig")
            a(f"s_branch {l_wo}")
            a(f"{l_w5}:")
            a(f"s_cmp_eq_u32 s{HW}, 1\ns_cbranch_scc0 {l_wo}")
            self.signal()
        a(f"{l_wo}:")
        l_nc = self.label("noclear")
        if self.clw == 'w4': self.wave4_clear(l_nc)
        self.wo_prefetch_and_rest(MK, A0, D, YA, W, HW, abuild)

    def signal(self):
        a = self.a
        a("v_mov_b32 v52, 1\ns_mov_b64 exec, 1")
        if self.flag == 'at': a("buffer_atomic_add v52, off, s[24:27], 0 sc1")
        elif self.flag.startswith('at'):
            N = int(self.flag[2:]); sh = {2: 7, 4: 6, 8: 5, 16: 4, 32: 3, 64: 2}[N]
            a(f"s_and_b32 s48, s2, {N-1}\ns_lshl_b32 s48, s48, {sh}\nbuffer_atomic_add v52, off, s[24:27], s48 sc1")
        elif self.flag == 'byte': a("v_mov_b32 v53, s2\nbuffer_store_byte v52, v53, s[24:27], 0 offen sc1")
        a("s_mov_b64 exec, -1")
    def signal_check(self, name):
        a = self.a
        N = int(self.flag[2:]) if self.flag.startswith('at') and self.flag != 'at' else 0
        if N: a(f"v_and_b32 v59, {N-1}, v0\nv_lshlrev_b32 v59, {({2: 7, 4: 6, 8: 5, 16: 4, 32: 3, 64: 2}[N])}, v59")
        elif self.flag == 'byte': a("v_lshlrev_b32 v59, 2, v0")
        l, d = self.spin_head(name, 48)
        if self.flag == 'at':
            a("buffer_load_dword v58, off, s[24:27], 0 sc1\ns_waitcnt vmcnt(0)\nv_cmp_gt_u32 vcc, 256, v58")
        else:
            a("buffer_load_dword v58, v59, s[24:27], 0 offen sc1\ns_waitcnt vmcnt(0)")
            if self.flag == 'byte': a("v_cmp_ne_u32 vcc, 0x01010101, v58")
            else: a(f"v_cmp_gt_u32 vcc, {256 // N}, v58")
        a(f"s_cbranch_vccz {d}")
        a(f"s_sub_u32 s48, s48, 1\ns_cmp_lg_u32 s48, 0\ns_cbranch_scc1 {l}")
        a(f"{d}:")

    def wave4_clear(self, l_nc):
        a = self.a
        HW = self.HW
        a(f"s_cmp_eq_u32 s{HW}, {7 if self.xclr == 2 else 0}\ns_cbranch_scc0 {l_nc}")
        a("v_mov_b32 v52, -1\nv_mov_b32 v53, -1\nv_mov_b32 v54, -1\nv_mov_b32 v55, -1")
        a(f"s_mul_i32 s48, s47, 2560\ns_add_u32 s48, s48, {Y_OFF}\nv_lshlrev_b32 v9, 4, v0")
        a("buffer_store_dwordx4 v[52:55], v9, s[20:23], s48 offen sc1")
        a("buffer_store_dwordx4 v[52:55], v9, s[20:23], s48 offen offset:1024 sc1")
        a("s_mov_b32 exec_hi, 0")
        a("buffer_store_dwordx4 v[52:55], v9, s[20:23], s48 offen offset:2048 sc1")
        a("s_mov_b64 exec, 1")
        a(f"s_lshl_b32 s49, s47, 7\ns_add_u32 s49, s49, {ML_OFF}")
        a("buffer_store_dwordx2 v[52:53], v9, s[20:23], s49 offen sc1")
        if self.ctl:
            self.slot_addr(49, 50)
            a(f"v_mov_b32 v56, 0\nbuffer_store_dword v56, v9, s[20:23], s49 offen {'' if self.psp else 'sc1'}")
            if self.gx:
                nl = self.label("nolead")
                a(f"s_cmp_ge_u32 s2, 248\ns_cbranch_scc0 {nl}")
                a("buffer_store_dword v56, v9, s[20:23], s50 offen offset:128 sc1")
                a(f"s_and_b32 s49, s2, 7\ns_lshl_b32 s49, s49, 2\ns_add_u32 s49, s49, {GL_OFF}")
                a("buffer_store_dword v56, v9, s[20:23], s49 offen sc1")
                a(f"{nl}:")
        a("s_waitcnt vmcnt(0)")
        a("v_mov_b32 v52, 1")
        if not self.xclr: a("buffer_atomic_add v52, off, s[24:27], 0 sc1")
        a("s_mov_b64 exec, -1")
        a(f"{l_nc}:")

    def wo_prefetch_and_rest(self, MK, A0, D, YA, W, HW, abuild):
        a = self.a
        a("v_mul_u32_u24 v3, 1280, v2\nv_lshlrev_b32 v9, 4, v1\nv_add_u32 v3, v3, v9")
        a(f"s_lshl_b32 s48, s45, 7\ns_lshl_b32 s49, s{HW}, 5\ns_add_u32 s48, s48, s49\ns_mul_i32 s48, s48, 1280")
        for u in range(8):
            if self.skip_wo: break
            for cb in range(5):
                r = W + 4 * (5 * u + cb)
                if self.wo_win and 5 * u + cb >= self.wo_win: a(f"s_waitcnt vmcnt({self.wo_win-1})")
                a(f"buffer_load_dwordx4 v[{r}:{r+3}], v3, s[16:19], s48 offen offset:{256*cb} {self.wo_flags}")
            if u < 7: a(f"s_add_u32 s48, s48, {4*1280}")
        l_b2 = self.label("toB2")
        a(f"s_cmp_eq_u32 s{HW}, 0\ns_cbranch_scc0 {l_b2}")
        self.wave4_mid()
        l_b3 = self.label("toB2b")
        if self.ctl or self.f2: a(f"s_branch {l_b3}")
        a(f"{l_b2}:")
        if self.f2:
            for j in range(20): a(f"v_mov_b32 v{YA+j}, 0")
        if self.ctl:
            a(f"s_cmp_eq_u32 s{HW}, 2\ns_cbranch_scc0 {l_b3}")
            self.monitor()
        if self.ctl or self.f2: a(f"{l_b3}:")
        a("s_waitcnt vmcnt(0)")
        a(f"v_and_b32 v8, 7, v1\nv_lshlrev_b32 v8, 2, v8\nv_add_u32 v8, v8, v2\nv_lshlrev_b32 v8, 2, v8\ns_lshl_b32 s48, s{HW}, 7\nv_add_u32 v8, s48, v8")
        a(f"v_mov_b32 v9, {FW}")
        a("v_lshlrev_b32 v10, 5, v1\nv_and_b32 v11, 1, v2\nv_lshlrev_b32 v11, 4, v11\nv_add_u32 v10, v10, v11")
        a(f"s_mul_i32 s48, s{HW}, 2560\nv_add_u32 v10, s48, v10")
        a(f"s_mul_i32 s48, s{HW}, 640\nv_lshlrev_b32 v11, 4, v0\nv_add_u32 v11, s48, v11")
        a(f"s_mul_i32 s49, s47, 2560\ns_add_u32 s49, s49, {Y_OFF}")
        self.stamp(2)
        a("s_barrier")
        self.stamp(3)
        a("ds_read_b128 v[52:55], v9")
        for w in range(4): a(f"ds_read_b32 v{56+w}, v8 offset:{OP+512*w}")
        a("s_waitcnt lgkmcnt(0)")
        a("v_mul_f32 v56, v52, v56\nv_mul_f32 v58, v54, v58\nv_fmac_f32 v56, v53, v57\nv_fmac_f32 v58, v55, v59\nv_add_f32 v56, v56, v58")
        a("v_cvt_pk_bf16_f32 v56, v56, v56\ns_nop 1")
        abuild(56, 0, 0)
        for u in range(8):
            if u < 7: abuild(56, u + 1, (u + 1) & 1)
            else: a("s_nop 1")
            A = A0 + 4 * (u & 1)
            for cb in range(5):
                r = W + 4 * (5 * u + cb)
                acc = YA + 4 * cb
                cin = "0" if (u == 0 and not self.f2) else f"v[{acc}:{acc+3}]"
                a(f"v_mfma_f32_16x16x32_bf16 v[{acc}:{acc+3}], v[{A}:{A+3}], v[{r}:{r+3}], {cin}")
        a("s_nop 3")
        for cb in range(5):
            if cb == 4: a("s_nop 3")
            a(f"ds_write_b128 v10, v[{YA+4*cb}:{YA+4*cb+3}] offset:{YP+512*cb}")
        a("s_waitcnt lgkmcnt(0)")
        a("s_barrier")
        a("s_mov_b32 exec_hi, 0xff")
        for w in range(4): a(f"ds_read_b128 v[{64+4*w}:{64+4*w+3}], v11 offset:{YP+2560*w}")
        a("s_waitcnt lgkmcnt(0)")
        a("v_pk_add_f32 v[64:65], v[64:65], v[68:69]\nv_pk_add_f32 v[66:67], v[66:67], v[70:71]")
        a("v_pk_add_f32 v[72:73], v[72:73], v[76:77]\nv_pk_add_f32 v[74:75], v[74:75], v[78:79]")
        a("v_pk_add_f32 v[64:65], v[64:65], v[72:73]\nv_pk_add_f32 v[66:67], v[66:67], v[74:75]")
        a("buffer_store_dwordx4 v[64:67], v11, s[20:23], s49 offen sc1")
        a("s_mov_b64 exec, -1")
        self.stamp(4)
        l_fin = self.label("fin")
        a(f"s_cmp_eq_u32 s{HW}, 0\ns_cbranch_scc0 {l_fin}\ns_cmp_lt_u32 s2, 80\ns_cbranch_scc0 {l_fin}")
        self.final_reduce()
        a(f"{l_fin}:")
        self.stamp(5)
        self.stamp_flush("h")
        a("s_endpgm")

    def slot_addr(self, sa, sb):
        a = self.a
        if self.cloc:
            a(f"s_lshr_b32 s{sa}, s2, 3\ns_and_b32 s{sb}, s2, 7\ns_lshl_b32 s{sb}, s{sb}, 8\ns_add_u32 s{sb}, s{sb}, {PS_OFF}")
        else:
            a(f"s_lshr_b32 s{sa}, s2, 3\ns_add_u32 s{sb}, s{sa}, s2\ns_and_b32 s{sb}, s{sb}, 7\ns_lshl_b32 s{sb}, s{sb}, 7\ns_add_u32 s{sb}, s{sb}, {PS_OFF}")
        a(f"s_lshl_b32 s{sa}, s{sa}, 2\ns_add_u32 s{sa}, s{sa}, s{sb}")
    def monitor(self):
        a = self.a
        self.c("---- wave 6: balances the V phase by steering each streaming wave's lookahead depth ----")
        l, d = self.spin_head("mw6", 48)
        a(f"v_mov_b32 v9, {MW}\nds_read_b128 v[52:55], v9\ns_waitcnt lgkmcnt(0)")
        a("v_max3_u32 v9, v52, v53, v54\nv_max_u32 v9, v9, v55\nv_cmp_eq_u32 vcc, -1, v9")
        a(f"s_cbranch_vccz {d}")
        a(f"s_sub_u32 s48, s48, 1\ns_cmp_lg_u32 s48, 0\ns_cbranch_scc1 {l}")
        a(f"{d}:")
        if not self.psp:
            l, d = self.spin_head("clr6", 48)
            a("buffer_load_dword v58, off, s[24:27], 0 sc1\ns_waitcnt vmcnt(0)")
            a(f"v_cmp_gt_u32 vcc, {0 if self.xclr else 256}, v58")
            a(f"s_cbranch_vccz {d}")
            a(f"s_sub_u32 s48, s48, 1\ns_cmp_lg_u32 s48, 0\ns_cbranch_scc1 {l}")
            a(f"{d}:")
        self.slot_addr(49, 50)
        a(f"v_and_b32 v52, 3, v0\nv_lshlrev_b32 v53, 2, v52\nv_add_u32 v53, {MODE}, v53")
        a(f"v_lshlrev_b32 v52, 8, v52\nv_add_u32 v52, {PRG}, v52")
        if not self.gx:
            a("v_and_b32 v54, 31, v0\nv_lshlrev_b32 v54, 2, v54\nv_mov_b32 v9, 0\ns_mov_b32 s51, 0")
        else:
            a("v_lshlrev_b32 v54, 2, v0\nv_min_u32 v54, 128, v54\nv_mov_b32 v9, 0\ns_mov_b32 s51, 0")
            a(f"s_mov_b32 s58, 0\ns_mov_b32 s59, 0\ns_and_b32 s57, s2, 7\ns_lshl_b32 s57, s57, 2\ns_add_u32 s57, s57, {GL_OFF}")
        l, d = self.spin_head("mon", 48)
        a("ds_read_b32 v55, v52\ns_waitcnt lgkmcnt(0)")
        a("v_add_u32_dpp v56, v55, v55 quad_perm:[1,0,3,2] row_mask:0xf bank_mask:0xf\ns_nop 1")
        a("v_add_u32_dpp v56, v56, v56 quad_perm:[2,3,0,1] row_mask:0xf bank_mask:0xf\ns_nop 1")
        a("v_readfirstlane_b32 s52, v56")
        a(f"s_nop 1\ns_cmp_ge_u32 s52, {self.cthr}\ns_cbranch_scc1 {d}")
        a(f"s_mov_b64 exec, 1\nbuffer_store_dword v56, v9, s[20:23], s49 offen {self.mst}\ns_mov_b64 exec, -1")
        a(f"buffer_load_dword v57, v54, s[20:23], s50 offen {self.mld}\ns_waitcnt vmcnt(0)")
        if self.gx:
            a("v_readlane_b32 s55, v57, 32\ns_mov_b32 exec_lo, 0\nv_mov_b32 v57, 0\ns_mov_b32 exec_lo, -1\ns_nop 1")
        self.wave_reduce(57, "v_add_u32", 53)
        if self.gx:
            a("s_lshl_b32 s53, s53, 1")
            nl = self.label("nolead")
            a(f"s_cmp_ge_u32 s2, 248\ns_cbranch_scc0 {nl}")
            a("v_mov_b32 v58, s53\ns_mov_b64 exec, 1\nbuffer_store_dword v58, v9, s[20:23], s57 offen sc1\ns_mov_b64 exec, -1")
            if self.gx == 1:
                a(f"s_waitcnt vmcnt(0)\ns_load_dwordx8 s[32:39], s[86:87], {hex(GL_OFF)} glc\ns_waitcnt lgkmcnt(0)")
                a("s_add_u32 s32, s32, s33\ns_add_u32 s34, s34, s35\ns_add_u32 s36, s36, s37\ns_add_u32 s38, s38, s39")
                a("s_add_u32 s32, s32, s34\ns_add_u32 s36, s36, s38\ns_add_u32 s32, s32, s36")
            else:
                a(f"v_and_b32 v58, 7, v0\nv_lshlrev_b32 v58, 2, v58\ns_mov_b32 s32, {GL_OFF}\nbuffer_load_dword v59, v58, s[20:23], s32 offen sc1\ns_waitcnt vmcnt(0)")
                a("v_add_u32_dpp v59, v59, v59 row_ror:4 row_mask:0xf bank_mask:0xf\ns_nop 1")
                a("v_add_u32_dpp v59, v59, v59 row_ror:2 row_mask:0xf bank_mask:0xf\ns_nop 1")
                a("v_add_u32_dpp v59, v59, v59 row_ror:1 row_mask:0xf bank_mask:0xf\ns_nop 1")
                a("v_readfirstlane_b32 s32, v59\ns_nop 1")
            a("s_lshr_b32 s32, s32, 3\ns_sub_u32 s55, s32, s53")
            if self.gsh: a(f"s_ashr_i32 s55, s55, {self.gsh}")
            a("v_mov_b32 v58, s55\ns_mov_b64 exec, 1")
            a(f"buffer_store_dword v58, v9, s[20:23], s50 offen offset:128 {self.mst}\ns_mov_b64 exec, -1")
            if self.stamps: a("s_mov_b32 s58, s32\ns_mov_b32 s59, s53")
            a(f"{nl}:")
        a("s_sub_u32 s54, s52, s51\ns_lshl_b32 s54, s54, 6\ns_add_u32 s54, s54, s53")
        if self.gx: a("s_add_u32 s54, s54, s55")
        a(f"s_add_u32 s54, s54, {self.cbias}\ns_mov_b32 s51, s52")
        a("v_lshlrev_b32 v55, 8, v55\nv_sub_u32 v55, s54, v55")
        a(f"v_ashrrev_i32 v55, {self.csh}, v55\nv_add_u32 v55, {self.R}, v55")
        a(f"v_max_i32 v55, {self.Rlo}, v55\nv_min_i32 v55, {self.Rhi}, v55")
        a("ds_write_b32 v53, v55")
        a(f"s_sub_u32 s48, s48, 1\ns_cmp_lg_u32 s48, 0\ns_cbranch_scc1 {l}")
        a(f"{d}:")
        a(f"v_mov_b32 v56, 0x400\ns_mov_b64 exec, 1\nbuffer_store_dword v56, v9, s[20:23], s49 offen {self.mst}\ns_mov_b64 exec, -1")
        if self.gx:
            nl = self.label("nolead")
            a(f"s_cmp_ge_u32 s2, 248\ns_cbranch_scc0 {nl}")
            a("v_mov_b32 v58, 0x10000\ns_mov_b64 exec, 1\nbuffer_store_dword v58, v9, s[20:23], s57 offen sc1\ns_mov_b64 exec, -1")
            if self.stamps:
                a("s_and_b32 s32, s2, 7\ns_lshl_b32 s32, s32, 2\nv_mov_b32 v58, s58\nv_mov_b32 v59, s59\ns_mov_b64 exec, 1")
                a("buffer_store_dword v58, v9, s[24:27], s32 offen offset:64\nbuffer_store_dword v59, v9, s[24:27], s32 offen offset:96\ns_mov_b64 exec, -1")
            a(f"{nl}:")

    def wave4_mid(self):
        a = self.a
        self.c("---- wave 4: softmax statistics of this half, exchange with the other half ----")
        l, d = self.spin_head("mw", 48)
        a(f"v_mov_b32 v9, {MW}\nds_read_b128 v[52:55], v9\ns_waitcnt lgkmcnt(0)")
        a("v_max3_u32 v9, v52, v53, v54\nv_max_u32 v9, v9, v55\nv_cmp_eq_u32 vcc, -1, v9")
        a(f"s_cbranch_vccz {d}")
        if self.sleep: a("s_sleep 16")
        a(f"s_sub_u32 s48, s48, 1\ns_cmp_lg_u32 s48, 0\ns_cbranch_scc1 {l}")
        a(f"{d}:")
        self.stamp(6)
        a("v_max3_f32 v56, v52, v53, v54\nv_max_f32 v56, v56, v55")
        a(f"v_lshlrev_b32 v9, 4, v0\nv_add_u32 v9, {SC}, v9\nv_mov_b32 v57, 0\ns_mov_b32 s48, 4")
        lp = self.label("lsum")
        a(f"{lp}:")
        for i in range(4): a(f"ds_read_b128 v[{224+4*i}:{227+4*i}], v9 offset:{1024*i}")
        a("v_add_u32 v9, 4096, v9\ns_waitcnt lgkmcnt(0)")
        for i in range(16): a(f"v_sub_f32 v{224+i}, v{224+i}, v56")
        for i in range(16): a(f"v_mul_f32 v{224+i}, {LOG2E}, v{224+i}")
        for i in range(16): a(f"v_exp_f32 v{224+i}, v{224+i}")
        a("s_nop 0")
        for i in range(16): a(f"v_add_f32 v57, v57, v{224+i}")
        a(f"s_sub_u32 s48, s48, 1\ns_cmp_lg_u32 s48, 0\ns_cbranch_scc1 {lp}")
        a("s_nop 1")
        self.wave_reduce(57, "v_add_f32", 50)
        a("v_mov_b32 v57, s50")
        a(f"s_lshl_b32 s49, s47, 7\ns_add_u32 s49, s49, {ML_OFF}")
        a("v_mov_b32 v9, 0\ns_mov_b64 exec, 1")
        a("buffer_store_dwordx2 v[56:57], v9, s[20:23], s49 offen sc1")
        a("s_mov_b64 exec, -1")
        if self.f2: self.ffn2()
        if self.clw == 'w4':
            l, d = self.spin_head("clr", 48)
            a("buffer_load_dword v58, off, s[24:27], 0 sc1\ns_waitcnt vmcnt(0)")
            a(f"v_cmp_gt_u32 vcc, {0 if self.xclr else 256}, v58")
            a(f"s_cbranch_vccz {d}")
            a(f"s_sub_u32 s48, s48, 1\ns_cmp_lg_u32 s48, 0\ns_cbranch_scc1 {l}")
            a(f"{d}:")
        a(f"s_xor_b32 s49, s47, 1\ns_lshl_b32 s49, s49, 7\ns_add_u32 s49, s49, {ML_OFF}\nv_mov_b32 v9, 0")
        l, d = self.spin_head("ml", 48)
        a("buffer_load_dwordx2 v[58:59], v9, s[20:23], s49 offen sc1\ns_waitcnt vmcnt(0)")
        a("v_max_u32 v60, v58, v59\nv_cmp_eq_u32 vcc, -1, v60")
        a(f"s_cbranch_vccz {d}")
        a(f"s_sub_u32 s48, s48, 1\ns_cmp_lg_u32 s48, 0\ns_cbranch_scc1 {l}")
        a(f"{d}:")
        a("v_max_f32 v60, v56, v58")
        a("v_sub_f32 v56, v56, v60\nv_sub_f32 v58, v58, v60")
        for i in range(4): a(f"v_sub_f32 v{52+i}, v{52+i}, v60")
        a(f"v_mul_f32 v56, {LOG2E}, v56\nv_mul_f32 v58, {LOG2E}, v58")
        for i in range(4): a(f"v_mul_f32 v{52+i}, {LOG2E}, v{52+i}")
        a("v_exp_f32 v56, v56\nv_exp_f32 v58, v58")
        for i in range(4): a(f"v_exp_f32 v{52+i}, v{52+i}")
        a("v_mul_f32 v57, v57, v56\nv_fmac_f32 v57, v59, v58\nv_rcp_f32 v57, v57\ns_nop 0")
        for i in range(4): a(f"v_mul_f32 v{52+i}, v{52+i}, v57")
        a(f"v_mov_b32 v9, {FW}\nds_write_b128 v9, v[52:55]\ns_waitcnt lgkmcnt(0)")
        l_nr = self.label("nored")
        a(f"s_cmp_lt_u32 s2, 80\ns_cbranch_scc0 {l_nr}")
        a("s_mul_i32 s62, s2, 205\ns_lshr_b32 s62, s62, 12\ns_mul_i32 s63, s62, 20\ns_sub_u32 s63, s2, s63")
        if self.f2:
            a("v_and_b32 v59, 7, v0\ns_mul_i32 s48, s62, 1280\ns_lshl_b32 s49, s63, 6\ns_add_u32 s48, s48, s49\nv_lshlrev_b32 v61, 3, v59")
            a("buffer_load_dwordx2 v[246:247], v61, s[8:11], s48 offen\ns_waitcnt vmcnt(0)")
            a("v_lshlrev_b32 v244, 16, v246\nv_and_b32 v245, 0xffff0000, v246\nv_lshlrev_b32 v246, 16, v247\nv_and_b32 v247, 0xffff0000, v247")
            a(f"{l_nr}:")
            return
        l, d = self.spin_head("zc", 48)
        a("buffer_load_dword v58, off, s[24:27], 0 offset:128 sc1\ns_waitcnt vmcnt(0)")
        a("v_cmp_gt_u32 vcc, 27, v58")
        a(f"s_cbranch_vccz {d}")
        a(f"s_sub_u32 s48, s48, 1\ns_cmp_lg_u32 s48, 0\ns_cbranch_scc1 {l}")
        a(f"{d}:")
        a("v_lshrrev_b32 v58, 3, v0\nv_and_b32 v59, 7, v0")
        a("v_mul_u32_u24 v60, 10240, v58\nv_lshlrev_b32 v61, 4, v59\nv_add_u32 v60, v60, v61")
        a(f"s_mul_i32 s48, s62, 2560\ns_lshl_b32 s49, s63, 7\ns_add_u32 s48, s48, s49\ns_add_u32 s48, s48, {Z_OFF}")
        for i in range(3):
            a(f"buffer_load_dwordx4 v[{224+4*i}:{227+4*i}], v60, s[20:23], s48 offen sc1")
            a(f"s_add_u32 s48, s48, {8*10240}")
        a("v_cmp_gt_u32 vcc, 3, v58\nv_mov_b32 v61, 0x7ffffff0\ns_nop 0\nv_cndmask_b32 v60, v61, v60, vcc")
        a("buffer_load_dwordx4 v[236:239], v60, s[20:23], s48 offen sc1")
        a("s_mul_i32 s48, s62, 1280\ns_lshl_b32 s49, s63, 6\ns_add_u32 s48, s48, s49\nv_lshlrev_b32 v61, 3, v59")
        a("buffer_load_dwordx2 v[246:247], v61, s[8:11], s48 offen")
        a("s_waitcnt vmcnt(0)")
        for j in range(4):
            a(f"v_add_f32 v{224+j}, v{224+j}, v{228+j}\nv_add_f32 v{232+j}, v{232+j}, v{236+j}\nv_add_f32 v{240+j}, v{224+j}, v{232+j}")
        self.reduce_hq(240, 4, 248)
        for j in range(4): self.rbf16(240 + j)
        a("v_lshlrev_b32 v244, 16, v246\nv_and_b32 v245, 0xffff0000, v246\nv_lshlrev_b32 v246, 16, v247\nv_and_b32 v247, 0xffff0000, v247")
        a(f"{l_nr}:")

    def final_reduce(self):
        a = self.a
        self.c("---- final sum over the 64 (head, half) rows for 32 output columns of one batch row ----")
        a("v_lshrrev_b32 v58, 3, v0\nv_and_b32 v59, 7, v0")
        a("v_mul_u32_u24 v60, 2560, v58\nv_lshlrev_b32 v61, 4, v59\nv_add_u32 v60, v60, v61")
        a(f"s_mul_i32 s48, s62, {64*2560}\ns_lshl_b32 s49, s63, 7\ns_add_u32 s48, s48, s49\ns_add_u32 s48, s48, {Y_OFF}")
        for i in range(1, 8): a(f"s_add_u32 s{48+i}, s{47+i}, {8*2560}")
        l, d = self.spin_head("y", 56)
        for i in range(8):
            a(f"buffer_load_dwordx4 v[{64+4*i}:{67+4*i}], v60, s[20:23], s{48+i} offen sc1")
        a("s_waitcnt vmcnt(0)")
        for st in (16, 8, 4):
            for i in range(0, st, 2):
                a(f"v_pk_add_f32 v[{64+i}:{65+i}], v[{64+i}:{65+i}], v[{64+st+i}:{65+st+i}]")
        a("v_add_f32 v68, v64, v65\nv_add_f32 v69, v66, v67\nv_add_f32 v68, v68, v69\nv_cmp_u_f32 vcc, v68, v68")
        a(f"s_cbranch_vccz {d}")
        a(f"s_sub_u32 s56, s56, 1\ns_cmp_lg_u32 s56, 0\ns_cbranch_scc1 {l}")
        a(f"{d}:")
        self.reduce_hq(64, 4, 68)
        if self.f2:
            for j in range(4): a(f"v_add_f32 v{64+j}, v{244+j}, v{64+j}")
        else:
            for j in range(4): self.rbf16(64 + j)
            for j in range(4): a(f"v_add_f32 v{64+j}, v{244+j}, v{64+j}")
            for j in range(4): self.rbf16(64 + j)
            for j in range(4): a(f"v_add_f32 v{64+j}, v{64+j}, v{240+j}")
        a("v_cvt_pk_bf16_f32 v64, v64, v65\nv_cvt_pk_bf16_f32 v65, v66, v67")
        a("s_mul_i32 s48, s62, 1280\ns_lshl_b32 s49, s63, 6\ns_add_u32 s48, s48, s49\nv_lshlrev_b32 v61, 3, v59")
        a("s_mov_b64 exec, 0xff")
        a("buffer_store_dwordx2 v[64:65], v61, s[28:31], s48 offen")
        a("s_mov_b64 exec, -1")

    def ffn1(self):
        a = self.a
        self.c("---- FFN stage 1: columns 64*(s2>>3).., rows 80*(s2&7).. ----")
        Wg, X, M2, A0, DG, DU, XA = 64, 144, 44, 20, 28, 32, 184
        self.srd(32, 76, 2211840); self.srd(36, 78, 2211840)
        a("v_mul_u32_u24 v11, 3456, v2\nv_lshlrev_b32 v12, 3, v1\nv_add_u32 v11, v11, v12")
        a("s_lshr_b32 s54, s2, 3\ns_and_b32 s55, s2, 7")
        a(f"s_lshl_b32 s48, s54, 7\ns_mul_i32 s49, s55, {80*3456}\ns_add_u32 s48, s48, s49")
        for u in range(20):
            a(f"buffer_load_dwordx2 v[{Wg+4*u}:{Wg+1+4*u}], v11, s[32:35], s48 offen nt")
            a(f"buffer_load_dwordx2 v[{Wg+2+4*u}:{Wg+3+4*u}], v11, s[36:39], s48 offen nt")
            if u < 19: a(f"s_add_u32 s48, s48, {4*3456}")
        a("v_lshlrev_b32 v8, 2, v1\nv_add_u32 v8, v8, v2\nv_lshlrev_b32 v8, 1, v8")
        a("s_mov_b32 s48, 0\ns_mov_b32 s49, 1280\ns_mov_b32 s50, 2560\ns_mov_b32 s51, 3840")
        for b in range(4):
            for r in range(10):
                a(f"buffer_load_ushort v{X+10*b+r}, v8, s[8:11], s{48+b} offen offset:{128*r}")
        self.const64(60, 0xAAAAAAAAAAAAAAAA)
        a("v_mov_b32 v52, 0xffff\nv_mov_b32 v53, 0xffff0000\nv_cndmask_b32_e64 v52, v52, v53, s[60:61]")
        for jj in range(2):
            self.const64(60, 0x3333333333333333 << (2 * jj))
            a(f"v_cndmask_b32_e64 v{M2+jj}, 0, v52, s[60:61]")
        a(f"v_mul_u32_u24 v9, 640, v2\nv_lshlrev_b32 v52, 2, v1\nv_add_u32 v9, v9, v52")
        for b in range(4):
            a(f"s_waitcnt vmcnt({30-10*b})")
            self.layernorm(X + 10 * b, 10, 52, 52)
            for r in range(10):
                a(f"ds_write_b32 v9, v{X+10*b+r} offset:{XNL+2560*b+64*r}")
        a("v_lshrrev_b32 v9, 2, v1\nv_lshlrev_b32 v9, 2, v9\nv_add_u32 v9, v9, v2\nv_mul_u32_u24 v10, 640, v9")
        a(f"s_mul_i32 s48, s55, 80\ns_add_u32 s48, s48, {XNL}\nv_add_u32 v10, s48, v10")
        a("s_waitcnt lgkmcnt(0)")
        for i in range(5): a(f"ds_read_b128 v[{XA+4*i}:{XA+3+4*i}], v10 offset:{16*i}")
        a("s_waitcnt lgkmcnt(0)")
        for u in range(20):
            A = A0 + 2 * (u & 1)
            for jj in range(2): a(f"v_and_b32 v{A+jj}, v{XA+u}, v{M2+jj}")
            a("s_nop 1")
            cg = "0" if u == 0 else f"v[{DG}:{DG+3}]"
            cu = "0" if u == 0 else f"v[{DU}:{DU+3}]"
            a(f"v_mfma_f32_16x16x16_bf16 v[{DG}:{DG+3}], v[{A}:{A+1}], v[{Wg+4*u}:{Wg+1+4*u}], {cg}")
            a(f"v_mfma_f32_16x16x16_bf16 v[{DU}:{DU+3}], v[{A}:{A+1}], v[{Wg+2+4*u}:{Wg+3+4*u}], {cu}")
        a("v_mul_u32_u24 v12, 6912, v2\nv_lshlrev_b32 v13, 4, v1\nv_add_u32 v12, v12, v13")
        a(f"s_mul_i32 s48, s55, {2*27648}\ns_lshl_b32 s49, s54, 8\ns_add_u32 s48, s48, s49\ns_add_u32 s48, s48, {P_OFF}\ns_add_u32 s49, s48, 27648")
        a("s_nop 7")
        a(f"buffer_store_dwordx4 v[{DG}:{DG+3}], v12, s[20:23], s48 offen sc1")
        a(f"buffer_store_dwordx4 v[{DU}:{DU+3}], v12, s[20:23], s49 offen sc1")
        if self.clw == 's':
            a("s_waitcnt vmcnt(0)")
            self.signal()
            return
        a("s_waitcnt vmcnt(0)\nv_mov_b32 v52, 1\ns_mov_b64 exec, 1")
        if not self.xzc: a("buffer_atomic_add v52, off, s[24:27], 0 offset:128 sc1")
        a("s_mov_b64 exec, -1")

    def ffn2(self):
        a = self.a
        MK, A0, YA, T = 4, 20, 32, 224
        self.c("---- FFN stage 2: hidden columns 27*(2h+half).. of batch row b ----")
        self.srd(40, 80, 2211840)
        if self.clw == 's':
            self.signal_check("zc")
        else:
            l, d = self.spin_head("zc", 48)
            a("buffer_load_dword v58, off, s[24:27], 0 offset:128 sc1\ns_waitcnt vmcnt(0)")
            a(f"v_cmp_gt_u32 vcc, {0 if self.xzc else 216}, v58")
            a(f"s_cbranch_vccz {d}")
            a(f"s_sub_u32 s48, s48, 1\ns_cmp_lg_u32 s48, 0\ns_cbranch_scc1 {l}")
            a(f"{d}:")
        a("s_lshl_b32 s54, s45, 1\ns_add_u32 s54, s54, s46\ns_mul_i32 s54, s54, 27")
        a("v_lshrrev_b32 v58, 2, v0\nv_mul_u32_u24 v58, 27648, v58\nv_and_b32 v59, 3, v0\nv_lshlrev_b32 v60, 5, v59\nv_add_u32 v58, v58, v60")
        a(f"s_mul_i32 s48, s44, 6912\ns_lshl_b32 s49, s54, 2\ns_add_u32 s48, s48, s49\ns_add_u32 s48, s48, {P_OFF}")
        a(f"buffer_load_dwordx4 v[{T}:{T+3}], v58, s[20:23], s48 offen sc1")
        a(f"buffer_load_dwordx4 v[{T+4}:{T+7}], v58, s[20:23], s48 offen offset:16 sc1")
        a("s_waitcnt vmcnt(0)")
        self.reduce_hq(T, 8, T + 8)
        for j in range(8): self.rbf16(T + j)
        a("s_nop 1")
        for j in range(8): a(f"v_mov_b32_dpp v{T+8+j}, v{T+j} row_ror:12 row_mask:0xf bank_mask:0xf")
        for j in range(8):
            a(f"v_max_f32 v{T+j}, 0, v{T+j}\nv_mul_f32 v{T+j}, v{T+j}, v{T+8+j}\nv_cvt_pk_bf16_f32 v{T+j}, v{T+j}, v{T+j}")
        a("v_cmp_gt_u32 vcc, 3, v59\ns_nop 1")
        for j in range(3, 8): a(f"v_cndmask_b32 v{T+j}, 0, v{T+j}, vcc")
        a(f"v_add_u32 v60, {HL}, v60\ns_mov_b64 exec, 15")
        a(f"ds_write_b128 v60, v[{T}:{T+3}]\nds_write_b128 v60, v[{T+4}:{T+7}] offset:16")
        a("s_mov_b64 exec, -1\ns_waitcnt lgkmcnt(0)")
        a(f"v_and_b32 v60, 7, v1\nv_lshlrev_b32 v60, 2, v60\nv_add_u32 v60, v60, v2\nv_lshlrev_b32 v60, 2, v60\nv_add_u32 v60, {HL}, v60")
        a("ds_read_b32 v61, v60")
        a("v_mul_u32_u24 v58, 1280, v2\nv_lshlrev_b32 v59, 4, v1\nv_add_u32 v58, v58, v59")
        a("s_mul_i32 s48, s54, 1280")
        for i in range(7):
            for cb in range(5):
                a(f"buffer_load_dwordx4 v[{T+4*cb}:{T+3+4*cb}], v58, s[40:43], s48 offen offset:{256*cb} nt")
            if i < 6: a(f"s_add_u32 s48, s48, {4*1280}")
            if i == 0: a("s_waitcnt lgkmcnt(0)")
            for jj in range(4):
                a(f"v_and_b32_dpp v{A0+4*(i&1)+jj}, v61, v{MK+jj} row_newbcast:{i} row_mask:0xf bank_mask:0xf")
            A = A0 + 4 * (i & 1)
            a("s_nop 1")
            for cb in range(5):
                acc = YA + 4 * cb
                cin = "0" if i == 0 else f"v[{acc}:{acc+3}]"
                a(f"s_waitcnt vmcnt({4-cb})")
                a(f"v_mfma_f32_16x16x32_bf16 v[{acc}:{acc+3}], v[{A}:{A+3}], v[{T+4*cb}:{T+3+4*cb}], {cin}")
            a("s_nop 7")

    def ffn(self):
        a = self.a
        self.c("---- FFN unit s2: 64 hidden columns for all four rows ----")
        X, M2, A0, DG, DU = 64, 44, 20, 28, 32
        self.srd(32, 76, 2211840); self.srd(36, 78, 2211840); self.srd(40, 80, 2211840)
        a("v_lshlrev_b32 v8, 2, v1\nv_add_u32 v8, v8, v2\nv_lshlrev_b32 v8, 1, v8")
        a("s_mov_b32 s48, 0\ns_mov_b32 s49, 1280\ns_mov_b32 s50, 2560\ns_mov_b32 s51, 3840")
        for b in range(4):
            for r in range(10):
                a(f"buffer_load_ushort v{X+10*b+r}, v8, s[8:11], s{48+b} offen offset:{128*r}")
        self.const64(60, 0xAAAAAAAAAAAAAAAA)
        a("v_mov_b32 v52, 0xffff\nv_mov_b32 v53, 0xffff0000\nv_cndmask_b32_e64 v52, v52, v53, s[60:61]")
        for jj in range(2):
            self.const64(60, 0x3333333333333333 << (2 * jj))
            a(f"v_cndmask_b32_e64 v{M2+jj}, 0, v52, s[60:61]")
        a(f"v_mul_u32_u24 v9, 640, v2\nv_lshlrev_b32 v52, 2, v1\nv_add_u32 v9, v9, v52")
        for b in range(4):
            a(f"s_waitcnt vmcnt({30-10*b})")
            self.layernorm(X + 10 * b, 10, 52, 52)
            for r in range(10):
                a(f"ds_write_b32 v9, v{X+10*b+r} offset:{XNL+2560*b+64*r}")
        a("v_lshrrev_b32 v9, 2, v1\nv_lshlrev_b32 v9, 2, v9\nv_add_u32 v9, v9, v2\nv_mul_u32_u24 v10, 640, v9")
        a(f"v_add_u32 v10, {XNL}, v10")
        a("v_mul_u32_u24 v11, 3456, v2\nv_lshlrev_b32 v12, 3, v1\nv_add_u32 v11, v11, v12")
        a("s_lshl_b32 s48, s2, 7")
        GUSTEP = 4 * 3456
        if self.ffn_exp == 2:
            a("v_lshlrev_b32 v11, 3, v0\ns_mul_i32 s48, s2, 81920")
            GUSTEP = 512
        G = self.ffn_gu
        def issue(u):
            u %= G
            a(f"buffer_load_dwordx2 v[{64+4*u}:{65+4*u}], v11, s[32:35], s48 offen nt")
            a(f"buffer_load_dwordx2 v[{66+4*u}:{67+4*u}], v11, s[36:39], s48 offen nt")
            a(f"s_add_u32 s48, s48, {GUSTEP}")
        a("s_waitcnt lgkmcnt(0)")
        for u in range(G): issue(u)
        for j in range(8): a(f"v_mov_b32 v{DG+j}, 0")
        def rnd(last):
            for i in range(4): a(f"ds_read_b128 v[{128+4*i}:{131+4*i}], v10 offset:{16*i}")
            a("v_add_u32 v10, 64, v10\ns_waitcnt lgkmcnt(0)")
            for u in range(16):
                A = A0 + 2 * (u & 1)
                r = 64 + 4 * (u % G)
                for jj in range(2): a(f"v_and_b32 v{A+jj}, v{128+u}, v{M2+jj}")
                a(f"s_waitcnt vmcnt({2*(G-1) if not last else 2*min(G-1, 15-u)})\ns_nop 0")
                if self.ffn_exp != 1:
                    a(f"v_mfma_f32_16x16x16_bf16 v[{DG}:{DG+3}], v[{A}:{A+1}], v[{r}:{r+1}], v[{DG}:{DG+3}]")
                    a(f"v_mfma_f32_16x16x16_bf16 v[{DU}:{DU+3}], v[{A}:{A+1}], v[{r+2}:{r+3}], v[{DU}:{DU+3}]")
                if not last or u + G < 16: issue(u)
        a("s_mov_b32 s49, 9")
        lp = self.label("gu")
        a(f"{lp}:")
        rnd(False)
        a(f"s_sub_u32 s49, s49, 1\ns_cmp_lg_u32 s49, 0\ns_cbranch_scc1 {lp}")
        rnd(True)
        DN = self.ffn_dn
        a("v_mul_u32_u24 v11, 1280, v2\nv_lshlrev_b32 v12, 3, v1\nv_add_u32 v11, v11, v12")
        a(f"s_mul_i32 s48, s2, {64*1280}")
        def issue2(u2):
            for cb in range(10):
                r = 64 + 2 * (10 * (u2 % DN) + cb)
                a(f"buffer_load_dwordx2 v[{r}:{r+1}], v11, s[40:43], s48 offen offset:{128*cb} nt")
            a(f"s_add_u32 s48, s48, {4*1280}")
        a("s_nop 7")
        for j in range(8): self.rbf16(DG + j)
        for uu in range(DN): issue2(uu)
        for j in range(4):
            a(f"v_max_f32 v{DG+j}, 0, v{DG+j}\nv_mul_f32 v{DG+j}, v{DG+j}, v{DU+j}\nv_cvt_pk_bf16_f32 v{DG+j}, v{DG+j}, v{DG+j}")
        a("v_lshlrev_b32 v12, 8, v2\nv_lshlrev_b32 v13, 2, v1\nv_add_u32 v12, v12, v13")
        for j in range(4): a(f"ds_write_b32 v12, v{DG+j} offset:{HL+64*j}")
        a(f"s_waitcnt lgkmcnt(0)\nv_lshlrev_b32 v12, 6, v9\nv_add_u32 v12, {HL}, v12")
        for i in range(4): a(f"ds_read_b128 v[{208+4*i}:{211+4*i}], v12 offset:{16*i}")
        for j in range(40): a(f"v_mov_b32 v{144+j}, 0")
        a("s_waitcnt lgkmcnt(0)")
        for u2 in range(16):
            A = A0 + 2 * (u2 & 1)
            for jj in range(2): a(f"v_and_b32 v{A+jj}, v{208+u2}, v{M2+jj}")
            for cb in range(10):
                r = 64 + 2 * (10 * (u2 % DN) + cb)
                left = (9 - cb) + 10 * (min(u2 + DN - 1, 15) - u2)
                a(f"s_waitcnt vmcnt({left})")
                if cb == 0: a("s_nop 0")
                a(f"v_mfma_f32_16x16x16_bf16 v[{144+4*cb}:{147+4*cb}], v[{A}:{A+1}], v[{r}:{r+1}], v[{144+4*cb}:{147+4*cb}]")
            if u2 + DN < 16: issue2(u2)
        a("v_mul_u32_u24 v12, 2560, v2\nv_lshlrev_b32 v13, 4, v1\nv_add_u32 v12, v12, v13")
        a(f"s_mul_i32 s48, s2, 10240\ns_add_u32 s48, s48, {Z_OFF}\ns_nop 7")
        for cb in range(10):
            a(f"buffer_store_dwordx4 v[{144+4*cb}:{147+4*cb}], v12, s[20:23], s48 offen offset:{256*cb} sc1")
        a("s_waitcnt vmcnt(0)\nv_mov_b32 v52, 1\ns_mov_b64 exec, 1")
        a("buffer_atomic_add v52, off, s[24:27], 0 offset:128 sc1")
        a("s_mov_b64 exec, -1")

    def build(self):
        a = self.a
        a("s_cmp_ge_u32 s2, 256\ns_cbranch_scc1 L_exit")
        if self.stamps: a("s_memrealtime s[96:97]")
        a("s_load_dwordx16 s[64:79], s[0:1], 0\ns_load_dwordx8 s[80:87], s[0:1], 64")
        a("v_lshrrev_b32 v1, 6, v0\nv_and_b32 v0, 63, v0\nv_readfirstlane_b32 s3, v1")
        if self.stamps:
            for k in range(8): a(f"s_mov_b32 s{88+k}, 0")
        a("s_and_b32 s40, s2, 7\ns_lshr_b32 s41, s2, 3")
        if self.mapping == "m4":
            a("s_lshr_b32 s43, s41, 1\ns_and_b32 s43, s43, 3\ns_lshl_b32 s45, s43, 3\ns_add_u32 s45, s45, s40")
            a("s_lshr_b32 s44, s41, 3\ns_and_b32 s46, s41, 1")
        elif self.mapping == "m6":
            a("s_lshr_b32 s43, s41, 1\ns_and_b32 s43, s43, 3\ns_add_u32 s45, s40, s43\ns_and_b32 s45, s45, 7\ns_lshl_b32 s43, s43, 3\ns_add_u32 s45, s45, s43")
            a("s_lshr_b32 s44, s41, 3\ns_and_b32 s46, s41, 1")
        elif self.mapping == "m7":
            a("s_lshr_b32 s43, s41, 1\ns_and_b32 s43, s43, 3\ns_lshl_b32 s45, s43, 3\ns_xor_b32 s43, s40, 1\ns_add_u32 s45, s45, s43")
            a("s_lshr_b32 s44, s41, 3\ns_and_b32 s46, s41, 1")
        elif self.mapping == "m8":
            a("s_lshr_b32 s43, s41, 1\ns_and_b32 s43, s43, 3\ns_lshl_b32 s45, s40, 2\ns_add_u32 s45, s45, s43")
            a("s_lshr_b32 s44, s41, 3\ns_and_b32 s46, s41, 1")
        elif self.mapping == "m3":
            a("s_and_b32 s43, s41, 3\ns_lshl_b32 s45, s43, 3\ns_add_u32 s45, s45, s40")
            a("s_lshr_b32 s44, s41, 2\ns_and_b32 s44, s44, 3\ns_lshr_b32 s46, s41, 4")
        elif self.mapping == "n":
            a("s_and_b32 s46, s2, 1\ns_lshr_b32 s45, s2, 1\ns_and_b32 s45, s45, 31\ns_lshr_b32 s44, s2, 6")
        a("s_lshl_b32 s47, s44, 5\ns_add_u32 s47, s47, s45\ns_lshl_b32 s47, s47, 1\ns_add_u32 s47, s47, s46")
        a("s_cmp_ge_u32 s3, 4\ns_cbranch_scc1 L_helper")
        if self.Rsplit:
            if self.splitx: a("s_and_b32 s18, s2, 1\ns_cmp_eq_u32 s18, 0\ns_cbranch_scc0 L_streamB")
            else: a("s_cmp_eq_u32 s46, 0\ns_cbranch_scc0 L_streamB")
            self.R = self.Rsplit[0]; self.stream()
            a("L_streamB:")
            self.R = self.Rsplit[1]; self.stream()
        else:
            self.stream()
        a("L_helper:")
        self.helper()
        a("L_exit:\ns_endpgm")
        return "\n".join(self.L)

HEADER = open("parallel_sum__gqa_block_cached__glu_gated_reglu__decode.s.ref").read().split("; Override launch")[0]

def full_source(g, nfv=256):
    body = g.build()
    s = HEADER
    s += "; Override launch geometry by editing the next line (default: block=256,\n"
    s += f"; @launch grid=(256,1,1) block=(512,1,1) lds={LDS_SIZE}\n"
    s += f""".amdgcn_target "amdgcn-amd-amdhsa--gfx950"
.text
.globl {NAME}
.p2align 8
.type {NAME},@function
{NAME}:
{body}
.section .rodata,"a"
.p2align 6
.amdhsa_kernel {NAME}
  .amdhsa_next_free_vgpr {nfv}
  .amdhsa_next_free_sgpr 102
  .amdhsa_accum_offset 256
  .amdhsa_group_segment_fixed_size 0
  .amdhsa_kernarg_size 96
  .amdhsa_user_sgpr_count 2
  .amdhsa_user_sgpr_kernarg_segment_ptr 1
  .amdhsa_system_sgpr_workgroup_id_x 1
.end_amdhsa_kernel
"""
    return s

if __name__ == "__main__":
    import argparse
    p = argparse.ArgumentParser()
    p.add_argument("-R", type=int, default=5); p.add_argument("--PG", type=int, default=1)
    p.add_argument("--stamps", action="store_true"); p.add_argument("--map", default="m4")
    p.add_argument("-o", default="/dev/stdout")
    x = p.parse_args()
    g = Gen(R=x.R, PG=x.PG, stamps=x.stamps, mapping=x.map)
    open(x.o, "w").write(full_source(g))
```

```python
import struct, sys
NAME = "parallel_sum__gqa_block_cached__glu_gated_reglu__decode_kernel"

def f2h(x):
    return "0x%08x" % struct.unpack("<I", struct.pack("<f", x))[0]

LOG2E = f2h(1.4426950408889634)
SCALE = f2h(128 ** -0.5)
INV640 = f2h(1.0 / 640.0)
EPS = f2h(1e-5)

QP, MW, FW, OP, YP, SC, XNL, HL, LDS_SIZE = 0, 2048, 2064, 4096, 6144, 16384, 32768, 43008, 45056
Y_OFF, ML_OFF, Z_OFF, PS_OFF = 0x100000, 0x1A0000, 0x1B0000, 0x280000
GL_OFF = 0x40000
P_OFF = Z_OFF
PRG, MODE = 3072, 2304
F7 = 2096
SPIN_MAX = 200000

class Gen:
    def __init__(self, R=5, PG=1, stamps=False, mapping="m4", sleep=True, b0=True, rot=True, pre=0, wo_win=2, ffn_gu=8, ffn_dn=2, skip_wo=False, skip_ffn=False, wo_flags='nt', wo_rot=False, wq_flags='', early=False, ffn_exp=0, Rsplit=None, ctl=False, Rlo=5, Rhi=8, csh=11, cbias=1024, pstep=4, cthr=896, cloc=True, mld='nt', mst='', f2=False, dbgst=False, kst=None, vst=None, splitx=False, gx=0, gsh=0, xclr=0, xzc=0, clw='w4', psp=0, flag='at', qo=0, b0at=39, fe=0, yp=1):
        self.xclr, self.xzc = xclr, xzc
        self.clw, self.psp, self.flag = clw, psp, flag
        self.qo, self.b0at, self.fe, self.yp = qo, b0at, fe, yp
        self.gx, self.gsh = gx, gsh
        self.splitx = splitx
        self.kst, self.vst = kst, vst
        self.f2 = f2
        self.dbgst = dbgst
        if dbgst: stamps = True
        self.cloc, self.mld, self.mst = cloc, mld, mst
        self.Rsplit = Rsplit
        self.ctl, self.Rlo, self.Rhi, self.csh, self.cbias, self.pstep, self.cthr = ctl, Rlo, Rhi, csh, cbias, pstep, cthr
        self.R, self.PG, self.stamps, self.mapping, self.sleep = R, PG, stamps, mapping, sleep
        self.skip_wo, self.skip_ffn, self.wo_flags, self.wo_rot = skip_wo, skip_ffn, wo_flags, wo_rot
        self.wq_flags, self.early, self.ffn_exp = wq_flags, early, ffn_exp
        self.b0, self.rot, self.pre, self.wo_win, self.ffn_gu, self.ffn_dn = b0, rot, pre, wo_win, ffn_gu, ffn_dn
        self.L = []
        self.uid = 0
        self.block = 512
        self.lds = LDS_SIZE
    def a(self, s):
        for line in s.split("\n"):
            line = line.strip()
            if line: self.L.append("    " + line if not line.endswith(":") else line)
    def c(self, s):
        self.L.append("    ; " + s)
    def label(self, p):
        self.uid += 1
        return f"L_{p}_{self.uid}"
    def stamp(self, k):
        if self.stamps:
            self.a(f"s_memrealtime s[98:99]\ns_waitcnt lgkmcnt(0)\ns_mov_b32 s{88+k}, s98")
    def stamp_flush(self, role="s"):
        if not self.stamps: return
        a = self.a
        if self.dbgst:
            skip = self.label("nodbg")
            a(f"s_and_b32 s56, s3, 3\ns_cmp_eq_u32 s56, 0\ns_cbranch_scc0 {skip}")
            if role == "s": a(f"s_lshr_b32 s56, s2, 3\ns_and_b32 s56, s56, 3\ns_cmp_eq_u32 s56, 0\ns_cbranch_scc0 {skip}")
            else: a(f"s_cmp_lt_u32 s2, 80\ns_cbranch_scc0 {skip}")
            a("s_mov_b32 s56, s84\ns_mov_b32 s57, s85\ns_mov_b32 s58, 256\ns_mov_b32 s59, 0x20000")
            a("s_mov_b64 exec, 1")
            def at(op, word, sreg, inv=False, low=False):
                a(f"v_mov_b32 v251, s{sreg}")
                if inv: a("v_not_b32 v251, v251")
                if low: a("v_and_b32 v251, 0xfffff, v251")
                a(f"buffer_atomic_{op} v251, off, s[56:59], 0 offset:{4*word} sc1\ns_nop 1")
            at("umax", 1, 96, inv=True); at("umax", 2, 96)
            if role == "s":
                at("umax", 3, 89, inv=True); at("umax", 4, 89); at("umax", 5, 90, inv=True); at("umax", 6, 90)
                at("umax", 7, 91, inv=True); at("umax", 8, 91); at("add", 11, 91, low=True); at("add", 12, 90, low=True)
            else:
                at("umax", 9, 93); at("umax", 10, 92); at("umax", 13, 88, inv=True); at("umax", 14, 88)
            a("s_mov_b64 exec, -1")
            a(f"{skip}:")
            return
        a("s_mov_b32 s56, s86\ns_mov_b32 s57, s87\ns_mov_b32 s58, 0x100000\ns_mov_b32 s59, 0x20000")
        a("s_lshl_b32 s60, s2, 3\ns_add_u32 s60, s60, s3\ns_lshl_b32 s60, s60, 6")
        a("s_mov_b64 exec, 1")
        a("v_mov_b32 v250, 0\ns_mov_b32 s95, s96")
        for k in range(8):
            a(f"v_mov_b32 v251, s{88+k}")
            a(f"buffer_store_dword v251, v250, s[56:59], s60 offen offset:{4*k}")
            a("s_nop 1")
        a("s_mov_b64 exec, -1")

    def srd(self, base, ptr, nrec):
        self.a(f"s_mov_b32 s{base}, s{ptr}\ns_mov_b32 s{base+1}, s{ptr+1}\ns_mov_b32 s{base+2}, {hex(nrec)}\ns_mov_b32 s{base+3}, 0x20000")
    def const64(self, sreg, val):
        self.a(f"s_mov_b32 s{sreg}, {hex(val & 0xffffffff)}\ns_mov_b32 s{sreg+1}, {hex(val >> 32)}")
    def masks16x32(self, m0, tmp):
        a = self.a
        self.const64(60, 0xAAAAAAAAAAAAAAAA)
        a(f"v_mov_b32 v{tmp}, 0xffff\nv_mov_b32 v{tmp+1}, 0xffff0000")
        a(f"v_cndmask_b32_e64 v{tmp}, v{tmp}, v{tmp+1}, s[60:61]")
        for jj in range(4):
            self.const64(60, 0x0303030303030303 << (2 * jj))
            a(f"v_cndmask_b32_e64 v{m0+jj}, 0, v{tmp}, s[60:61]")
    def wave_reduce(self, v, op, sdst):
        a = self.a
        for r in (8, 4, 2, 1):
            a(f"{op}_dpp v{v}, v{v}, v{v} row_ror:{r} row_mask:0xf bank_mask:0xf\ns_nop 1")
        a(f"{op}_dpp v{v}, v{v}, v{v} row_bcast:15 row_mask:0xa bank_mask:0xf\ns_nop 1")
        a(f"{op}_dpp v{v}, v{v}, v{v} row_bcast:31 row_mask:0xc bank_mask:0xf\ns_nop 1")
        a(f"v_readlane_b32 s{sdst}, v{v}, 63\ns_nop 1")
    def rbf16(self, v):
        self.a(f"v_cvt_pk_bf16_f32 v{v}, v{v}, v{v}\nv_and_b32 v{v}, 0xffff0000, v{v}")
    def layernorm(self, xr, n_out, t0, s0):
        a = self.a
        for r in range(10): a(f"v_lshlrev_b32 v{xr+r}, 16, v{xr+r}")
        a(f"v_add_f32 v{t0}, v{xr}, v{xr+1}\nv_add_f32 v{t0+1}, v{xr+2}, v{xr+3}")
        for r in range(4, 10, 2):
            a(f"v_add_f32 v{t0}, v{t0}, v{xr+r}\nv_add_f32 v{t0+1}, v{t0+1}, v{xr+r+1}")
        a(f"v_add_f32 v{t0}, v{t0}, v{t0+1}\ns_nop 1")
        self.wave_reduce(t0, "v_add_f32", s0)
        a(f"v_mov_b32 v{t0}, {INV640}\nv_mul_f32 v{t0}, s{s0}, v{t0}")
        a(f"v_sub_f32 v{t0+1}, v{xr}, v{t0}\nv_mul_f32 v{t0+2}, v{t0+1}, v{t0+1}")
        for r in range(1, 10):
            a(f"v_sub_f32 v{t0+1}, v{xr+r}, v{t0}\nv_fmac_f32 v{t0+2}, v{t0+1}, v{t0+1}")
        a("s_nop 1")
        self.wave_reduce(t0 + 2, "v_add_f32", s0 + 1)
        a(f"v_mov_b32 v{t0+2}, {INV640}\nv_mul_f32 v{t0+2}, s{s0+1}, v{t0+2}")
        self.rbf16(t0); self.rbf16(t0 + 2)
        a(f"v_add_f32 v{t0+2}, {EPS}, v{t0+2}")
        self.rbf16(t0 + 2)
        a(f"v_sqrt_f32 v{t0+2}, v{t0+2}\ns_nop 0")
        self.rbf16(t0 + 2)
        a(f"v_rcp_f32 v{t0+2}, v{t0+2}\ns_nop 0")
        for r in range(n_out):
            a(f"v_sub_f32 v{xr+r}, v{xr+r}, v{t0}")
            self.rbf16(xr + r)
            a(f"v_mul_f32 v{xr+r}, v{xr+r}, v{t0+2}")
            a(f"v_cvt_pk_bf16_f32 v{xr+r}, v{xr+r}, v{xr+r}")
    def spin_head(self, name, scnt):
        l = self.label(name); d = self.label(name + "_done")
        self.a(f"s_mov_b32 s{scnt}, {SPIN_MAX}\n{l}:")
        return l, d
    def reduce_hq(self, v0, n, t):
        a = self.a
        a("s_nop 1")
        for i in range(n): a(f"v_add_f32_dpp v{v0+i}, v{v0+i}, v{v0+i} row_ror:8 row_mask:0xf bank_mask:0xf")
        for sw in ("v_permlane16_swap_b32", "v_permlane32_swap_b32"):
            for i in range(n): a(f"v_mov_b32 v{t+i}, v{v0+i}")
            a("s_nop 1")
            for i in range(n): a(f"{sw} v{t+i}, v{v0+i}")
            a("s_nop 1")
            for i in range(n): a(f"v_add_f32 v{v0+i}, v{v0+i}, v{t+i}")

    def stream(self):
        a, R, PG = self.a, self.R, self.PG
        vK, vV, vSW, vSR, vMax, vS, vT0, vT1, vP, vSn, vE = 1, 2, 3, 4, 5, 6, 7, 8, 9, 10, 11
        MK, AQ, D, ACC, PA = 12, 16, 32, 40, 44
        RING = 64
        TQ = 192
        self.c("==== streaming waves (0..3): K then V of this workgroup's 4096 keys ====")
        a(f"v_and_b32 v7, 15, v0\nv_lshrrev_b32 v8, 4, v0")
        a(f"v_lshrrev_b32 v9, 2, v7\nv_lshlrev_b32 v{vK}, 8, v9")
        a(f"v_lshlrev_b32 v10, 6, v8\nv_or_b32 v{vK}, v{vK}, v10")
        a(f"v_and_b32 v10, 3, v7\nv_lshlrev_b32 v10, 4, v10\nv_or_b32 v{vK}, v{vK}, v10")
        a(f"v_lshlrev_b32 v{vV}, 4, v0")
        a("s_lshl_b32 s16, s47, 20\ns_lshl_b32 s17, s3, 12\ns_add_u32 s16, s16, s17\ns_mov_b32 s17, s16")
        a("s_waitcnt lgkmcnt(0)")
        self.stamp(6)
        self.srd(8, 66, 0x10000000)
        self.srd(12, 68, 0x10000000)
        if self.ctl: a("s_add_u32 s14, s47, 1\ns_lshl_b32 s14, s14, 20")
        if self.clw == 's':
            self.srd(24, 86, 0x40000000)
            l3, ld = self.label("clr3"), self.label("clrd")
            a("v_mov_b32 v56, -1\nv_mov_b32 v57, -1\nv_mov_b32 v58, -1\nv_mov_b32 v59, -1\nv_lshlrev_b32 v60, 4, v0")
            a(f"s_cmp_eq_u32 s3, 3\ns_cbranch_scc1 {l3}")
            a(f"s_mul_i32 s48, s47, 2560\ns_add_u32 s48, s48, {Y_OFF}\ns_lshl_b32 s49, s3, 10\ns_add_u32 s48, s48, s49")
            a("s_cmp_eq_u32 s3, 2\ns_cselect_b32 exec_hi, 0, -1")
            a("buffer_store_dwordx4 v[56:59], v60, s[24:27], s48 offen sc1")
            a(f"s_mov_b64 exec, -1\ns_branch {ld}")
            a(f"{l3}:")
            a(f"s_lshl_b32 s48, s47, 7\ns_add_u32 s48, s48, {ML_OFF}\ns_mov_b64 exec, 1")
            a("buffer_store_dwordx2 v[56:57], v60, s[24:27], s48 offen sc1")
            if self.ctl:
                self.slot_addr(49, 50)
                a(f"v_mov_b32 v58, 0\nbuffer_store_dword v58, v60, s[24:27], s49 offen {'' if self.psp else 'sc1'}")
            a("s_mov_b64 exec, -1")
            a(f"{ld}:")
            if self.pre == 0 and self.b0 and self.b0at == 39: a("s_waitcnt vmcnt(0)")
        st = {"issued": 0}
        def slot(n):
            if n < 16 * PG: return RING + 4 * n
            return RING + 4 * (n % 16)
        def issue(n):
            t = n & 3
            if n < 256:
                a(f"buffer_load_dwordx4 v[{slot(n)}:{slot(n)+3}], v{vK}, s[8:11], s16 offen offset:{t*1024} nt")
                if t == 3: a("s_add_u32 s16, s16, 0x4000")
            else:
                a(f"buffer_load_dwordx4 v[{slot(n)}:{slot(n)+3}], v{vV}, s[12:15], s17 offen offset:{t*1024} nt")
                if t == 3: a("s_add_u32 s17, s17, 0x4000")
        for n in range(16 * PG):
            if self.b0 and n == self.pre:
                if self.clw == 's' and self.pre and self.b0at == 39: a(f"s_waitcnt vmcnt({self.pre})")
                a("s_barrier")
            issue(n)
        self.stamp(0)
        self.masks16x32(MK, 7)
        self.const64(48, 0x2222222222222222); self.const64(50, 0x4444444444444444); self.const64(52, 0x8888888888888888)
        a("v_and_b32 v7, 15, v0\nv_lshrrev_b32 v8, 4, v0\nv_lshrrev_b32 v9, 2, v7\nv_and_b32 v10, 3, v7")
        a(f"v_lshlrev_b32 v9, 4, v9\nv_lshlrev_b32 v{vSW}, 2, v8\nv_add_u32 v{vSW}, v{vSW}, v9\nv_add_u32 v{vSW}, v{vSW}, v10")
        a(f"v_lshlrev_b32 v{vSW}, 2, v{vSW}")
        a(f"s_lshl_b32 s18, s3, 12\ns_add_u32 s18, s18, {SC}")
        a(f"v_add_u32 v{vSW}, s18, v{vSW}")
        a(f"v_lshlrev_b32 v{vSR}, 2, v0\nv_add_u32 v{vSR}, s18, v{vSR}")
        a(f"v_mov_b32 v{vMax}, 0xff800000")
        a(f"v_lshlrev_b32 v9, 2, v8\nv_add_u32 v9, v9, v10\nv_lshlrev_b32 v9, 5, v9")
        vProg, vPA, vMode, vMA = 52, 53, 54, 55
        if self.ctl:
            a(f"s_lshl_b32 s21, s3, 8\ns_add_u32 s21, s21, {PRG}\nv_lshlrev_b32 v{vPA}, 2, v0\nv_add_u32 v{vPA}, s21, v{vPA}")
            a(f"s_lshl_b32 s21, s3, 2\ns_add_u32 s21, s21, {MODE}\nv_mov_b32 v{vMA}, s21")
            a(f"v_mov_b32 v{vProg}, 0\nv_mov_b32 v{vMode}, {R}")
            a(f"ds_write_b32 v{vPA}, v{vProg}\nds_write_b32 v{vMA}, v{vMode}\ns_waitcnt lgkmcnt(0)")
        if self.clw == 's' and (not self.b0 or self.b0at != 39): a(f"s_waitcnt vmcnt({16*PG})")
        a("s_barrier")
        for hw in range(4):
            a(f"ds_read_b128 v[{TQ+8*hw}:{TQ+8*hw+3}], v9 offset:{QP+512*hw}")
            a(f"ds_read_b128 v[{TQ+8*hw+4}:{TQ+8*hw+7}], v9 offset:{QP+512*hw+16}")
        a("s_waitcnt lgkmcnt(0)")
        for j in range(8): a(f"v_add_f32 v{TQ+j}, v{TQ+j}, v{TQ+8+j}\nv_add_f32 v{TQ+16+j}, v{TQ+16+j}, v{TQ+24+j}")
        for j in range(8): a(f"v_add_f32 v{TQ+j}, v{TQ+j}, v{TQ+16+j}")
        for jj in range(4): a(f"v_cvt_pk_bf16_f32 v{TQ+8+jj}, v{TQ+2*jj}, v{TQ+2*jj+1}")
        for t in range(4):
            self.const64(60, 0x000F000F000F000F << (4 * t))
            for jj in range(4): a(f"v_cndmask_b32_e64 v{AQ+4*t+jj}, 0, v{TQ+8+jj}, s[60:61]")
        a("s_nop 1")
        self.stamp(1)

        issued = [16 * PG]
        def kgroup(G, mode):
            for s in range(16):
                n = 16 * G + s
                tau, t = s >> 2, s & 3
                a(f"s_waitcnt vmcnt({issued[0]-1-n})")
                cin = "0" if t == 0 else f"v[{D}:{D+3}]"
                mf = f"v_mfma_f32_16x16x32_bf16 v[{D}:{D+3}], v[{AQ+4*t}:{AQ+4*t+3}], v[{slot(n)}:{slot(n)+3}], {cin}"
                nxt = None
                if n < 16 * PG:
                    if n < R: nxt = 16 * PG + n
                else:
                    nxt = n + R
                early = self.early and nxt is not None and slot(nxt) != slot(n)
                if not early: a(mf)
                if nxt is not None:
                    assert nxt == issued[0], (n, nxt, issued)
                    issue(nxt); issued[0] += 1
                if early: a(mf)
                if t == 3:
                    a("s_nop 7")
                    a(f"v_mov_b32_dpp v{vT0}, v{D} quad_perm:[0,0,0,0] row_mask:0xf bank_mask:0xf")
                    a(f"v_mov_b32_dpp v{vT1}, v{D+2} quad_perm:[2,2,2,2] row_mask:0xf bank_mask:0xf")
                    a("s_nop 0")
                    a(f"v_add_f32_dpp v{vT0}, v{D+1}, v{vT0} quad_perm:[1,1,1,1] row_mask:0xf bank_mask:0xf")
                    a(f"v_add_f32_dpp v{vT1}, v{D+3}, v{vT1} quad_perm:[3,3,3,3] row_mask:0xf bank_mask:0xf")
                    if tau == 0:
                        a(f"v_add_f32 v{vS}, v{vT0}, v{vT1}")
                    else:
                        a(f"v_add_f32 v{vT0}, v{vT0}, v{vT1}")
                        a(f"v_cndmask_b32_e64 v{vS}, v{vS}, v{vT0}, s[{46+2*tau}:{47+2*tau}]")
            self.rbf16(vS)
            a(f"v_mul_f32 v{vS}, {SCALE}, v{vS}")
            self.rbf16(vS)
            a(f"v_max_f32 v{vMax}, v{vMax}, v{vS}")
            a(f"ds_write_b32 v{vSW}, v{vS}")
            a(f"v_add_u32 v{vSW}, 0x100, v{vSW}")
        for G in range(PG): kgroup(G, "first")
        a(f"s_mov_b32 s19, {15-PG}")
        lk = self.label("K")
        a(f"{lk}:")
        save = issued[0]
        kgroup(PG, "steady")
        if self.kst and self.stamps:
            a("s_memrealtime s[98:99]\ns_waitcnt lgkmcnt(0)")
            for slot_, G_ in zip((4, 5), self.kst):
                a(f"s_cmp_eq_u32 s19, {15-G_}\ns_cselect_b32 s{88+slot_}, s98, s{88+slot_}")
        a(f"s_sub_u32 s19, s19, 1\ns_cmp_lg_u32 s19, 0\ns_cbranch_scc1 {lk}")
        issued[0] = save + 16 * (15 - PG)
        kgroup(15, "last")
        a("s_nop 1")
        self.wave_reduce(vMax, "v_max_f32", 20)
        a(f"v_mov_b32 v{vMax}, s20")
        a(f"s_lshl_b32 s18, s3, 2\ns_add_u32 s18, s18, {MW}\nv_mov_b32 v7, s18")
        a(f"ds_write_b32 v7, v{vMax}")
        a(f"ds_read_b32 v{vSn}, v{vSR}\nv_add_u32 v{vSR}, 0x100, v{vSR}")
        for j in range(4): a(f"v_mov_b32 v{ACC+j}, 0")
        self.stamp(2)
        def abuild(s):
            tau, t = s >> 2, s & 3
            for jj in range(4):
                a(f"v_and_b32_dpp v{PA+4*(s&1)+jj}, v{vP}, v{MK+jj} row_newbcast:{4*t+tau} row_mask:0xf bank_mask:0xf")
        def vgroup(G, last):
            a("s_waitcnt lgkmcnt(0)")
            a(f"v_sub_f32 v{vE}, v{vSn}, v{vMax}\nv_mul_f32 v{vE}, {LOG2E}, v{vE}\nv_exp_f32 v{vE}, v{vE}")
            if not last:
                a(f"ds_read_b32 v{vSn}, v{vSR}\nv_add_u32 v{vSR}, 0x100, v{vSR}")
            else:
                a("s_nop 0")
            a(f"v_cvt_pk_bf16_f32 v{vP}, v{vE}, v{vE}\ns_nop 1")
            abuild(0)
            for s in range(16):
                n = 256 + 16 * G + s
                A = PA + 4 * (s & 1)
                mf = f"v_mfma_f32_16x16x32_bf16 v[{ACC}:{ACC+3}], v[{A}:{A+3}], v[{slot(n)}:{slot(n)+3}], v[{ACC}:{ACC+3}]"
                nxt = n + R
                early = self.early and nxt < 512
                a(f"s_waitcnt vmcnt({issued[0]-1-n})")
                if not early: a("s_nop 0\n" + mf)
                if nxt < 512:
                    assert nxt == issued[0]
                    issue(nxt); issued[0] += 1
                if early: a(mf)
                if s < 15: abuild(s + 1)
        if not self.ctl:
            a("s_mov_b32 s19, 15")
            lv = self.label("V")
            a(f"{lv}:")
            save = issued[0]
            vgroup(0, False)
            a(f"s_sub_u32 s19, s19, 1\ns_cmp_lg_u32 s19, 0\ns_cbranch_scc1 {lv}")
            issued[0] = save + 16 * 15
            vgroup(15, True)
        else:
            def vissue(n):
                t = n & 3
                a(f"buffer_load_dwordx4 v[{RING+4*(n%16)}:{RING+4*(n%16)+3}], v{vV}, s[12:15], s17 offen offset:{t*1024} nt")
                if t == 3: a("s_add_u32 s17, s17, 0x4000")
            def vhead():
                a("s_waitcnt lgkmcnt(0)")
                a(f"v_sub_f32 v{vE}, v{vSn}, v{vMax}\nv_mul_f32 v{vE}, {LOG2E}, v{vE}\nv_exp_f32 v{vE}, v{vE}")
                a(f"ds_read_b32 v{vSn}, v{vSR}\nv_add_u32 v{vSR}, 0x100, v{vSR}")
                a(f"v_cvt_pk_bf16_f32 v{vP}, v{vE}, v{vE}\ns_nop 1")
                abuild(0)
            def vstep(s, Rw, Ri):
                A = PA + 4 * (s & 1)
                a(f"s_waitcnt vmcnt({Rw-1})\ns_nop 0")
                a(f"v_mfma_f32_16x16x32_bf16 v[{ACC}:{ACC+3}], v[{A}:{A+3}], v[{RING+4*s}:{RING+4*s+3}], v[{ACC}:{ACC+3}]")
                if Ri is not None: vissue(s + Ri)
                if s < 15: abuild(s + 1)
                if (s + 1) % self.pstep == 0:
                    a(f"v_add_u32 v{vProg}, {self.pstep}, v{vProg}\nds_write_b32 v{vPA}, v{vProg}")
                if s == 13: a(f"ds_read_b32 v{vMode}, v{vMA}")
            uid = self.label("vc")
            modes = list(range(self.Rlo, self.Rhi + 1))
            assert R in modes
            a(f"s_mov_b32 s19, 16\ns_branch {uid}_top{R}")
            for m in modes:
                a(f"{uid}_top{m}:")
                vhead(); vstep(0, m, m)
                a(f"{uid}_s1_{m}:")
                for s in range(1, 16): vstep(s, m, m)
                a(f"s_sub_u32 s19, s19, 1\ns_cmp_eq_u32 s19, 0\ns_cbranch_scc1 {uid}_done")
                a(f"s_waitcnt lgkmcnt(0)\nv_readfirstlane_b32 s21, v{vMode}")
                if m < self.Rhi: a(f"s_cmp_gt_u32 s21, {m}\ns_cbranch_scc1 {uid}_up{m}")
                if m > self.Rlo: a(f"s_cmp_lt_u32 s21, {m}\ns_cbranch_scc1 {uid}_dn{m}")
                a(f"s_branch {uid}_top{m}")
                if m < self.Rhi:
                    a(f"{uid}_up{m}:")
                    vissue(m)
                    a(f"s_branch {uid}_top{m+1}")
                if m > self.Rlo:
                    a(f"{uid}_dn{m}:")
                    vhead(); vstep(0, m, None)
                    a(f"s_branch {uid}_s1_{m-1}")
            a(f"{uid}_done:\ns_waitcnt vmcnt(0)")
        a("v_and_b32 v7, 15, v0\nv_lshrrev_b32 v8, 4, v0\nv_and_b32 v8, 1, v8\nv_lshlrev_b32 v7, 5, v7\nv_lshlrev_b32 v8, 4, v8\nv_add_u32 v7, v7, v8")
        a(f"s_lshl_b32 s18, s3, 9\ns_add_u32 s18, s18, {OP}\nv_add_u32 v7, s18, v7")
        a(f"s_nop 1\nds_write_b128 v7, v[{ACC}:{ACC+3}]\ns_waitcnt lgkmcnt(0)")
        self.stamp(3)
        a("s_barrier")
        self.stamp_flush()
        a("s_endpgm")

    def helper(self):
        a = self.a
        MK, A0, D, YA, W = 4, 20, 28, 32, 64
        self.c("==== helper waves (4..7): q projection, FFN, softmax denominators, output projection, final sum ====")
        a("s_sub_u32 s5, s3, 4")
        HW = 5
        self.HW = HW
        a("v_and_b32 v1, 15, v0\nv_lshrrev_b32 v2, 4, v0")
        a(f"s_mul_i32 s48, s{HW}, 40")
        a("s_lshl_b32 s52, s44, 1\ns_add_u32 s52, s52, s46\ns_mul_i32 s52, s52, 5" if self.rot else "s_mov_b32 s52, 0")
        a("s_mul_i32 s49, s44, 1280")
        a("v_lshlrev_b32 v3, 13, v2\nv_lshlrev_b32 v9, 4, v1\nv_add_u32 v3, v3, v9")
        a(f"s_mul_i32 s53, s{HW}, {160*8192}\ns_lshl_b32 s51, s45, 8\ns_add_u32 s53, s53, s51")
        a(f"s_lshl_b32 s50, s52, 15\ns_add_u32 s50, s50, s53\ns_add_u32 s51, s53, {40*32768}")
        a("s_waitcnt lgkmcnt(0)")
        self.stamp(6)
        self.srd(8, 64, 5120)
        self.srd(12, 70, 5242880)
        for r in range(10):
            t = 52 + (r & 3)
            a(f"v_add_u32 v{t}, {16*r}, v1")
            if r <= 2:
                a(f"v_add_u32 v8, s52, v{t}\nv_subrev_u32 v9, 40, v8\nv_min_u32 v8, v8, v9\nv_add_u32 v8, s48, v8")
            if r >= 2:
                a(f"v_add_u32 v{t}, s48, v{t}\nv_subrev_u32 v9, 160, v{t}\nv_min_u32 v{t}, v{t}, v9")
            if r < 2:
                a(f"v_mov_b32 v{t}, v8")
            elif r == 2:
                a(f"v_cmp_gt_u32 vcc, 8, v1\ns_nop 1\nv_cndmask_b32 v{t}, v{t}, v8, vcc")
            a(f"v_lshlrev_b32 v{t}, 2, v{t}\nv_add_u32 v{t}, v{t}, v2\nv_lshlrev_b32 v{t}, 1, v{t}")
            a(f"buffer_load_ushort v{10+r}, v{t}, s[8:11], s49 offen")
        def wq_issue(u):
            a(f"buffer_load_dwordx4 v[{W+4*u}:{W+4*u+3}], v3, s[12:15], s50 offen {self.wq_flags}")
            if u < 39: a("s_add_u32 s50, s50, 0x8000\ns_cmp_eq_u32 s50, s51\ns_cselect_b32 s50, s53, s50")
        N1 = self.qo if self.qo else 40
        for u in range(N1):
            wq_issue(u)
            if self.qo and u == self.b0at:
                if self.b0: a("s_barrier")
                self.stamp(0)
        if not self.qo:
            if self.b0: a("s_barrier")
            self.stamp(0)
        self.masks16x32(MK, 8)
        a(f"v_mov_b32 v52, -1\nv_mov_b32 v53, -1\nv_mov_b32 v54, -1\nv_mov_b32 v55, -1\nv_mov_b32 v9, {MW}\nds_write_b128 v9, v[52:55]")
        if self.fe: a(f"ds_write_b32 v9, v52 offset:{F7-MW}")
        self.srd(16, 72, 5242880)
        self.srd(20, 86, 0x40000000)
        self.srd(24, 84, 256)
        self.srd(28, 82, 5120)
        a(f"s_waitcnt vmcnt({N1})")
        self.layernorm(10, 3, 54 if self.qo else 52, 54 if self.qo else 52)
        def abuild(src, u, buf, MKr=MK):
            for jj in range(4):
                a(f"v_and_b32_dpp v{A0+4*buf+jj}, v{src}, v{MKr+jj} row_newbcast:{u} row_mask:0xf bank_mask:0xf")
        a("s_nop 1")
        abuild(10, 0, 0)
        for u in range(40):
            if u + N1 < 40:
                wq_issue(u + N1)
                if u + N1 == self.b0at:
                    if self.b0: a("s_barrier")
                    self.stamp(0)
            if u < 39: abuild(10 + ((u + 1) >> 4), (u + 1) & 15, (u + 1) & 1)
            else: a("s_nop 1")
            a(f"s_waitcnt vmcnt({min(N1, 39-u)})")
            A = A0 + 4 * (u & 1)
            cin = "0" if u == 0 else f"v[{D}:{D+3}]"
            a(f"v_mfma_f32_16x16x32_bf16 v[{D}:{D+3}], v[{A}:{A+3}], v[{W+4*u}:{W+4*u+3}], {cin}")
        a("v_lshlrev_b32 v8, 5, v1\nv_and_b32 v9, 1, v2\nv_lshlrev_b32 v9, 4, v9\nv_add_u32 v8, v8, v9")
        a(f"s_lshl_b32 s48, s{HW}, 9\nv_add_u32 v9, s48, v8")
        a(f"s_nop 3\nds_write_b128 v9, v[{D}:{D+3}] offset:{QP}\ns_waitcnt lgkmcnt(0)")
        a("s_barrier")
        self.stamp(1)
        l_wo = self.label("wo")
        l_w5 = self.label("w5") if self.clw == 's' else l_wo
        if self.fe:
            a(f"s_and_b32 s48, s{HW}, 1\ns_cmp_eq_u32 s48, 1\ns_cbranch_scc0 {l_wo}")
            a(f"s_and_b32 s48, s2, 1\ns_cmp_eq_u32 s48, {1 if self.fe == 3 else 0}\ns_cbranch_scc0 {l_w5}\ns_cmp_lt_u32 s2, 216\ns_cbranch_scc0 {l_w5}")
        else:
            a(f"s_cmp_eq_u32 s{HW}, 1\ns_cbranch_scc0 {l_wo}\ns_cmp_lt_u32 s2, {216 if self.f2 else 27}\ns_cbranch_scc0 {l_w5}")
        if self.skip_ffn:
            a("v_mov_b32 v52, 1\ns_mov_b64 exec, 1\nbuffer_atomic_add v52, off, s[24:27], 0 offset:128 sc1\ns_mov_b64 exec, -1")
        elif self.f2:
            self.ffn1()
        else:
            self.ffn()
        if self.clw == 's':
            l_sg = self.label("sig")
            a(f"s_branch {l_wo}")
            a(f"{l_w5}:")
            a(f"s_cmp_eq_u32 s{HW}, 1\ns_cbranch_scc0 {l_wo}")
            self.signal()
        a(f"{l_wo}:")
        l_nc = self.label("noclear")
        if self.clw == 'w4': self.wave4_clear(l_nc)
        self.wo_prefetch_and_rest(MK, A0, D, YA, W, HW, abuild)

    def signal(self):
        a = self.a
        a("v_mov_b32 v52, 1\ns_mov_b64 exec, 1")
        if self.flag == 'at': a("buffer_atomic_add v52, off, s[24:27], 0 sc1")
        elif self.flag.startswith('at'):
            N = int(self.flag[2:]); sh = {2: 7, 4: 6, 8: 5, 16: 4, 32: 3, 64: 2}[N]
            a(f"s_and_b32 s48, s2, {N-1}\ns_lshl_b32 s48, s48, {sh}\nbuffer_atomic_add v52, off, s[24:27], s48 sc1")
        elif self.flag == 'byte': a("v_mov_b32 v53, s2\nbuffer_store_byte v52, v53, s[24:27], 0 offen sc1")
        a("s_mov_b64 exec, -1")
    def signal_check(self, name):
        a = self.a
        N = int(self.flag[2:]) if self.flag.startswith('at') and self.flag != 'at' else 0
        if N: a(f"v_and_b32 v59, {N-1}, v0\nv_lshlrev_b32 v59, {({2: 7, 4: 6, 8: 5, 16: 4, 32: 3, 64: 2}[N])}, v59")
        elif self.flag == 'byte': a("v_lshlrev_b32 v59, 2, v0")
        l, d = self.spin_head(name, 48)
        if self.flag == 'at':
            a("buffer_load_dword v58, off, s[24:27], 0 sc1\ns_waitcnt vmcnt(0)\nv_cmp_gt_u32 vcc, 256, v58")
        else:
            a("buffer_load_dword v58, v59, s[24:27], 0 offen sc1\ns_waitcnt vmcnt(0)")
            if self.flag == 'byte': a("v_cmp_ne_u32 vcc, 0x01010101, v58")
            else: a(f"v_cmp_gt_u32 vcc, {256 // N}, v58")
        a(f"s_cbranch_vccz {d}")
        a(f"s_sub_u32 s48, s48, 1\ns_cmp_lg_u32 s48, 0\ns_cbranch_scc1 {l}")
        a(f"{d}:")

    def wave4_clear(self, l_nc):
        a = self.a
        HW = self.HW
        a(f"s_cmp_eq_u32 s{HW}, {7 if self.xclr == 2 else 0}\ns_cbranch_scc0 {l_nc}")
        a("v_mov_b32 v52, -1\nv_mov_b32 v53, -1\nv_mov_b32 v54, -1\nv_mov_b32 v55, -1")
        a(f"s_mul_i32 s48, s47, 2560\ns_add_u32 s48, s48, {Y_OFF}\nv_lshlrev_b32 v9, 4, v0")
        a("buffer_store_dwordx4 v[52:55], v9, s[20:23], s48 offen sc1")
        a("buffer_store_dwordx4 v[52:55], v9, s[20:23], s48 offen offset:1024 sc1")
        a("s_mov_b32 exec_hi, 0")
        a("buffer_store_dwordx4 v[52:55], v9, s[20:23], s48 offen offset:2048 sc1")
        a("s_mov_b64 exec, 1")
        a(f"s_lshl_b32 s49, s47, 7\ns_add_u32 s49, s49, {ML_OFF}")
        a("buffer_store_dwordx2 v[52:53], v9, s[20:23], s49 offen sc1")
        if self.ctl:
            self.slot_addr(49, 50)
            a(f"v_mov_b32 v56, 0\nbuffer_store_dword v56, v9, s[20:23], s49 offen {'' if self.psp else 'sc1'}")
            if self.gx:
                nl = self.label("nolead")
                a(f"s_cmp_ge_u32 s2, 248\ns_cbranch_scc0 {nl}")
                a("buffer_store_dword v56, v9, s[20:23], s50 offen offset:128 sc1")
                a(f"s_and_b32 s49, s2, 7\ns_lshl_b32 s49, s49, 2\ns_add_u32 s49, s49, {GL_OFF}")
                a("buffer_store_dword v56, v9, s[20:23], s49 offen sc1")
                a(f"{nl}:")
        a("s_waitcnt vmcnt(0)")
        a("v_mov_b32 v52, 1")
        if not self.xclr: a("buffer_atomic_add v52, off, s[24:27], 0 sc1")
        a("s_mov_b64 exec, -1")
        a(f"{l_nc}:")

    def wo_prefetch_and_rest(self, MK, A0, D, YA, W, HW, abuild):
        a = self.a
        a("v_mul_u32_u24 v3, 1280, v2\nv_lshlrev_b32 v9, 4, v1\nv_add_u32 v3, v3, v9")
        a(f"s_lshl_b32 s48, s45, 7\ns_lshl_b32 s49, s{HW}, 5\ns_add_u32 s48, s48, s49\ns_mul_i32 s48, s48, 1280")
        for u in range(8):
            if self.skip_wo: break
            for cb in range(5):
                r = W + 4 * (5 * u + cb)
                if self.wo_win and 5 * u + cb >= self.wo_win: a(f"s_waitcnt vmcnt({self.wo_win-1})")
                a(f"buffer_load_dwordx4 v[{r}:{r+3}], v3, s[16:19], s48 offen offset:{256*cb} {self.wo_flags}")
            if u < 7: a(f"s_add_u32 s48, s48, {4*1280}")
        l_b2 = self.label("toB2")
        a(f"s_cmp_eq_u32 s{HW}, 0\ns_cbranch_scc0 {l_b2}")
        self.wave4_mid()
        l_b3 = self.label("toB2b")
        if self.ctl or self.f2: a(f"s_branch {l_b3}")
        a(f"{l_b2}:")
        if self.f2:
            for j in range(20): a(f"v_mov_b32 v{YA+j}, 0")
        if self.ctl:
            a(f"s_cmp_eq_u32 s{HW}, 2\ns_cbranch_scc0 {l_b3}")
            self.monitor()
        if self.ctl or self.f2: a(f"{l_b3}:")
        a("s_waitcnt vmcnt(0)")
        a(f"v_and_b32 v8, 7, v1\nv_lshlrev_b32 v8, 2, v8\nv_add_u32 v8, v8, v2\nv_lshlrev_b32 v8, 2, v8\ns_lshl_b32 s48, s{HW}, 7\nv_add_u32 v8, s48, v8")
        a(f"v_mov_b32 v9, {FW}")
        a("v_lshlrev_b32 v10, 5, v1\nv_and_b32 v11, 1, v2\nv_lshlrev_b32 v11, 4, v11\nv_add_u32 v10, v10, v11")
        a(f"s_mul_i32 s48, s{HW}, 2560\nv_add_u32 v10, s48, v10")
        a(f"s_mul_i32 s48, s{HW}, 640\nv_lshlrev_b32 v11, 4, v0\nv_add_u32 v11, s48, v11")
        a(f"s_mul_i32 s49, s47, 2560\ns_add_u32 s49, s49, {Y_OFF}")
        self.stamp(2)
        a("s_barrier")
        self.stamp(3)
        a("ds_read_b128 v[52:55], v9")
        for w in range(4): a(f"ds_read_b32 v{56+w}, v8 offset:{OP+512*w}")
        a("s_waitcnt lgkmcnt(0)")
        a("v_mul_f32 v56, v52, v56\nv_mul_f32 v58, v54, v58\nv_fmac_f32 v56, v53, v57\nv_fmac_f32 v58, v55, v59\nv_add_f32 v56, v56, v58")
        a("v_cvt_pk_bf16_f32 v56, v56, v56\ns_nop 1")
        abuild(56, 0, 0)
        for u in range(8):
            if u < 7: abuild(56, u + 1, (u + 1) & 1)
            else: a("s_nop 1")
            A = A0 + 4 * (u & 1)
            for cb in range(5):
                r = W + 4 * (5 * u + cb)
                acc = YA + 4 * cb
                cin = "0" if (u == 0 and not self.f2) else f"v[{acc}:{acc+3}]"
                a(f"v_mfma_f32_16x16x32_bf16 v[{acc}:{acc+3}], v[{A}:{A+3}], v[{r}:{r+3}], {cin}")
        a("s_nop 3")
        for cb in range(5):
            if cb == 4: a("s_nop 3")
            a(f"ds_write_b128 v10, v[{YA+4*cb}:{YA+4*cb+3}] offset:{YP+512*cb}")
        a("s_waitcnt lgkmcnt(0)")
        a("s_barrier")
        a("s_mov_b32 exec_hi, 0xff")
        for w in range(4): a(f"ds_read_b128 v[{64+4*w}:{64+4*w+3}], v11 offset:{YP+2560*w}")
        a("s_waitcnt lgkmcnt(0)")
        a("v_pk_add_f32 v[64:65], v[64:65], v[68:69]\nv_pk_add_f32 v[66:67], v[66:67], v[70:71]")
        a("v_pk_add_f32 v[72:73], v[72:73], v[76:77]\nv_pk_add_f32 v[74:75], v[74:75], v[78:79]")
        a("v_pk_add_f32 v[64:65], v[64:65], v[72:73]\nv_pk_add_f32 v[66:67], v[66:67], v[74:75]")
        a("buffer_store_dwordx4 v[64:67], v11, s[20:23], s49 offen sc1")
        a("s_mov_b64 exec, -1")
        self.stamp(4)
        l_fin = self.label("fin")
        a(f"s_cmp_eq_u32 s{HW}, 0\ns_cbranch_scc0 {l_fin}\ns_cmp_lt_u32 s2, 80\ns_cbranch_scc0 {l_fin}")
        self.final_reduce()
        a(f"{l_fin}:")
        self.stamp(5)
        self.stamp_flush("h")
        a("s_endpgm")

    def slot_addr(self, sa, sb):
        a = self.a
        if self.cloc:
            a(f"s_lshr_b32 s{sa}, s2, 3\ns_and_b32 s{sb}, s2, 7\ns_lshl_b32 s{sb}, s{sb}, 8\ns_add_u32 s{sb}, s{sb}, {PS_OFF}")
        else:
            a(f"s_lshr_b32 s{sa}, s2, 3\ns_add_u32 s{sb}, s{sa}, s2\ns_and_b32 s{sb}, s{sb}, 7\ns_lshl_b32 s{sb}, s{sb}, 7\ns_add_u32 s{sb}, s{sb}, {PS_OFF}")
        a(f"s_lshl_b32 s{sa}, s{sa}, 2\ns_add_u32 s{sa}, s{sa}, s{sb}")
    def monitor(self):
        a = self.a
        self.c("---- wave 6: balances the V phase by steering each streaming wave's lookahead depth ----")
        l, d = self.spin_head("mw6", 48)
        a(f"v_mov_b32 v9, {MW}\nds_read_b128 v[52:55], v9\ns_waitcnt lgkmcnt(0)")
        a("v_max3_u32 v9, v52, v53, v54\nv_max_u32 v9, v9, v55\nv_cmp_eq_u32 vcc, -1, v9")
        a(f"s_cbranch_vccz {d}")
        a(f"s_sub_u32 s48, s48, 1\ns_cmp_lg_u32 s48, 0\ns_cbranch_scc1 {l}")
        a(f"{d}:")
        if not self.psp:
            l, d = self.spin_head("clr6", 48)
            a("buffer_load_dword v58, off, s[24:27], 0 sc1\ns_waitcnt vmcnt(0)")
            a(f"v_cmp_gt_u32 vcc, {0 if self.xclr else 256}, v58")
            a(f"s_cbranch_vccz {d}")
            a(f"s_sub_u32 s48, s48, 1\ns_cmp_lg_u32 s48, 0\ns_cbranch_scc1 {l}")
            a(f"{d}:")
        self.slot_addr(49, 50)
        a(f"v_and_b32 v52, 3, v0\nv_lshlrev_b32 v53, 2, v52\nv_add_u32 v53, {MODE}, v53")
        a(f"v_lshlrev_b32 v52, 8, v52\nv_add_u32 v52, {PRG}, v52")
        if not self.gx:
            a("v_and_b32 v54, 31, v0\nv_lshlrev_b32 v54, 2, v54\nv_mov_b32 v9, 0\ns_mov_b32 s51, 0")
        else:
            a("v_lshlrev_b32 v54, 2, v0\nv_min_u32 v54, 128, v54\nv_mov_b32 v9, 0\ns_mov_b32 s51, 0")
            a(f"s_mov_b32 s58, 0\ns_mov_b32 s59, 0\ns_and_b32 s57, s2, 7\ns_lshl_b32 s57, s57, 2\ns_add_u32 s57, s57, {GL_OFF}")
        l, d = self.spin_head("mon", 48)
        a("ds_read_b32 v55, v52\ns_waitcnt lgkmcnt(0)")
        a("v_add_u32_dpp v56, v55, v55 quad_perm:[1,0,3,2] row_mask:0xf bank_mask:0xf\ns_nop 1")
        a("v_add_u32_dpp v56, v56, v56 quad_perm:[2,3,0,1] row_mask:0xf bank_mask:0xf\ns_nop 1")
        a("v_readfirstlane_b32 s52, v56")
        a(f"s_nop 1\ns_cmp_ge_u32 s52, {self.cthr}\ns_cbranch_scc1 {d}")
        a(f"s_mov_b64 exec, 1\nbuffer_store_dword v56, v9, s[20:23], s49 offen {self.mst}\ns_mov_b64 exec, -1")
        a(f"buffer_load_dword v57, v54, s[20:23], s50 offen {self.mld}\ns_waitcnt vmcnt(0)")
        if self.gx:
            a("v_readlane_b32 s55, v57, 32\ns_mov_b32 exec_lo, 0\nv_mov_b32 v57, 0\ns_mov_b32 exec_lo, -1\ns_nop 1")
        self.wave_reduce(57, "v_add_u32", 53)
        if self.gx:
            a("s_lshl_b32 s53, s53, 1")
            nl = self.label("nolead")
            a(f"s_cmp_ge_u32 s2, 248\ns_cbranch_scc0 {nl}")
            a("v_mov_b32 v58, s53\ns_mov_b64 exec, 1\nbuffer_store_dword v58, v9, s[20:23], s57 offen sc1\ns_mov_b64 exec, -1")
            if self.gx == 1:
                a(f"s_waitcnt vmcnt(0)\ns_load_dwordx8 s[32:39], s[86:87], {hex(GL_OFF)} glc\ns_waitcnt lgkmcnt(0)")
                a("s_add_u32 s32, s32, s33\ns_add_u32 s34, s34, s35\ns_add_u32 s36, s36, s37\ns_add_u32 s38, s38, s39")
                a("s_add_u32 s32, s32, s34\ns_add_u32 s36, s36, s38\ns_add_u32 s32, s32, s36")
            else:
                a(f"v_and_b32 v58, 7, v0\nv_lshlrev_b32 v58, 2, v58\ns_mov_b32 s32, {GL_OFF}\nbuffer_load_dword v59, v58, s[20:23], s32 offen sc1\ns_waitcnt vmcnt(0)")
                a("v_add_u32_dpp v59, v59, v59 row_ror:4 row_mask:0xf bank_mask:0xf\ns_nop 1")
                a("v_add_u32_dpp v59, v59, v59 row_ror:2 row_mask:0xf bank_mask:0xf\ns_nop 1")
                a("v_add_u32_dpp v59, v59, v59 row_ror:1 row_mask:0xf bank_mask:0xf\ns_nop 1")
                a("v_readfirstlane_b32 s32, v59\ns_nop 1")
            a("s_lshr_b32 s32, s32, 3\ns_sub_u32 s55, s32, s53")
            if self.gsh: a(f"s_ashr_i32 s55, s55, {self.gsh}")
            a("v_mov_b32 v58, s55\ns_mov_b64 exec, 1")
            a(f"buffer_store_dword v58, v9, s[20:23], s50 offen offset:128 {self.mst}\ns_mov_b64 exec, -1")
            if self.stamps: a("s_mov_b32 s58, s32\ns_mov_b32 s59, s53")
            a(f"{nl}:")
        a("s_sub_u32 s54, s52, s51\ns_lshl_b32 s54, s54, 6\ns_add_u32 s54, s54, s53")
        if self.gx: a("s_add_u32 s54, s54, s55")
        a(f"s_add_u32 s54, s54, {self.cbias}\ns_mov_b32 s51, s52")
        a("v_lshlrev_b32 v55, 8, v55\nv_sub_u32 v55, s54, v55")
        a(f"v_ashrrev_i32 v55, {self.csh}, v55\nv_add_u32 v55, {self.R}, v55")
        a(f"v_max_i32 v55, {self.Rlo}, v55\nv_min_i32 v55, {self.Rhi}, v55")
        a("ds_write_b32 v53, v55")
        a(f"s_sub_u32 s48, s48, 1\ns_cmp_lg_u32 s48, 0\ns_cbranch_scc1 {l}")
        a(f"{d}:")
        a(f"v_mov_b32 v56, 0x400\ns_mov_b64 exec, 1\nbuffer_store_dword v56, v9, s[20:23], s49 offen {self.mst}\ns_mov_b64 exec, -1")
        if self.gx:
            nl = self.label("nolead")
            a(f"s_cmp_ge_u32 s2, 248\ns_cbranch_scc0 {nl}")
            a("v_mov_b32 v58, 0x10000\ns_mov_b64 exec, 1\nbuffer_store_dword v58, v9, s[20:23], s57 offen sc1\ns_mov_b64 exec, -1")
            if self.stamps:
                a("s_and_b32 s32, s2, 7\ns_lshl_b32 s32, s32, 2\nv_mov_b32 v58, s58\nv_mov_b32 v59, s59\ns_mov_b64 exec, 1")
                a("buffer_store_dword v58, v9, s[24:27], s32 offen offset:64\nbuffer_store_dword v59, v9, s[24:27], s32 offen offset:96\ns_mov_b64 exec, -1")
            a(f"{nl}:")

    def wave4_mid(self):
        a = self.a
        self.c("---- wave 4: softmax statistics of this half, exchange with the other half ----")
        l, d = self.spin_head("mw", 48)
        a(f"v_mov_b32 v9, {MW}\nds_read_b128 v[52:55], v9\ns_waitcnt lgkmcnt(0)")
        a("v_max3_u32 v9, v52, v53, v54\nv_max_u32 v9, v9, v55\nv_cmp_eq_u32 vcc, -1, v9")
        a(f"s_cbranch_vccz {d}")
        if self.sleep: a("s_sleep 16")
        a(f"s_sub_u32 s48, s48, 1\ns_cmp_lg_u32 s48, 0\ns_cbranch_scc1 {l}")
        a(f"{d}:")
        self.stamp(6)
        a("v_max3_f32 v56, v52, v53, v54\nv_max_f32 v56, v56, v55")
        a(f"v_lshlrev_b32 v9, 4, v0\nv_add_u32 v9, {SC}, v9\nv_mov_b32 v57, 0\ns_mov_b32 s48, 4")
        lp = self.label("lsum")
        a(f"{lp}:")
        for i in range(4): a(f"ds_read_b128 v[{224+4*i}:{227+4*i}], v9 offset:{1024*i}")
        a("v_add_u32 v9, 4096, v9\ns_waitcnt lgkmcnt(0)")
        for i in range(16): a(f"v_sub_f32 v{224+i}, v{224+i}, v56")
        for i in range(16): a(f"v_mul_f32 v{224+i}, {LOG2E}, v{224+i}")
        for i in range(16): a(f"v_exp_f32 v{224+i}, v{224+i}")
        a("s_nop 0")
        for i in range(16): a(f"v_add_f32 v57, v57, v{224+i}")
        a(f"s_sub_u32 s48, s48, 1\ns_cmp_lg_u32 s48, 0\ns_cbranch_scc1 {lp}")
        a("s_nop 1")
        self.wave_reduce(57, "v_add_f32", 50)
        a("v_mov_b32 v57, s50")
        a(f"s_lshl_b32 s49, s47, 7\ns_add_u32 s49, s49, {ML_OFF}")
        a("v_mov_b32 v9, 0\ns_mov_b64 exec, 1")
        a("buffer_store_dwordx2 v[56:57], v9, s[20:23], s49 offen sc1")
        a("s_mov_b64 exec, -1")
        if self.f2: self.ffn2()
        if self.clw == 'w4':
            l, d = self.spin_head("clr", 48)
            a("buffer_load_dword v58, off, s[24:27], 0 sc1\ns_waitcnt vmcnt(0)")
            a(f"v_cmp_gt_u32 vcc, {0 if self.xclr else 256}, v58")
            a(f"s_cbranch_vccz {d}")
            a(f"s_sub_u32 s48, s48, 1\ns_cmp_lg_u32 s48, 0\ns_cbranch_scc1 {l}")
            a(f"{d}:")
        a(f"s_xor_b32 s49, s47, 1\ns_lshl_b32 s49, s49, 7\ns_add_u32 s49, s49, {ML_OFF}\nv_mov_b32 v9, 0")
        l, d = self.spin_head("ml", 48)
        a("buffer_load_dwordx2 v[58:59], v9, s[20:23], s49 offen sc1\ns_waitcnt vmcnt(0)")
        a("v_max_u32 v60, v58, v59\nv_cmp_eq_u32 vcc, -1, v60")
        a(f"s_cbranch_vccz {d}")
        a(f"s_sub_u32 s48, s48, 1\ns_cmp_lg_u32 s48, 0\ns_cbranch_scc1 {l}")
        a(f"{d}:")
        a("v_max_f32 v60, v56, v58")
        a("v_sub_f32 v56, v56, v60\nv_sub_f32 v58, v58, v60")
        for i in range(4): a(f"v_sub_f32 v{52+i}, v{52+i}, v60")
        a(f"v_mul_f32 v56, {LOG2E}, v56\nv_mul_f32 v58, {LOG2E}, v58")
        for i in range(4): a(f"v_mul_f32 v{52+i}, {LOG2E}, v{52+i}")
        a("v_exp_f32 v56, v56\nv_exp_f32 v58, v58")
        for i in range(4): a(f"v_exp_f32 v{52+i}, v{52+i}")
        a("v_mul_f32 v57, v57, v56\nv_fmac_f32 v57, v59, v58\nv_rcp_f32 v57, v57\ns_nop 0")
        for i in range(4): a(f"v_mul_f32 v{52+i}, v{52+i}, v57")
        a(f"v_mov_b32 v9, {FW}\nds_write_b128 v9, v[52:55]\ns_waitcnt lgkmcnt(0)")
        l_nr = self.label("nored")
        a(f"s_cmp_lt_u32 s2, 80\ns_cbranch_scc0 {l_nr}")
        a("s_mul_i32 s62, s2, 205\ns_lshr_b32 s62, s62, 12\ns_mul_i32 s63, s62, 20\ns_sub_u32 s63, s2, s63")
        if self.f2:
            a("v_and_b32 v59, 7, v0\ns_mul_i32 s48, s62, 1280\ns_lshl_b32 s49, s63, 6\ns_add_u32 s48, s48, s49\nv_lshlrev_b32 v61, 3, v59")
            a("buffer_load_dwordx2 v[246:247], v61, s[8:11], s48 offen\ns_waitcnt vmcnt(0)")
            a("v_lshlrev_b32 v244, 16, v246\nv_and_b32 v245, 0xffff0000, v246\nv_lshlrev_b32 v246, 16, v247\nv_and_b32 v247, 0xffff0000, v247")
            a(f"{l_nr}:")
            return
        l, d = self.spin_head("zc", 48)
        a("buffer_load_dword v58, off, s[24:27], 0 offset:128 sc1\ns_waitcnt vmcnt(0)")
        a("v_cmp_gt_u32 vcc, 27, v58")
        a(f"s_cbranch_vccz {d}")
        a(f"s_sub_u32 s48, s48, 1\ns_cmp_lg_u32 s48, 0\ns_cbranch_scc1 {l}")
        a(f"{d}:")
        a("v_lshrrev_b32 v58, 3, v0\nv_and_b32 v59, 7, v0")
        a("v_mul_u32_u24 v60, 10240, v58\nv_lshlrev_b32 v61, 4, v59\nv_add_u32 v60, v60, v61")
        a(f"s_mul_i32 s48, s62, 2560\ns_lshl_b32 s49, s63, 7\ns_add_u32 s48, s48, s49\ns_add_u32 s48, s48, {Z_OFF}")
        for i in range(3):
            a(f"buffer_load_dwordx4 v[{224+4*i}:{227+4*i}], v60, s[20:23], s48 offen sc1")
            a(f"s_add_u32 s48, s48, {8*10240}")
        a("v_cmp_gt_u32 vcc, 3, v58\nv_mov_b32 v61, 0x7ffffff0\ns_nop 0\nv_cndmask_b32 v60, v61, v60, vcc")
        a("buffer_load_dwordx4 v[236:239], v60, s[20:23], s48 offen sc1")
        a("s_mul_i32 s48, s62, 1280\ns_lshl_b32 s49, s63, 6\ns_add_u32 s48, s48, s49\nv_lshlrev_b32 v61, 3, v59")
        a("buffer_load_dwordx2 v[246:247], v61, s[8:11], s48 offen")
        a("s_waitcnt vmcnt(0)")
        for j in range(4):
            a(f"v_add_f32 v{224+j}, v{224+j}, v{228+j}\nv_add_f32 v{232+j}, v{232+j}, v{236+j}\nv_add_f32 v{240+j}, v{224+j}, v{232+j}")
        self.reduce_hq(240, 4, 248)
        for j in range(4): self.rbf16(240 + j)
        a("v_lshlrev_b32 v244, 16, v246\nv_and_b32 v245, 0xffff0000, v246\nv_lshlrev_b32 v246, 16, v247\nv_and_b32 v247, 0xffff0000, v247")
        a(f"{l_nr}:")

    def final_reduce(self):
        a = self.a
        self.c("---- final sum over the 64 (head, half) rows for 32 output columns of one batch row ----")
        a("v_lshrrev_b32 v58, 3, v0\nv_and_b32 v59, 7, v0")
        a("v_mul_u32_u24 v60, 2560, v58\nv_lshlrev_b32 v61, 4, v59\nv_add_u32 v60, v60, v61")
        a(f"s_mul_i32 s48, s62, {64*2560}\ns_lshl_b32 s49, s63, 7\ns_add_u32 s48, s48, s49\ns_add_u32 s48, s48, {Y_OFF}")
        for i in range(1, 8): a(f"s_add_u32 s{48+i}, s{47+i}, {8*2560}")
        if self.yp > 1:
            S = self.yp
            def issue(st):
                for i in range(8): a(f"buffer_load_dwordx4 v[{64+32*st+4*i}:{67+32*st+4*i}], v60, s[20:23], s{48+i} offen sc1")
            l, fin = self.label("y"), self.label("yfin")
            dn = [self.label("ydone") for _ in range(S)]
            a(f"s_mov_b32 s56, {SPIN_MAX}")
            for st in range(S): issue(st)
            a(f"{l}:")
            for st in range(S):
                b0 = 64 + 32 * st
                a(f"s_waitcnt vmcnt({8*(S-1)})")
                for k in (16, 8, 4):
                    for i in range(0, k, 2):
                        a(f"v_pk_add_f32 v[{b0+i}:{b0+i+1}], v[{b0+i}:{b0+i+1}], v[{b0+k+i}:{b0+k+i+1}]")
                a(f"v_add_f32 v{b0+4}, v{b0}, v{b0+1}\nv_add_f32 v{b0+5}, v{b0+2}, v{b0+3}\nv_add_f32 v{b0+4}, v{b0+4}, v{b0+5}\nv_cmp_u_f32 vcc, v{b0+4}, v{b0+4}")
                a(f"s_cbranch_vccz {dn[st]}")
                issue(st)
            a(f"s_sub_u32 s56, s56, 1\ns_cmp_lg_u32 s56, 0\ns_cbranch_scc1 {l}")
            O = 64 + 32 * S
            for st in range(S):
                a(f"{dn[st]}:")
                for j in range(4): a(f"v_mov_b32 v{O+j}, v{64+32*st+j}")
                if st < S - 1: a(f"s_branch {fin}")
            a(f"{fin}:")
            self.reduce_hq(O, 4, O + 4)
            for j in range(4): a(f"v_add_f32 v{O+j}, v{244+j}, v{O+j}")
            a(f"v_cvt_pk_bf16_f32 v{O}, v{O}, v{O+1}\nv_cvt_pk_bf16_f32 v{O+1}, v{O+2}, v{O+3}")
            a("s_mul_i32 s48, s62, 1280\ns_lshl_b32 s49, s63, 6\ns_add_u32 s57, s48, s49\nv_lshlrev_b32 v61, 3, v59")
            a("s_mov_b64 exec, 0xff")
            a(f"buffer_store_dwordx2 v[{O}:{O+1}], v61, s[28:31], s57 offen")
            a("s_mov_b64 exec, -1")
            return
        l, d = self.spin_head("y", 56)
        for i in range(8):
            a(f"buffer_load_dwordx4 v[{64+4*i}:{67+4*i}], v60, s[20:23], s{48+i} offen sc1")
        a("s_waitcnt vmcnt(0)")
        for st in (16, 8, 4):
            for i in range(0, st, 2):
                a(f"v_pk_add_f32 v[{64+i}:{65+i}], v[{64+i}:{65+i}], v[{64+st+i}:{65+st+i}]")
        a("v_add_f32 v68, v64, v65\nv_add_f32 v69, v66, v67\nv_add_f32 v68, v68, v69\nv_cmp_u_f32 vcc, v68, v68")
        a(f"s_cbranch_vccz {d}")
        a(f"s_sub_u32 s56, s56, 1\ns_cmp_lg_u32 s56, 0\ns_cbranch_scc1 {l}")
        a(f"{d}:")
        self.reduce_hq(64, 4, 68)
        if self.f2:
            for j in range(4): a(f"v_add_f32 v{64+j}, v{244+j}, v{64+j}")
        else:
            for j in range(4): self.rbf16(64 + j)
            for j in range(4): a(f"v_add_f32 v{64+j}, v{244+j}, v{64+j}")
            for j in range(4): self.rbf16(64 + j)
            for j in range(4): a(f"v_add_f32 v{64+j}, v{64+j}, v{240+j}")
        a("v_cvt_pk_bf16_f32 v64, v64, v65\nv_cvt_pk_bf16_f32 v65, v66, v67")
        a("s_mul_i32 s48, s62, 1280\ns_lshl_b32 s49, s63, 6\ns_add_u32 s48, s48, s49\nv_lshlrev_b32 v61, 3, v59")
        a("s_mov_b64 exec, 0xff")
        a("buffer_store_dwordx2 v[64:65], v61, s[28:31], s48 offen")
        a("s_mov_b64 exec, -1")

    def ffn1(self):
        a = self.a
        self.c("---- FFN stage 1: columns 64*(s2>>3).., rows 80*(s2&7).. ----")
        Wg, X, M2, A0, DG, DU, XA = 64, 144, 44, 20, 28, 32, 184
        self.srd(32, 76, 2211840); self.srd(36, 78, 2211840)
        a("v_mul_u32_u24 v11, 3456, v2\nv_lshlrev_b32 v12, 3, v1\nv_add_u32 v11, v11, v12")
        a("s_lshr_b32 s54, s2, 3\ns_and_b32 s55, s2, 7")
        if self.fe == 1: a(f"s_lshr_b32 s48, s{self.HW}, 1\ns_add_u32 s55, s55, s48")
        if self.fe == 2: a(f"s_lshr_b32 s55, s55, 1\ns_lshr_b32 s48, s{self.HW}, 1\ns_lshl_b32 s48, s48, 2\ns_add_u32 s55, s55, s48")
        if self.fe == 3: a(f"s_lshr_b32 s48, s{self.HW}, 1\ns_add_u32 s55, s55, s48\ns_sub_u32 s55, s55, 1")
        a(f"s_lshl_b32 s48, s54, 7\ns_mul_i32 s49, s55, {80*3456}\ns_add_u32 s48, s48, s49")
        for u in range(20):
            a(f"buffer_load_dwordx2 v[{Wg+4*u}:{Wg+1+4*u}], v11, s[32:35], s48 offen nt")
            a(f"buffer_load_dwordx2 v[{Wg+2+4*u}:{Wg+3+4*u}], v11, s[36:39], s48 offen nt")
            if u < 19: a(f"s_add_u32 s48, s48, {4*3456}")
        a("v_lshlrev_b32 v8, 2, v1\nv_add_u32 v8, v8, v2\nv_lshlrev_b32 v8, 1, v8")
        a("s_mov_b32 s48, 0\ns_mov_b32 s49, 1280\ns_mov_b32 s50, 2560\ns_mov_b32 s51, 3840")
        for b in range(4):
            for r in range(10):
                a(f"buffer_load_ushort v{X+10*b+r}, v8, s[8:11], s{48+b} offen offset:{128*r}")
        self.const64(60, 0xAAAAAAAAAAAAAAAA)
        a("v_mov_b32 v52, 0xffff\nv_mov_b32 v53, 0xffff0000\nv_cndmask_b32_e64 v52, v52, v53, s[60:61]")
        for jj in range(2):
            self.const64(60, 0x3333333333333333 << (2 * jj))
            a(f"v_cndmask_b32_e64 v{M2+jj}, 0, v52, s[60:61]")
        a(f"v_mul_u32_u24 v9, 640, v2\nv_lshlrev_b32 v52, 2, v1\nv_add_u32 v9, v9, v52")
        for b in range(4):
            a(f"s_waitcnt vmcnt({30-10*b})")
            self.layernorm(X + 10 * b, 10, 52, 52)
            for r in range(10):
                a(f"ds_write_b32 v9, v{X+10*b+r} offset:{XNL+2560*b+64*r}")
        a("v_lshrrev_b32 v9, 2, v1\nv_lshlrev_b32 v9, 2, v9\nv_add_u32 v9, v9, v2\nv_mul_u32_u24 v10, 640, v9")
        a(f"s_mul_i32 s48, s55, 80\ns_add_u32 s48, s48, {XNL}\nv_add_u32 v10, s48, v10")
        a("s_waitcnt lgkmcnt(0)")
        for i in range(5): a(f"ds_read_b128 v[{XA+4*i}:{XA+3+4*i}], v10 offset:{16*i}")
        a("s_waitcnt lgkmcnt(0)")
        for u in range(20):
            A = A0 + 2 * (u & 1)
            for jj in range(2): a(f"v_and_b32 v{A+jj}, v{XA+u}, v{M2+jj}")
            a("s_nop 1")
            cg = "0" if u == 0 else f"v[{DG}:{DG+3}]"
            cu = "0" if u == 0 else f"v[{DU}:{DU+3}]"
            a(f"v_mfma_f32_16x16x16_bf16 v[{DG}:{DG+3}], v[{A}:{A+1}], v[{Wg+4*u}:{Wg+1+4*u}], {cg}")
            a(f"v_mfma_f32_16x16x16_bf16 v[{DU}:{DU+3}], v[{A}:{A+1}], v[{Wg+2+4*u}:{Wg+3+4*u}], {cu}")
        a("v_mul_u32_u24 v12, 6912, v2\nv_lshlrev_b32 v13, 4, v1\nv_add_u32 v12, v12, v13")
        a(f"s_mul_i32 s48, s55, {2*27648}\ns_lshl_b32 s49, s54, 8\ns_add_u32 s48, s48, s49\ns_add_u32 s48, s48, {P_OFF}\ns_add_u32 s49, s48, 27648")
        a("s_nop 7")
        a(f"buffer_store_dwordx4 v[{DG}:{DG+3}], v12, s[20:23], s48 offen sc1")
        a(f"buffer_store_dwordx4 v[{DU}:{DU+3}], v12, s[20:23], s49 offen sc1")
        if self.clw == 's':
            a("s_waitcnt vmcnt(0)")
            if self.fe:
                l5, le = self.label("f5"), self.label("f7e")
                a(f"v_mov_b32 v9, {F7}\ns_cmp_eq_u32 s{self.HW}, 1\ns_cbranch_scc1 {l5}")
                a(f"v_mov_b32 v52, 1\nds_write_b32 v9, v52\ns_branch {le}")
                a(f"{l5}:")
                l, d = self.spin_head("f7", 48)
                a("ds_read_b32 v52, v9\ns_waitcnt lgkmcnt(0)\nv_cmp_eq_u32 vcc, -1, v52")
                a(f"s_cbranch_vccz {d}")
                a(f"s_sub_u32 s48, s48, 1\ns_cmp_lg_u32 s48, 0\ns_cbranch_scc1 {l}")
                a(f"{d}:")
                self.signal()
                a(f"{le}:")
                return
            self.signal()
            return
        a("s_waitcnt vmcnt(0)\nv_mov_b32 v52, 1\ns_mov_b64 exec, 1")
        if not self.xzc: a("buffer_atomic_add v52, off, s[24:27], 0 offset:128 sc1")
        a("s_mov_b64 exec, -1")

    def ffn2(self):
        a = self.a
        MK, A0, YA, T = 4, 20, 32, 224
        self.c("---- FFN stage 2: hidden columns 27*(2h+half).. of batch row b ----")
        self.srd(40, 80, 2211840)
        if self.clw == 's':
            self.signal_check("zc")
        else:
            l, d = self.spin_head("zc", 48)
            a("buffer_load_dword v58, off, s[24:27], 0 offset:128 sc1\ns_waitcnt vmcnt(0)")
            a(f"v_cmp_gt_u32 vcc, {0 if self.xzc else 216}, v58")
            a(f"s_cbranch_vccz {d}")
            a(f"s_sub_u32 s48, s48, 1\ns_cmp_lg_u32 s48, 0\ns_cbranch_scc1 {l}")
            a(f"{d}:")
        a("s_lshl_b32 s54, s45, 1\ns_add_u32 s54, s54, s46\ns_mul_i32 s54, s54, 27")
        a("v_lshrrev_b32 v58, 2, v0\nv_mul_u32_u24 v58, 27648, v58\nv_and_b32 v59, 3, v0\nv_lshlrev_b32 v60, 5, v59\nv_add_u32 v58, v58, v60")
        a(f"s_mul_i32 s48, s44, 6912\ns_lshl_b32 s49, s54, 2\ns_add_u32 s48, s48, s49\ns_add_u32 s48, s48, {P_OFF}")
        a(f"buffer_load_dwordx4 v[{T}:{T+3}], v58, s[20:23], s48 offen sc1")
        a(f"buffer_load_dwordx4 v[{T+4}:{T+7}], v58, s[20:23], s48 offen offset:16 sc1")
        a("s_waitcnt vmcnt(0)")
        self.reduce_hq(T, 8, T + 8)
        for j in range(8): self.rbf16(T + j)
        a("s_nop 1")
        for j in range(8): a(f"v_mov_b32_dpp v{T+8+j}, v{T+j} row_ror:12 row_mask:0xf bank_mask:0xf")
        for j in range(8):
            a(f"v_max_f32 v{T+j}, 0, v{T+j}\nv_mul_f32 v{T+j}, v{T+j}, v{T+8+j}\nv_cvt_pk_bf16_f32 v{T+j}, v{T+j}, v{T+j}")
        a("v_cmp_gt_u32 vcc, 3, v59\ns_nop 1")
        for j in range(3, 8): a(f"v_cndmask_b32 v{T+j}, 0, v{T+j}, vcc")
        a(f"v_add_u32 v60, {HL}, v60\ns_mov_b64 exec, 15")
        a(f"ds_write_b128 v60, v[{T}:{T+3}]\nds_write_b128 v60, v[{T+4}:{T+7}] offset:16")
        a("s_mov_b64 exec, -1\ns_waitcnt lgkmcnt(0)")
        a(f"v_and_b32 v60, 7, v1\nv_lshlrev_b32 v60, 2, v60\nv_add_u32 v60, v60, v2\nv_lshlrev_b32 v60, 2, v60\nv_add_u32 v60, {HL}, v60")
        a("ds_read_b32 v61, v60")
        a("v_mul_u32_u24 v58, 1280, v2\nv_lshlrev_b32 v59, 4, v1\nv_add_u32 v58, v58, v59")
        a("s_mul_i32 s48, s54, 1280")
        for i in range(7):
            for cb in range(5):
                a(f"buffer_load_dwordx4 v[{T+4*cb}:{T+3+4*cb}], v58, s[40:43], s48 offen offset:{256*cb} nt")
            if i < 6: a(f"s_add_u32 s48, s48, {4*1280}")
            if i == 0: a("s_waitcnt lgkmcnt(0)")
            for jj in range(4):
                a(f"v_and_b32_dpp v{A0+4*(i&1)+jj}, v61, v{MK+jj} row_newbcast:{i} row_mask:0xf bank_mask:0xf")
            A = A0 + 4 * (i & 1)
            a("s_nop 1")
            for cb in range(5):
                acc = YA + 4 * cb
                cin = "0" if i == 0 else f"v[{acc}:{acc+3}]"
                a(f"s_waitcnt vmcnt({4-cb})")
                a(f"v_mfma_f32_16x16x32_bf16 v[{acc}:{acc+3}], v[{A}:{A+3}], v[{T+4*cb}:{T+3+4*cb}], {cin}")
            a("s_nop 7")

    def ffn(self):
        a = self.a
        self.c("---- FFN unit s2: 64 hidden columns for all four rows ----")
        X, M2, A0, DG, DU = 64, 44, 20, 28, 32
        self.srd(32, 76, 2211840); self.srd(36, 78, 2211840); self.srd(40, 80, 2211840)
        a("v_lshlrev_b32 v8, 2, v1\nv_add_u32 v8, v8, v2\nv_lshlrev_b32 v8, 1, v8")
        a("s_mov_b32 s48, 0\ns_mov_b32 s49, 1280\ns_mov_b32 s50, 2560\ns_mov_b32 s51, 3840")
        for b in range(4):
            for r in range(10):
                a(f"buffer_load_ushort v{X+10*b+r}, v8, s[8:11], s{48+b} offen offset:{128*r}")
        self.const64(60, 0xAAAAAAAAAAAAAAAA)
        a("v_mov_b32 v52, 0xffff\nv_mov_b32 v53, 0xffff0000\nv_cndmask_b32_e64 v52, v52, v53, s[60:61]")
        for jj in range(2):
            self.const64(60, 0x3333333333333333 << (2 * jj))
            a(f"v_cndmask_b32_e64 v{M2+jj}, 0, v52, s[60:61]")
        a(f"v_mul_u32_u24 v9, 640, v2\nv_lshlrev_b32 v52, 2, v1\nv_add_u32 v9, v9, v52")
        for b in range(4):
            a(f"s_waitcnt vmcnt({30-10*b})")
            self.layernorm(X + 10 * b, 10, 52, 52)
            for r in range(10):
                a(f"ds_write_b32 v9, v{X+10*b+r} offset:{XNL+2560*b+64*r}")
        a("v_lshrrev_b32 v9, 2, v1\nv_lshlrev_b32 v9, 2, v9\nv_add_u32 v9, v9, v2\nv_mul_u32_u24 v10, 640, v9")
        a(f"v_add_u32 v10, {XNL}, v10")
        a("v_mul_u32_u24 v11, 3456, v2\nv_lshlrev_b32 v12, 3, v1\nv_add_u32 v11, v11, v12")
        a("s_lshl_b32 s48, s2, 7")
        GUSTEP = 4 * 3456
        if self.ffn_exp == 2:
            a("v_lshlrev_b32 v11, 3, v0\ns_mul_i32 s48, s2, 81920")
            GUSTEP = 512
        G = self.ffn_gu
        def issue(u):
            u %= G
            a(f"buffer_load_dwordx2 v[{64+4*u}:{65+4*u}], v11, s[32:35], s48 offen nt")
            a(f"buffer_load_dwordx2 v[{66+4*u}:{67+4*u}], v11, s[36:39], s48 offen nt")
            a(f"s_add_u32 s48, s48, {GUSTEP}")
        a("s_waitcnt lgkmcnt(0)")
        for u in range(G): issue(u)
        for j in range(8): a(f"v_mov_b32 v{DG+j}, 0")
        def rnd(last):
            for i in range(4): a(f"ds_read_b128 v[{128+4*i}:{131+4*i}], v10 offset:{16*i}")
            a("v_add_u32 v10, 64, v10\ns_waitcnt lgkmcnt(0)")
            for u in range(16):
                A = A0 + 2 * (u & 1)
                r = 64 + 4 * (u % G)
                for jj in range(2): a(f"v_and_b32 v{A+jj}, v{128+u}, v{M2+jj}")
                a(f"s_waitcnt vmcnt({2*(G-1) if not last else 2*min(G-1, 15-u)})\ns_nop 0")
                if self.ffn_exp != 1:
                    a(f"v_mfma_f32_16x16x16_bf16 v[{DG}:{DG+3}], v[{A}:{A+1}], v[{r}:{r+1}], v[{DG}:{DG+3}]")
                    a(f"v_mfma_f32_16x16x16_bf16 v[{DU}:{DU+3}], v[{A}:{A+1}], v[{r+2}:{r+3}], v[{DU}:{DU+3}]")
                if not last or u + G < 16: issue(u)
        a("s_mov_b32 s49, 9")
        lp = self.label("gu")
        a(f"{lp}:")
        rnd(False)
        a(f"s_sub_u32 s49, s49, 1\ns_cmp_lg_u32 s49, 0\ns_cbranch_scc1 {lp}")
        rnd(True)
        DN = self.ffn_dn
        a("v_mul_u32_u24 v11, 1280, v2\nv_lshlrev_b32 v12, 3, v1\nv_add_u32 v11, v11, v12")
        a(f"s_mul_i32 s48, s2, {64*1280}")
        def issue2(u2):
            for cb in range(10):
                r = 64 + 2 * (10 * (u2 % DN) + cb)
                a(f"buffer_load_dwordx2 v[{r}:{r+1}], v11, s[40:43], s48 offen offset:{128*cb} nt")
            a(f"s_add_u32 s48, s48, {4*1280}")
        a("s_nop 7")
        for j in range(8): self.rbf16(DG + j)
        for uu in range(DN): issue2(uu)
        for j in range(4):
            a(f"v_max_f32 v{DG+j}, 0, v{DG+j}\nv_mul_f32 v{DG+j}, v{DG+j}, v{DU+j}\nv_cvt_pk_bf16_f32 v{DG+j}, v{DG+j}, v{DG+j}")
        a("v_lshlrev_b32 v12, 8, v2\nv_lshlrev_b32 v13, 2, v1\nv_add_u32 v12, v12, v13")
        for j in range(4): a(f"ds_write_b32 v12, v{DG+j} offset:{HL+64*j}")
        a(f"s_waitcnt lgkmcnt(0)\nv_lshlrev_b32 v12, 6, v9\nv_add_u32 v12, {HL}, v12")
        for i in range(4): a(f"ds_read_b128 v[{208+4*i}:{211+4*i}], v12 offset:{16*i}")
        for j in range(40): a(f"v_mov_b32 v{144+j}, 0")
        a("s_waitcnt lgkmcnt(0)")
        for u2 in range(16):
            A = A0 + 2 * (u2 & 1)
            for jj in range(2): a(f"v_and_b32 v{A+jj}, v{208+u2}, v{M2+jj}")
            for cb in range(10):
                r = 64 + 2 * (10 * (u2 % DN) + cb)
                left = (9 - cb) + 10 * (min(u2 + DN - 1, 15) - u2)
                a(f"s_waitcnt vmcnt({left})")
                if cb == 0: a("s_nop 0")
                a(f"v_mfma_f32_16x16x16_bf16 v[{144+4*cb}:{147+4*cb}], v[{A}:{A+1}], v[{r}:{r+1}], v[{144+4*cb}:{147+4*cb}]")
            if u2 + DN < 16: issue2(u2)
        a("v_mul_u32_u24 v12, 2560, v2\nv_lshlrev_b32 v13, 4, v1\nv_add_u32 v12, v12, v13")
        a(f"s_mul_i32 s48, s2, 10240\ns_add_u32 s48, s48, {Z_OFF}\ns_nop 7")
        for cb in range(10):
            a(f"buffer_store_dwordx4 v[{144+4*cb}:{147+4*cb}], v12, s[20:23], s48 offen offset:{256*cb} sc1")
        a("s_waitcnt vmcnt(0)\nv_mov_b32 v52, 1\ns_mov_b64 exec, 1")
        a("buffer_atomic_add v52, off, s[24:27], 0 offset:128 sc1")
        a("s_mov_b64 exec, -1")

    def build(self):
        a = self.a
        a("s_cmp_ge_u32 s2, 256\ns_cbranch_scc1 L_exit")
        if self.stamps: a("s_memrealtime s[96:97]")
        a("s_load_dwordx16 s[64:79], s[0:1], 0\ns_load_dwordx8 s[80:87], s[0:1], 64")
        a("v_lshrrev_b32 v1, 6, v0\nv_and_b32 v0, 63, v0\nv_readfirstlane_b32 s3, v1")
        if self.stamps:
            for k in range(8): a(f"s_mov_b32 s{88+k}, 0")
        a("s_and_b32 s40, s2, 7\ns_lshr_b32 s41, s2, 3")
        if self.mapping == "m4":
            a("s_lshr_b32 s43, s41, 1\ns_and_b32 s43, s43, 3\ns_lshl_b32 s45, s43, 3\ns_add_u32 s45, s45, s40")
            a("s_lshr_b32 s44, s41, 3\ns_and_b32 s46, s41, 1")
        elif self.mapping == "m6":
            a("s_lshr_b32 s43, s41, 1\ns_and_b32 s43, s43, 3\ns_add_u32 s45, s40, s43\ns_and_b32 s45, s45, 7\ns_lshl_b32 s43, s43, 3\ns_add_u32 s45, s45, s43")
            a("s_lshr_b32 s44, s41, 3\ns_and_b32 s46, s41, 1")
        elif self.mapping == "m7":
            a("s_lshr_b32 s43, s41, 1\ns_and_b32 s43, s43, 3\ns_lshl_b32 s45, s43, 3\ns_xor_b32 s43, s40, 1\ns_add_u32 s45, s45, s43")
            a("s_lshr_b32 s44, s41, 3\ns_and_b32 s46, s41, 1")
        elif self.mapping == "m8":
            a("s_lshr_b32 s43, s41, 1\ns_and_b32 s43, s43, 3\ns_lshl_b32 s45, s40, 2\ns_add_u32 s45, s45, s43")
            a("s_lshr_b32 s44, s41, 3\ns_and_b32 s46, s41, 1")
        elif self.mapping == "m3":
            a("s_and_b32 s43, s41, 3\ns_lshl_b32 s45, s43, 3\ns_add_u32 s45, s45, s40")
            a("s_lshr_b32 s44, s41, 2\ns_and_b32 s44, s44, 3\ns_lshr_b32 s46, s41, 4")
        elif self.mapping == "n":
            a("s_and_b32 s46, s2, 1\ns_lshr_b32 s45, s2, 1\ns_and_b32 s45, s45, 31\ns_lshr_b32 s44, s2, 6")
        a("s_lshl_b32 s47, s44, 5\ns_add_u32 s47, s47, s45\ns_lshl_b32 s47, s47, 1\ns_add_u32 s47, s47, s46")
        a("s_cmp_ge_u32 s3, 4\ns_cbranch_scc1 L_helper")
        if self.Rsplit:
            if self.splitx: a("s_and_b32 s18, s2, 1\ns_cmp_eq_u32 s18, 0\ns_cbranch_scc0 L_streamB")
            else: a("s_cmp_eq_u32 s46, 0\ns_cbranch_scc0 L_streamB")
            self.R = self.Rsplit[0]; self.stream()
            a("L_streamB:")
            self.R = self.Rsplit[1]; self.stream()
        else:
            self.stream()
        a("L_helper:")
        self.helper()
        a("L_exit:\ns_endpgm")
        return "\n".join(self.L)

HEADER = open("parallel_sum__gqa_block_cached__glu_gated_reglu__decode.s.ref").read().split("; Override launch")[0]

def full_source(g, nfv=256):
    body = g.build()
    s = HEADER
    s += "; Override launch geometry by editing the next line (default: block=256,\n"
    s += f"; @launch grid=(256,1,1) block=(512,1,1) lds={LDS_SIZE}\n"
    s += f""".amdgcn_target "amdgcn-amd-amdhsa--gfx950"
.text
.globl {NAME}
.p2align 8
.type {NAME},@function
{NAME}:
{body}
.section .rodata,"a"
.p2align 6
.amdhsa_kernel {NAME}
  .amdhsa_next_free_vgpr {nfv}
  .amdhsa_next_free_sgpr 102
  .amdhsa_accum_offset 256
  .amdhsa_group_segment_fixed_size 0
  .amdhsa_kernarg_size 96
  .amdhsa_user_sgpr_count 2
  .amdhsa_user_sgpr_kernarg_segment_ptr 1
  .amdhsa_system_sgpr_workgroup_id_x 1
.end_amdhsa_kernel
"""
    return s

if __name__ == "__main__":
    import argparse
    p = argparse.ArgumentParser()
    p.add_argument("-R", type=int, default=5); p.add_argument("--PG", type=int, default=1)
    p.add_argument("--stamps", action="store_true"); p.add_argument("--map", default="m4")
    p.add_argument("-o", default="/dev/stdout")
    x = p.parse_args()
    g = Gen(R=x.R, PG=x.PG, stamps=x.stamps, mapping=x.map)
    open(x.o, "w").write(full_source(g))
```

```python
import struct, sys
NAME = "parallel_sum__gqa_block_cached__glu_gated_reglu__decode_kernel"

def f2h(x):
    return "0x%08x" % struct.unpack("<I", struct.pack("<f", x))[0]

LOG2E = f2h(1.4426950408889634)
SCALE = f2h(128 ** -0.5)
INV640 = f2h(1.0 / 640.0)
EPS = f2h(1e-5)

QP, MW, FW, OP, YP, SC, XNL, HL, LDS_SIZE = 0, 2048, 2064, 4096, 6144, 16384, 32768, 43008, 45056
Y_OFF, ML_OFF, Z_OFF, PS_OFF = 0x100000, 0x1A0000, 0x1B0000, 0x280000
GL_OFF = 0x40000
P_OFF = Z_OFF
PRG, MODE = 3072, 2304
F7 = 2096
SPIN_MAX = 200000

class Gen:
    def __init__(self, R=5, PG=1, stamps=False, mapping="m4", sleep=True, b0=True, rot=True, pre=0, wo_win=2, ffn_gu=8, ffn_dn=2, skip_wo=False, skip_ffn=False, wo_flags='nt', wo_rot=False, wq_flags='', early=False, ffn_exp=0, Rsplit=None, ctl=False, Rlo=5, Rhi=8, csh=11, cbias=1024, pstep=4, cthr=896, cloc=True, mld='nt', mst='', f2=False, dbgst=False, kst=None, vst=None, splitx=False, gx=0, gsh=0, xclr=0, xzc=0, clw='w4', psp=0, flag='at', qo=0, b0at=39, fe=0, yp=1, schk=0, sigk=0, xsig=0, xchk=0, pfl='sc1', mlfl='sc1', psfl='sc1'):
        self.xclr, self.xzc = xclr, xzc
        self.clw, self.psp, self.flag = clw, psp, flag
        self.qo, self.b0at, self.fe, self.yp = qo, b0at, fe, yp
        self.schk, self.xsig, self.sigk = schk, xsig, sigk
        self.xchk, self.pfl, self.mlfl, self.psfl = xchk, pfl, mlfl, psfl
        self.gx, self.gsh = gx, gsh
        self.splitx = splitx
        self.kst, self.vst = kst, vst
        self.f2 = f2
        self.dbgst = dbgst
        if dbgst: stamps = True
        self.cloc, self.mld, self.mst = cloc, mld, mst
        self.Rsplit = Rsplit
        self.ctl, self.Rlo, self.Rhi, self.csh, self.cbias, self.pstep, self.cthr = ctl, Rlo, Rhi, csh, cbias, pstep, cthr
        self.R, self.PG, self.stamps, self.mapping, self.sleep = R, PG, stamps, mapping, sleep
        self.skip_wo, self.skip_ffn, self.wo_flags, self.wo_rot = skip_wo, skip_ffn, wo_flags, wo_rot
        self.wq_flags, self.early, self.ffn_exp = wq_flags, early, ffn_exp
        self.b0, self.rot, self.pre, self.wo_win, self.ffn_gu, self.ffn_dn = b0, rot, pre, wo_win, ffn_gu, ffn_dn
        self.L = []
        self.uid = 0
        self.block = 512
        self.lds = LDS_SIZE
    def a(self, s):
        for line in s.split("\n"):
            line = line.strip()
            if line: self.L.append("    " + line if not line.endswith(":") else line)
    def c(self, s):
        self.L.append("    ; " + s)
    def label(self, p):
        self.uid += 1
        return f"L_{p}_{self.uid}"
    def stamp(self, k):
        if self.stamps:
            self.a(f"s_memrealtime s[98:99]\ns_waitcnt lgkmcnt(0)\ns_mov_b32 s{88+k}, s98")
    def stamp_flush(self, role="s"):
        if not self.stamps: return
        a = self.a
        if self.dbgst:
            skip = self.label("nodbg")
            a(f"s_and_b32 s56, s3, 3\ns_cmp_eq_u32 s56, 0\ns_cbranch_scc0 {skip}")
            if role == "s": a(f"s_lshr_b32 s56, s2, 3\ns_and_b32 s56, s56, 3\ns_cmp_eq_u32 s56, 0\ns_cbranch_scc0 {skip}")
            else: a(f"s_cmp_lt_u32 s2, 80\ns_cbranch_scc0 {skip}")
            a("s_mov_b32 s56, s84\ns_mov_b32 s57, s85\ns_mov_b32 s58, 256\ns_mov_b32 s59, 0x20000")
            a("s_mov_b64 exec, 1")
            def at(op, word, sreg, inv=False, low=False):
                a(f"v_mov_b32 v251, s{sreg}")
                if inv: a("v_not_b32 v251, v251")
                if low: a("v_and_b32 v251, 0xfffff, v251")
                a(f"buffer_atomic_{op} v251, off, s[56:59], 0 offset:{4*word} sc1\ns_nop 1")
            at("umax", 1, 96, inv=True); at("umax", 2, 96)
            if role == "s":
                at("umax", 3, 89, inv=True); at("umax", 4, 89); at("umax", 5, 90, inv=True); at("umax", 6, 90)
                at("umax", 7, 91, inv=True); at("umax", 8, 91); at("add", 11, 91, low=True); at("add", 12, 90, low=True)
            else:
                at("umax", 9, 93); at("umax", 10, 92); at("umax", 13, 88, inv=True); at("umax", 14, 88)
            a("s_mov_b64 exec, -1")
            a(f"{skip}:")
            return
        a("s_mov_b32 s56, s86\ns_mov_b32 s57, s87\ns_mov_b32 s58, 0x100000\ns_mov_b32 s59, 0x20000")
        a("s_lshl_b32 s60, s2, 3\ns_add_u32 s60, s60, s3\ns_lshl_b32 s60, s60, 6")
        a("s_mov_b64 exec, 1")
        a("v_mov_b32 v250, 0\ns_mov_b32 s95, s96")
        for k in range(8):
            a(f"v_mov_b32 v251, s{88+k}")
            a(f"buffer_store_dword v251, v250, s[56:59], s60 offen offset:{4*k}")
            a("s_nop 1")
        a("s_mov_b64 exec, -1")

    def srd(self, base, ptr, nrec):
        self.a(f"s_mov_b32 s{base}, s{ptr}\ns_mov_b32 s{base+1}, s{ptr+1}\ns_mov_b32 s{base+2}, {hex(nrec)}\ns_mov_b32 s{base+3}, 0x20000")
    def const64(self, sreg, val):
        self.a(f"s_mov_b32 s{sreg}, {hex(val & 0xffffffff)}\ns_mov_b32 s{sreg+1}, {hex(val >> 32)}")
    def masks16x32(self, m0, tmp):
        a = self.a
        self.const64(60, 0xAAAAAAAAAAAAAAAA)
        a(f"v_mov_b32 v{tmp}, 0xffff\nv_mov_b32 v{tmp+1}, 0xffff0000")
        a(f"v_cndmask_b32_e64 v{tmp}, v{tmp}, v{tmp+1}, s[60:61]")
        for jj in range(4):
            self.const64(60, 0x0303030303030303 << (2 * jj))
            a(f"v_cndmask_b32_e64 v{m0+jj}, 0, v{tmp}, s[60:61]")
    def wave_reduce(self, v, op, sdst):
        a = self.a
        for r in (8, 4, 2, 1):
            a(f"{op}_dpp v{v}, v{v}, v{v} row_ror:{r} row_mask:0xf bank_mask:0xf\ns_nop 1")
        a(f"{op}_dpp v{v}, v{v}, v{v} row_bcast:15 row_mask:0xa bank_mask:0xf\ns_nop 1")
        a(f"{op}_dpp v{v}, v{v}, v{v} row_bcast:31 row_mask:0xc bank_mask:0xf\ns_nop 1")
        a(f"v_readlane_b32 s{sdst}, v{v}, 63\ns_nop 1")
    def rbf16(self, v):
        self.a(f"v_cvt_pk_bf16_f32 v{v}, v{v}, v{v}\nv_and_b32 v{v}, 0xffff0000, v{v}")
    def layernorm(self, xr, n_out, t0, s0):
        a = self.a
        for r in range(10): a(f"v_lshlrev_b32 v{xr+r}, 16, v{xr+r}")
        a(f"v_add_f32 v{t0}, v{xr}, v{xr+1}\nv_add_f32 v{t0+1}, v{xr+2}, v{xr+3}")
        for r in range(4, 10, 2):
            a(f"v_add_f32 v{t0}, v{t0}, v{xr+r}\nv_add_f32 v{t0+1}, v{t0+1}, v{xr+r+1}")
        a(f"v_add_f32 v{t0}, v{t0}, v{t0+1}\ns_nop 1")
        self.wave_reduce(t0, "v_add_f32", s0)
        a(f"v_mov_b32 v{t0}, {INV640}\nv_mul_f32 v{t0}, s{s0}, v{t0}")
        a(f"v_sub_f32 v{t0+1}, v{xr}, v{t0}\nv_mul_f32 v{t0+2}, v{t0+1}, v{t0+1}")
        for r in range(1, 10):
            a(f"v_sub_f32 v{t0+1}, v{xr+r}, v{t0}\nv_fmac_f32 v{t0+2}, v{t0+1}, v{t0+1}")
        a("s_nop 1")
        self.wave_reduce(t0 + 2, "v_add_f32", s0 + 1)
        a(f"v_mov_b32 v{t0+2}, {INV640}\nv_mul_f32 v{t0+2}, s{s0+1}, v{t0+2}")
        self.rbf16(t0); self.rbf16(t0 + 2)
        a(f"v_add_f32 v{t0+2}, {EPS}, v{t0+2}")
        self.rbf16(t0 + 2)
        a(f"v_sqrt_f32 v{t0+2}, v{t0+2}\ns_nop 0")
        self.rbf16(t0 + 2)
        a(f"v_rcp_f32 v{t0+2}, v{t0+2}\ns_nop 0")
        for r in range(n_out):
            a(f"v_sub_f32 v{xr+r}, v{xr+r}, v{t0}")
            self.rbf16(xr + r)
            a(f"v_mul_f32 v{xr+r}, v{xr+r}, v{t0+2}")
            a(f"v_cvt_pk_bf16_f32 v{xr+r}, v{xr+r}, v{xr+r}")
    def spin_head(self, name, scnt):
        l = self.label(name); d = self.label(name + "_done")
        self.a(f"s_mov_b32 s{scnt}, {SPIN_MAX}\n{l}:")
        return l, d
    def reduce_hq(self, v0, n, t):
        a = self.a
        a("s_nop 1")
        for i in range(n): a(f"v_add_f32_dpp v{v0+i}, v{v0+i}, v{v0+i} row_ror:8 row_mask:0xf bank_mask:0xf")
        for sw in ("v_permlane16_swap_b32", "v_permlane32_swap_b32"):
            for i in range(n): a(f"v_mov_b32 v{t+i}, v{v0+i}")
            a("s_nop 1")
            for i in range(n): a(f"{sw} v{t+i}, v{v0+i}")
            a("s_nop 1")
            for i in range(n): a(f"v_add_f32 v{v0+i}, v{v0+i}, v{t+i}")

    def stream(self):
        a, R, PG = self.a, self.R, self.PG
        vK, vV, vSW, vSR, vMax, vS, vT0, vT1, vP, vSn, vE = 1, 2, 3, 4, 5, 6, 7, 8, 9, 10, 11
        MK, AQ, D, ACC, PA = 12, 16, 32, 40, 44
        RING = 64
        TQ = 192
        self.c("==== streaming waves (0..3): K then V of this workgroup's 4096 keys ====")
        a(f"v_and_b32 v7, 15, v0\nv_lshrrev_b32 v8, 4, v0")
        a(f"v_lshrrev_b32 v9, 2, v7\nv_lshlrev_b32 v{vK}, 8, v9")
        a(f"v_lshlrev_b32 v10, 6, v8\nv_or_b32 v{vK}, v{vK}, v10")
        a(f"v_and_b32 v10, 3, v7\nv_lshlrev_b32 v10, 4, v10\nv_or_b32 v{vK}, v{vK}, v10")
        a(f"v_lshlrev_b32 v{vV}, 4, v0")
        a("s_lshl_b32 s16, s47, 20\ns_lshl_b32 s17, s3, 12\ns_add_u32 s16, s16, s17\ns_mov_b32 s17, s16")
        a("s_waitcnt lgkmcnt(0)")
        self.stamp(6)
        self.srd(8, 66, 0x10000000)
        self.srd(12, 68, 0x10000000)
        if self.ctl: a("s_add_u32 s14, s47, 1\ns_lshl_b32 s14, s14, 20")
        if self.clw == 's':
            self.srd(24, 86, 0x40000000)
            l3, ld = self.label("clr3"), self.label("clrd")
            a("v_mov_b32 v56, -1\nv_mov_b32 v57, -1\nv_mov_b32 v58, -1\nv_mov_b32 v59, -1\nv_lshlrev_b32 v60, 4, v0")
            a(f"s_cmp_eq_u32 s3, 3\ns_cbranch_scc1 {l3}")
            a(f"s_mul_i32 s48, s47, 2560\ns_add_u32 s48, s48, {Y_OFF}\ns_lshl_b32 s49, s3, 10\ns_add_u32 s48, s48, s49")
            a("s_cmp_eq_u32 s3, 2\ns_cselect_b32 exec_hi, 0, -1")
            a("buffer_store_dwordx4 v[56:59], v60, s[24:27], s48 offen sc1")
            a(f"s_mov_b64 exec, -1\ns_branch {ld}")
            a(f"{l3}:")
            a(f"s_lshl_b32 s48, s47, 7\ns_add_u32 s48, s48, {ML_OFF}\ns_mov_b64 exec, 1")
            a("buffer_store_dwordx2 v[56:57], v60, s[24:27], s48 offen sc1")
            if self.ctl:
                self.slot_addr(49, 50)
                a(f"v_mov_b32 v58, 0\nbuffer_store_dword v58, v60, s[24:27], s49 offen {'' if self.psp else 'sc1'}")
            a("s_mov_b64 exec, -1")
            a(f"{ld}:")
            if self.pre == 0 and self.b0 and self.b0at == 39: a("s_waitcnt vmcnt(0)")
        st = {"issued": 0}
        def slot(n):
            if n < 16 * PG: return RING + 4 * n
            return RING + 4 * (n % 16)
        def issue(n):
            t = n & 3
            if n < 256:
                a(f"buffer_load_dwordx4 v[{slot(n)}:{slot(n)+3}], v{vK}, s[8:11], s16 offen offset:{t*1024} nt")
                if t == 3: a("s_add_u32 s16, s16, 0x4000")
            else:
                a(f"buffer_load_dwordx4 v[{slot(n)}:{slot(n)+3}], v{vV}, s[12:15], s17 offen offset:{t*1024} nt")
                if t == 3: a("s_add_u32 s17, s17, 0x4000")
        for n in range(16 * PG):
            if self.b0 and n == self.pre:
                if self.clw == 's' and self.pre and self.b0at == 39: a(f"s_waitcnt vmcnt({self.pre})")
                a("s_barrier")
            issue(n)
        self.stamp(0)
        self.masks16x32(MK, 7)
        self.const64(48, 0x2222222222222222); self.const64(50, 0x4444444444444444); self.const64(52, 0x8888888888888888)
        a("v_and_b32 v7, 15, v0\nv_lshrrev_b32 v8, 4, v0\nv_lshrrev_b32 v9, 2, v7\nv_and_b32 v10, 3, v7")
        a(f"v_lshlrev_b32 v9, 4, v9\nv_lshlrev_b32 v{vSW}, 2, v8\nv_add_u32 v{vSW}, v{vSW}, v9\nv_add_u32 v{vSW}, v{vSW}, v10")
        a(f"v_lshlrev_b32 v{vSW}, 2, v{vSW}")
        a(f"s_lshl_b32 s18, s3, 12\ns_add_u32 s18, s18, {SC}")
        a(f"v_add_u32 v{vSW}, s18, v{vSW}")
        a(f"v_lshlrev_b32 v{vSR}, 2, v0\nv_add_u32 v{vSR}, s18, v{vSR}")
        a(f"v_mov_b32 v{vMax}, 0xff800000")
        a(f"v_lshlrev_b32 v9, 2, v8\nv_add_u32 v9, v9, v10\nv_lshlrev_b32 v9, 5, v9")
        vProg, vPA, vMode, vMA = 52, 53, 54, 55
        if self.ctl:
            a(f"s_lshl_b32 s21, s3, 8\ns_add_u32 s21, s21, {PRG}\nv_lshlrev_b32 v{vPA}, 2, v0\nv_add_u32 v{vPA}, s21, v{vPA}")
            a(f"s_lshl_b32 s21, s3, 2\ns_add_u32 s21, s21, {MODE}\nv_mov_b32 v{vMA}, s21")
            a(f"v_mov_b32 v{vProg}, 0\nv_mov_b32 v{vMode}, {R}")
            a(f"ds_write_b32 v{vPA}, v{vProg}\nds_write_b32 v{vMA}, v{vMode}\ns_waitcnt lgkmcnt(0)")
        if self.clw == 's' and (not self.b0 or self.b0at != 39): a(f"s_waitcnt vmcnt({16*PG})")
        a("s_barrier")
        for hw in range(4):
            a(f"ds_read_b128 v[{TQ+8*hw}:{TQ+8*hw+3}], v9 offset:{QP+512*hw}")
            a(f"ds_read_b128 v[{TQ+8*hw+4}:{TQ+8*hw+7}], v9 offset:{QP+512*hw+16}")
        a("s_waitcnt lgkmcnt(0)")
        for j in range(8): a(f"v_add_f32 v{TQ+j}, v{TQ+j}, v{TQ+8+j}\nv_add_f32 v{TQ+16+j}, v{TQ+16+j}, v{TQ+24+j}")
        for j in range(8): a(f"v_add_f32 v{TQ+j}, v{TQ+j}, v{TQ+16+j}")
        for jj in range(4): a(f"v_cvt_pk_bf16_f32 v{TQ+8+jj}, v{TQ+2*jj}, v{TQ+2*jj+1}")
        for t in range(4):
            self.const64(60, 0x000F000F000F000F << (4 * t))
            for jj in range(4): a(f"v_cndmask_b32_e64 v{AQ+4*t+jj}, 0, v{TQ+8+jj}, s[60:61]")
        a("s_nop 1")
        self.stamp(1)

        issued = [16 * PG]
        def kgroup(G, mode):
            for s in range(16):
                n = 16 * G + s
                tau, t = s >> 2, s & 3
                a(f"s_waitcnt vmcnt({issued[0]-1-n})")
                cin = "0" if t == 0 else f"v[{D}:{D+3}]"
                mf = f"v_mfma_f32_16x16x32_bf16 v[{D}:{D+3}], v[{AQ+4*t}:{AQ+4*t+3}], v[{slot(n)}:{slot(n)+3}], {cin}"
                nxt = None
                if n < 16 * PG:
                    if n < R: nxt = 16 * PG + n
                else:
                    nxt = n + R
                early = self.early and nxt is not None and slot(nxt) != slot(n)
                if not early: a(mf)
                if nxt is not None:
                    assert nxt == issued[0], (n, nxt, issued)
                    issue(nxt); issued[0] += 1
                if early: a(mf)
                if t == 3:
                    a("s_nop 7")
                    a(f"v_mov_b32_dpp v{vT0}, v{D} quad_perm:[0,0,0,0] row_mask:0xf bank_mask:0xf")
                    a(f"v_mov_b32_dpp v{vT1}, v{D+2} quad_perm:[2,2,2,2] row_mask:0xf bank_mask:0xf")
                    a("s_nop 0")
                    a(f"v_add_f32_dpp v{vT0}, v{D+1}, v{vT0} quad_perm:[1,1,1,1] row_mask:0xf bank_mask:0xf")
                    a(f"v_add_f32_dpp v{vT1}, v{D+3}, v{vT1} quad_perm:[3,3,3,3] row_mask:0xf bank_mask:0xf")
                    if tau == 0:
                        a(f"v_add_f32 v{vS}, v{vT0}, v{vT1}")
                    else:
                        a(f"v_add_f32 v{vT0}, v{vT0}, v{vT1}")
                        a(f"v_cndmask_b32_e64 v{vS}, v{vS}, v{vT0}, s[{46+2*tau}:{47+2*tau}]")
            self.rbf16(vS)
            a(f"v_mul_f32 v{vS}, {SCALE}, v{vS}")
            self.rbf16(vS)
            a(f"v_max_f32 v{vMax}, v{vMax}, v{vS}")
            a(f"ds_write_b32 v{vSW}, v{vS}")
            a(f"v_add_u32 v{vSW}, 0x100, v{vSW}")
        for G in range(PG): kgroup(G, "first")
        a(f"s_mov_b32 s19, {15-PG}")
        lk = self.label("K")
        a(f"{lk}:")
        save = issued[0]
        kgroup(PG, "steady")
        if self.kst and self.stamps:
            a("s_memrealtime s[98:99]\ns_waitcnt lgkmcnt(0)")
            for slot_, G_ in zip((4, 5), self.kst):
                a(f"s_cmp_eq_u32 s19, {15-G_}\ns_cselect_b32 s{88+slot_}, s98, s{88+slot_}")
        a(f"s_sub_u32 s19, s19, 1\ns_cmp_lg_u32 s19, 0\ns_cbranch_scc1 {lk}")
        issued[0] = save + 16 * (15 - PG)
        kgroup(15, "last")
        a("s_nop 1")
        self.wave_reduce(vMax, "v_max_f32", 20)
        a(f"v_mov_b32 v{vMax}, s20")
        a(f"s_lshl_b32 s18, s3, 2\ns_add_u32 s18, s18, {MW}\nv_mov_b32 v7, s18")
        a(f"ds_write_b32 v7, v{vMax}")
        a(f"ds_read_b32 v{vSn}, v{vSR}\nv_add_u32 v{vSR}, 0x100, v{vSR}")
        for j in range(4): a(f"v_mov_b32 v{ACC+j}, 0")
        self.stamp(2)
        def abuild(s):
            tau, t = s >> 2, s & 3
            for jj in range(4):
                a(f"v_and_b32_dpp v{PA+4*(s&1)+jj}, v{vP}, v{MK+jj} row_newbcast:{4*t+tau} row_mask:0xf bank_mask:0xf")
        def vgroup(G, last):
            a("s_waitcnt lgkmcnt(0)")
            a(f"v_sub_f32 v{vE}, v{vSn}, v{vMax}\nv_mul_f32 v{vE}, {LOG2E}, v{vE}\nv_exp_f32 v{vE}, v{vE}")
            if not last:
                a(f"ds_read_b32 v{vSn}, v{vSR}\nv_add_u32 v{vSR}, 0x100, v{vSR}")
            else:
                a("s_nop 0")
            a(f"v_cvt_pk_bf16_f32 v{vP}, v{vE}, v{vE}\ns_nop 1")
            abuild(0)
            for s in range(16):
                n = 256 + 16 * G + s
                A = PA + 4 * (s & 1)
                mf = f"v_mfma_f32_16x16x32_bf16 v[{ACC}:{ACC+3}], v[{A}:{A+3}], v[{slot(n)}:{slot(n)+3}], v[{ACC}:{ACC+3}]"
                nxt = n + R
                early = self.early and nxt < 512
                a(f"s_waitcnt vmcnt({issued[0]-1-n})")
                if not early: a("s_nop 0\n" + mf)
                if nxt < 512:
                    assert nxt == issued[0]
                    issue(nxt); issued[0] += 1
                if early: a(mf)
                if s < 15: abuild(s + 1)
        if not self.ctl:
            a("s_mov_b32 s19, 15")
            lv = self.label("V")
            a(f"{lv}:")
            save = issued[0]
            vgroup(0, False)
            a(f"s_sub_u32 s19, s19, 1\ns_cmp_lg_u32 s19, 0\ns_cbranch_scc1 {lv}")
            issued[0] = save + 16 * 15
            vgroup(15, True)
        else:
            def vissue(n):
                t = n & 3
                a(f"buffer_load_dwordx4 v[{RING+4*(n%16)}:{RING+4*(n%16)+3}], v{vV}, s[12:15], s17 offen offset:{t*1024} nt")
                if t == 3: a("s_add_u32 s17, s17, 0x4000")
            def vhead():
                a("s_waitcnt lgkmcnt(0)")
                a(f"v_sub_f32 v{vE}, v{vSn}, v{vMax}\nv_mul_f32 v{vE}, {LOG2E}, v{vE}\nv_exp_f32 v{vE}, v{vE}")
                a(f"ds_read_b32 v{vSn}, v{vSR}\nv_add_u32 v{vSR}, 0x100, v{vSR}")
                a(f"v_cvt_pk_bf16_f32 v{vP}, v{vE}, v{vE}\ns_nop 1")
                abuild(0)
            def vstep(s, Rw, Ri):
                A = PA + 4 * (s & 1)
                a(f"s_waitcnt vmcnt({Rw-1})\ns_nop 0")
                a(f"v_mfma_f32_16x16x32_bf16 v[{ACC}:{ACC+3}], v[{A}:{A+3}], v[{RING+4*s}:{RING+4*s+3}], v[{ACC}:{ACC+3}]")
                if Ri is not None: vissue(s + Ri)
                if s < 15: abuild(s + 1)
                if (s + 1) % self.pstep == 0:
                    a(f"v_add_u32 v{vProg}, {self.pstep}, v{vProg}\nds_write_b32 v{vPA}, v{vProg}")
                if s == 13: a(f"ds_read_b32 v{vMode}, v{vMA}")
            uid = self.label("vc")
            modes = list(range(self.Rlo, self.Rhi + 1))
            assert R in modes
            a(f"s_mov_b32 s19, 16\ns_branch {uid}_top{R}")
            for m in modes:
                a(f"{uid}_top{m}:")
                vhead(); vstep(0, m, m)
                a(f"{uid}_s1_{m}:")
                for s in range(1, 16): vstep(s, m, m)
                a(f"s_sub_u32 s19, s19, 1\ns_cmp_eq_u32 s19, 0\ns_cbranch_scc1 {uid}_done")
                a(f"s_waitcnt lgkmcnt(0)\nv_readfirstlane_b32 s21, v{vMode}")
                if m < self.Rhi: a(f"s_cmp_gt_u32 s21, {m}\ns_cbranch_scc1 {uid}_up{m}")
                if m > self.Rlo: a(f"s_cmp_lt_u32 s21, {m}\ns_cbranch_scc1 {uid}_dn{m}")
                a(f"s_branch {uid}_top{m}")
                if m < self.Rhi:
                    a(f"{uid}_up{m}:")
                    vissue(m)
                    a(f"s_branch {uid}_top{m+1}")
                if m > self.Rlo:
                    a(f"{uid}_dn{m}:")
                    vhead(); vstep(0, m, None)
                    a(f"s_branch {uid}_s1_{m-1}")
            a(f"{uid}_done:\ns_waitcnt vmcnt(0)")
        a("v_and_b32 v7, 15, v0\nv_lshrrev_b32 v8, 4, v0\nv_and_b32 v8, 1, v8\nv_lshlrev_b32 v7, 5, v7\nv_lshlrev_b32 v8, 4, v8\nv_add_u32 v7, v7, v8")
        a(f"s_lshl_b32 s18, s3, 9\ns_add_u32 s18, s18, {OP}\nv_add_u32 v7, s18, v7")
        a(f"s_nop 1\nds_write_b128 v7, v[{ACC}:{ACC+3}]\ns_waitcnt lgkmcnt(0)")
        self.stamp(3)
        a("s_barrier")
        self.stamp_flush()
        a("s_endpgm")

    def helper(self):
        a = self.a
        MK, A0, D, YA, W = 4, 20, 28, 32, 64
        self.c("==== helper waves (4..7): q projection, FFN, softmax denominators, output projection, final sum ====")
        a("s_sub_u32 s5, s3, 4")
        HW = 5
        self.HW = HW
        a("v_and_b32 v1, 15, v0\nv_lshrrev_b32 v2, 4, v0")
        a(f"s_mul_i32 s48, s{HW}, 40")
        a("s_lshl_b32 s52, s44, 1\ns_add_u32 s52, s52, s46\ns_mul_i32 s52, s52, 5" if self.rot else "s_mov_b32 s52, 0")
        a("s_mul_i32 s49, s44, 1280")
        a("v_lshlrev_b32 v3, 13, v2\nv_lshlrev_b32 v9, 4, v1\nv_add_u32 v3, v3, v9")
        a(f"s_mul_i32 s53, s{HW}, {160*8192}\ns_lshl_b32 s51, s45, 8\ns_add_u32 s53, s53, s51")
        a(f"s_lshl_b32 s50, s52, 15\ns_add_u32 s50, s50, s53\ns_add_u32 s51, s53, {40*32768}")
        a("s_waitcnt lgkmcnt(0)")
        self.stamp(6)
        self.srd(8, 64, 5120)
        self.srd(12, 70, 5242880)
        for r in range(10):
            t = 52 + (r & 3)
            a(f"v_add_u32 v{t}, {16*r}, v1")
            if r <= 2:
                a(f"v_add_u32 v8, s52, v{t}\nv_subrev_u32 v9, 40, v8\nv_min_u32 v8, v8, v9\nv_add_u32 v8, s48, v8")
            if r >= 2:
                a(f"v_add_u32 v{t}, s48, v{t}\nv_subrev_u32 v9, 160, v{t}\nv_min_u32 v{t}, v{t}, v9")
            if r < 2:
                a(f"v_mov_b32 v{t}, v8")
            elif r == 2:
                a(f"v_cmp_gt_u32 vcc, 8, v1\ns_nop 1\nv_cndmask_b32 v{t}, v{t}, v8, vcc")
            a(f"v_lshlrev_b32 v{t}, 2, v{t}\nv_add_u32 v{t}, v{t}, v2\nv_lshlrev_b32 v{t}, 1, v{t}")
            a(f"buffer_load_ushort v{10+r}, v{t}, s[8:11], s49 offen")
        def wq_issue(u):
            a(f"buffer_load_dwordx4 v[{W+4*u}:{W+4*u+3}], v3, s[12:15], s50 offen {self.wq_flags}")
            if u < 39: a("s_add_u32 s50, s50, 0x8000\ns_cmp_eq_u32 s50, s51\ns_cselect_b32 s50, s53, s50")
        N1 = self.qo if self.qo else 40
        for u in range(N1):
            wq_issue(u)
            if self.qo and u == self.b0at:
                if self.b0: a("s_barrier")
                self.stamp(0)
        if not self.qo:
            if self.b0: a("s_barrier")
            self.stamp(0)
        self.masks16x32(MK, 8)
        a(f"v_mov_b32 v52, -1\nv_mov_b32 v53, -1\nv_mov_b32 v54, -1\nv_mov_b32 v55, -1\nv_mov_b32 v9, {MW}\nds_write_b128 v9, v[52:55]")
        if self.fe: a(f"ds_write_b32 v9, v52 offset:{F7-MW}")
        self.srd(16, 72, 5242880)
        self.srd(20, 86, 0x40000000)
        self.srd(24, 84, 256)
        self.srd(28, 82, 5120)
        a(f"s_waitcnt vmcnt({N1})")
        self.layernorm(10, 3, 54 if self.qo else 52, 54 if self.qo else 52)
        def abuild(src, u, buf, MKr=MK):
            for jj in range(4):
                a(f"v_and_b32_dpp v{A0+4*buf+jj}, v{src}, v{MKr+jj} row_newbcast:{u} row_mask:0xf bank_mask:0xf")
        a("s_nop 1")
        abuild(10, 0, 0)
        for u in range(40):
            if u + N1 < 40:
                wq_issue(u + N1)
                if u + N1 == self.b0at:
                    if self.b0: a("s_barrier")
                    self.stamp(0)
            if u < 39: abuild(10 + ((u + 1) >> 4), (u + 1) & 15, (u + 1) & 1)
            else: a("s_nop 1")
            a(f"s_waitcnt vmcnt({min(N1, 39-u)})")
            A = A0 + 4 * (u & 1)
            cin = "0" if u == 0 else f"v[{D}:{D+3}]"
            a(f"v_mfma_f32_16x16x32_bf16 v[{D}:{D+3}], v[{A}:{A+3}], v[{W+4*u}:{W+4*u+3}], {cin}")
        a("v_lshlrev_b32 v8, 5, v1\nv_and_b32 v9, 1, v2\nv_lshlrev_b32 v9, 4, v9\nv_add_u32 v8, v8, v9")
        a(f"s_lshl_b32 s48, s{HW}, 9\nv_add_u32 v9, s48, v8")
        a(f"s_nop 3\nds_write_b128 v9, v[{D}:{D+3}] offset:{QP}\ns_waitcnt lgkmcnt(0)")
        a("s_barrier")
        self.stamp(1)
        l_wo = self.label("wo")
        l_w5 = self.label("w5") if self.clw == 's' else l_wo
        if self.fe:
            a(f"s_and_b32 s48, s{HW}, 1\ns_cmp_eq_u32 s48, 1\ns_cbranch_scc0 {l_wo}")
            a(f"s_and_b32 s48, s2, 1\ns_cmp_eq_u32 s48, {1 if self.fe == 3 else 0}\ns_cbranch_scc0 {l_w5}\ns_cmp_lt_u32 s2, 216\ns_cbranch_scc0 {l_w5}")
        else:
            a(f"s_cmp_eq_u32 s{HW}, 1\ns_cbranch_scc0 {l_wo}\ns_cmp_lt_u32 s2, {216 if self.f2 else 27}\ns_cbranch_scc0 {l_w5}")
        if self.skip_ffn:
            a("v_mov_b32 v52, 1\ns_mov_b64 exec, 1\nbuffer_atomic_add v52, off, s[24:27], 0 offset:128 sc1\ns_mov_b64 exec, -1")
        elif self.f2:
            self.ffn1()
        else:
            self.ffn()
        if self.clw == 's':
            l_sg = self.label("sig")
            a(f"s_branch {l_wo}")
            a(f"{l_w5}:")
            a(f"s_cmp_eq_u32 s{HW}, 1\ns_cbranch_scc0 {l_wo}")
            self.signal()
        a(f"{l_wo}:")
        l_nc = self.label("noclear")
        if self.clw == 'w4': self.wave4_clear(l_nc)
        self.wo_prefetch_and_rest(MK, A0, D, YA, W, HW, abuild)

    def signal(self, sr=48, now=False):
        a = self.a
        if self.xsig: return
        if self.sigk and not now: return
        a("v_mov_b32 v52, 1\ns_mov_b64 exec, 1")
        if self.flag == 'at': a("buffer_atomic_add v52, off, s[24:27], 0 sc1")
        elif self.flag.startswith('at'):
            N = int(self.flag[2:]); sh = {2: 7, 4: 6, 8: 5, 16: 4, 32: 3, 64: 2}[N]
            a(f"s_and_b32 s{sr}, s2, {N-1}\ns_lshl_b32 s{sr}, s{sr}, {sh}\nbuffer_atomic_add v52, off, s[24:27], s{sr} sc1")
        elif self.flag == 'byte': a("v_mov_b32 v53, s2\nbuffer_store_byte v52, v53, s[24:27], 0 offen sc1")
        a("s_mov_b64 exec, -1")
    def signal_check(self, name):
        a = self.a
        if self.schk:
            assert self.flag == 'at4'
            fast = self.label("chkfast")
            g = " glc" if self.schk == 1 else ""
            for i in range(4): a(f"s_load_dword s{48+i}, s[84:85], {hex(64*i)}{g}")
            a("s_waitcnt lgkmcnt(0)\ns_min_u32 s48, s48, s49\ns_min_u32 s50, s50, s51\ns_min_u32 s48, s48, s50")
            a(f"s_cmp_ge_u32 s48, 64\ns_cbranch_scc1 {fast}")
            self.schk, keep = 0, self.schk
            self.signal_check(name)
            self.schk = keep
            a(f"{fast}:")
            return
        N = int(self.flag[2:]) if self.flag.startswith('at') and self.flag != 'at' else 0
        if N: a(f"v_and_b32 v59, {N-1}, v0\nv_lshlrev_b32 v59, {({2: 7, 4: 6, 8: 5, 16: 4, 32: 3, 64: 2}[N])}, v59")
        elif self.flag == 'byte': a("v_lshlrev_b32 v59, 2, v0")
        l, d = self.spin_head(name, 48)
        if self.flag == 'at':
            a("buffer_load_dword v58, off, s[24:27], 0 sc1\ns_waitcnt vmcnt(0)\nv_cmp_gt_u32 vcc, 256, v58")
        else:
            a("buffer_load_dword v58, v59, s[24:27], 0 offen sc1\ns_waitcnt vmcnt(0)")
            if self.flag == 'byte': a("v_cmp_ne_u32 vcc, 0x01010101, v58")
            else: a(f"v_cmp_gt_u32 vcc, {256 // N}, v58")
        a(f"s_cbranch_vccz {d}")
        a(f"s_sub_u32 s48, s48, 1\ns_cmp_lg_u32 s48, 0\ns_cbranch_scc1 {l}")
        a(f"{d}:")

    def wave4_clear(self, l_nc):
        a = self.a
        HW = self.HW
        a(f"s_cmp_eq_u32 s{HW}, {7 if self.xclr == 2 else 0}\ns_cbranch_scc0 {l_nc}")
        a("v_mov_b32 v52, -1\nv_mov_b32 v53, -1\nv_mov_b32 v54, -1\nv_mov_b32 v55, -1")
        a(f"s_mul_i32 s48, s47, 2560\ns_add_u32 s48, s48, {Y_OFF}\nv_lshlrev_b32 v9, 4, v0")
        a("buffer_store_dwordx4 v[52:55], v9, s[20:23], s48 offen sc1")
        a("buffer_store_dwordx4 v[52:55], v9, s[20:23], s48 offen offset:1024 sc1")
        a("s_mov_b32 exec_hi, 0")
        a("buffer_store_dwordx4 v[52:55], v9, s[20:23], s48 offen offset:2048 sc1")
        a("s_mov_b64 exec, 1")
        a(f"s_lshl_b32 s49, s47, 7\ns_add_u32 s49, s49, {ML_OFF}")
        a("buffer_store_dwordx2 v[52:53], v9, s[20:23], s49 offen sc1")
        if self.ctl:
            self.slot_addr(49, 50)
            a(f"v_mov_b32 v56, 0\nbuffer_store_dword v56, v9, s[20:23], s49 offen {'' if self.psp else 'sc1'}")
            if self.gx:
                nl = self.label("nolead")
                a(f"s_cmp_ge_u32 s2, 248\ns_cbranch_scc0 {nl}")
                a("buffer_store_dword v56, v9, s[20:23], s50 offen offset:128 sc1")
                a(f"s_and_b32 s49, s2, 7\ns_lshl_b32 s49, s49, 2\ns_add_u32 s49, s49, {GL_OFF}")
                a("buffer_store_dword v56, v9, s[20:23], s49 offen sc1")
                a(f"{nl}:")
        a("s_waitcnt vmcnt(0)")
        a("v_mov_b32 v52, 1")
        if not self.xclr: a("buffer_atomic_add v52, off, s[24:27], 0 sc1")
        a("s_mov_b64 exec, -1")
        a(f"{l_nc}:")

    def wo_prefetch_and_rest(self, MK, A0, D, YA, W, HW, abuild):
        a = self.a
        a("v_mul_u32_u24 v3, 1280, v2\nv_lshlrev_b32 v9, 4, v1\nv_add_u32 v3, v3, v9")
        a(f"s_lshl_b32 s48, s45, 7\ns_lshl_b32 s49, s{HW}, 5\ns_add_u32 s48, s48, s49\ns_mul_i32 s48, s48, 1280")
        if self.sigk:
            a(f"s_lshr_b32 s58, s2, {3 + self.sigk - 1}\ns_cmp_eq_u32 s{HW}, 1\ns_cselect_b32 s58, s58, -1")
        for u in range(8):
            if self.skip_wo: break
            for cb in range(5):
                r = W + 4 * (5 * u + cb)
                if self.wo_win and 5 * u + cb >= self.wo_win: a(f"s_waitcnt vmcnt({self.wo_win-1})")
                a(f"buffer_load_dwordx4 v[{r}:{r+3}], v3, s[16:19], s48 offen offset:{256*cb} {self.wo_flags}")
                if self.sigk and 5 * u + cb < (32 >> (self.sigk - 1)):
                    sk = self.label("sk")
                    a(f"s_cmp_eq_u32 s58, {5*u+cb}\ns_cbranch_scc0 {sk}")
                    self.signal(59, True)
                    a(f"{sk}:")
            if u < 7: a(f"s_add_u32 s48, s48, {4*1280}")
        l_b2 = self.label("toB2")
        a(f"s_cmp_eq_u32 s{HW}, 0\ns_cbranch_scc0 {l_b2}")
        self.wave4_mid()
        l_b3 = self.label("toB2b")
        if self.ctl or self.f2: a(f"s_branch {l_b3}")
        a(f"{l_b2}:")
        if self.f2:
            for j in range(20): a(f"v_mov_b32 v{YA+j}, 0")
        if self.ctl:
            a(f"s_cmp_eq_u32 s{HW}, 2\ns_cbranch_scc0 {l_b3}")
            self.monitor()
        if self.ctl or self.f2: a(f"{l_b3}:")
        a("s_waitcnt vmcnt(0)")
        a(f"v_and_b32 v8, 7, v1\nv_lshlrev_b32 v8, 2, v8\nv_add_u32 v8, v8, v2\nv_lshlrev_b32 v8, 2, v8\ns_lshl_b32 s48, s{HW}, 7\nv_add_u32 v8, s48, v8")
        a(f"v_mov_b32 v9, {FW}")
        a("v_lshlrev_b32 v10, 5, v1\nv_and_b32 v11, 1, v2\nv_lshlrev_b32 v11, 4, v11\nv_add_u32 v10, v10, v11")
        a(f"s_mul_i32 s48, s{HW}, 2560\nv_add_u32 v10, s48, v10")
        a(f"s_mul_i32 s48, s{HW}, 640\nv_lshlrev_b32 v11, 4, v0\nv_add_u32 v11, s48, v11")
        a(f"s_mul_i32 s49, s47, 2560\ns_add_u32 s49, s49, {Y_OFF}")
        self.stamp(2)
        a("s_barrier")
        self.stamp(3)
        a("ds_read_b128 v[52:55], v9")
        for w in range(4): a(f"ds_read_b32 v{56+w}, v8 offset:{OP+512*w}")
        a("s_waitcnt lgkmcnt(0)")
        a("v_mul_f32 v56, v52, v56\nv_mul_f32 v58, v54, v58\nv_fmac_f32 v56, v53, v57\nv_fmac_f32 v58, v55, v59\nv_add_f32 v56, v56, v58")
        a("v_cvt_pk_bf16_f32 v56, v56, v56\ns_nop 1")
        abuild(56, 0, 0)
        for u in range(8):
            if u < 7: abuild(56, u + 1, (u + 1) & 1)
            else: a("s_nop 1")
            A = A0 + 4 * (u & 1)
            for cb in range(5):
                r = W + 4 * (5 * u + cb)
                acc = YA + 4 * cb
                cin = "0" if (u == 0 and not self.f2) else f"v[{acc}:{acc+3}]"
                a(f"v_mfma_f32_16x16x32_bf16 v[{acc}:{acc+3}], v[{A}:{A+3}], v[{r}:{r+3}], {cin}")
        a("s_nop 3")
        for cb in range(5):
            if cb == 4: a("s_nop 3")
            a(f"ds_write_b128 v10, v[{YA+4*cb}:{YA+4*cb+3}] offset:{YP+512*cb}")
        a("s_waitcnt lgkmcnt(0)")
        a("s_barrier")
        a("s_mov_b32 exec_hi, 0xff")
        for w in range(4): a(f"ds_read_b128 v[{64+4*w}:{64+4*w+3}], v11 offset:{YP+2560*w}")
        a("s_waitcnt lgkmcnt(0)")
        a("v_pk_add_f32 v[64:65], v[64:65], v[68:69]\nv_pk_add_f32 v[66:67], v[66:67], v[70:71]")
        a("v_pk_add_f32 v[72:73], v[72:73], v[76:77]\nv_pk_add_f32 v[74:75], v[74:75], v[78:79]")
        a("v_pk_add_f32 v[64:65], v[64:65], v[72:73]\nv_pk_add_f32 v[66:67], v[66:67], v[74:75]")
        a("buffer_store_dwordx4 v[64:67], v11, s[20:23], s49 offen sc1")
        a("s_mov_b64 exec, -1")
        self.stamp(4)
        l_fin = self.label("fin")
        a(f"s_cmp_eq_u32 s{HW}, 0\ns_cbranch_scc0 {l_fin}\ns_cmp_lt_u32 s2, 80\ns_cbranch_scc0 {l_fin}")
        self.final_reduce()
        a(f"{l_fin}:")
        self.stamp(5)
        self.stamp_flush("h")
        a("s_endpgm")

    def slot_addr(self, sa, sb):
        a = self.a
        if self.cloc:
            a(f"s_lshr_b32 s{sa}, s2, 3\ns_and_b32 s{sb}, s2, 7\ns_lshl_b32 s{sb}, s{sb}, 8\ns_add_u32 s{sb}, s{sb}, {PS_OFF}")
        else:
            a(f"s_lshr_b32 s{sa}, s2, 3\ns_add_u32 s{sb}, s{sa}, s2\ns_and_b32 s{sb}, s{sb}, 7\ns_lshl_b32 s{sb}, s{sb}, 7\ns_add_u32 s{sb}, s{sb}, {PS_OFF}")
        a(f"s_lshl_b32 s{sa}, s{sa}, 2\ns_add_u32 s{sa}, s{sa}, s{sb}")
    def monitor(self):
        a = self.a
        self.c("---- wave 6: balances the V phase by steering each streaming wave's lookahead depth ----")
        l, d = self.spin_head("mw6", 48)
        a(f"v_mov_b32 v9, {MW}\nds_read_b128 v[52:55], v9\ns_waitcnt lgkmcnt(0)")
        a("v_max3_u32 v9, v52, v53, v54\nv_max_u32 v9, v9, v55\nv_cmp_eq_u32 vcc, -1, v9")
        a(f"s_cbranch_vccz {d}")
        a(f"s_sub_u32 s48, s48, 1\ns_cmp_lg_u32 s48, 0\ns_cbranch_scc1 {l}")
        a(f"{d}:")
        if not self.psp:
            l, d = self.spin_head("clr6", 48)
            a("buffer_load_dword v58, off, s[24:27], 0 sc1\ns_waitcnt vmcnt(0)")
            a(f"v_cmp_gt_u32 vcc, {0 if self.xclr else 256}, v58")
            a(f"s_cbranch_vccz {d}")
            a(f"s_sub_u32 s48, s48, 1\ns_cmp_lg_u32 s48, 0\ns_cbranch_scc1 {l}")
            a(f"{d}:")
        self.slot_addr(49, 50)
        a(f"v_and_b32 v52, 3, v0\nv_lshlrev_b32 v53, 2, v52\nv_add_u32 v53, {MODE}, v53")
        a(f"v_lshlrev_b32 v52, 8, v52\nv_add_u32 v52, {PRG}, v52")
        if not self.gx:
            a("v_and_b32 v54, 31, v0\nv_lshlrev_b32 v54, 2, v54\nv_mov_b32 v9, 0\ns_mov_b32 s51, 0")
        else:
            a("v_lshlrev_b32 v54, 2, v0\nv_min_u32 v54, 128, v54\nv_mov_b32 v9, 0\ns_mov_b32 s51, 0")
            a(f"s_mov_b32 s58, 0\ns_mov_b32 s59, 0\ns_and_b32 s57, s2, 7\ns_lshl_b32 s57, s57, 2\ns_add_u32 s57, s57, {GL_OFF}")
        l, d = self.spin_head("mon", 48)
        a("ds_read_b32 v55, v52\ns_waitcnt lgkmcnt(0)")
        a("v_add_u32_dpp v56, v55, v55 quad_perm:[1,0,3,2] row_mask:0xf bank_mask:0xf\ns_nop 1")
        a("v_add_u32_dpp v56, v56, v56 quad_perm:[2,3,0,1] row_mask:0xf bank_mask:0xf\ns_nop 1")
        a("v_readfirstlane_b32 s52, v56")
        a(f"s_nop 1\ns_cmp_ge_u32 s52, {self.cthr}\ns_cbranch_scc1 {d}")
        a(f"s_mov_b64 exec, 1\nbuffer_store_dword v56, v9, s[20:23], s49 offen {self.mst}\ns_mov_b64 exec, -1")
        a(f"buffer_load_dword v57, v54, s[20:23], s50 offen {self.mld}\ns_waitcnt vmcnt(0)")
        if self.gx:
            a("v_readlane_b32 s55, v57, 32\ns_mov_b32 exec_lo, 0\nv_mov_b32 v57, 0\ns_mov_b32 exec_lo, -1\ns_nop 1")
        self.wave_reduce(57, "v_add_u32", 53)
        if self.gx:
            a("s_lshl_b32 s53, s53, 1")
            nl = self.label("nolead")
            a(f"s_cmp_ge_u32 s2, 248\ns_cbranch_scc0 {nl}")
            a("v_mov_b32 v58, s53\ns_mov_b64 exec, 1\nbuffer_store_dword v58, v9, s[20:23], s57 offen sc1\ns_mov_b64 exec, -1")
            if self.gx == 1:
                a(f"s_waitcnt vmcnt(0)\ns_load_dwordx8 s[32:39], s[86:87], {hex(GL_OFF)} glc\ns_waitcnt lgkmcnt(0)")
                a("s_add_u32 s32, s32, s33\ns_add_u32 s34, s34, s35\ns_add_u32 s36, s36, s37\ns_add_u32 s38, s38, s39")
                a("s_add_u32 s32, s32, s34\ns_add_u32 s36, s36, s38\ns_add_u32 s32, s32, s36")
            else:
                a(f"v_and_b32 v58, 7, v0\nv_lshlrev_b32 v58, 2, v58\ns_mov_b32 s32, {GL_OFF}\nbuffer_load_dword v59, v58, s[20:23], s32 offen sc1\ns_waitcnt vmcnt(0)")
                a("v_add_u32_dpp v59, v59, v59 row_ror:4 row_mask:0xf bank_mask:0xf\ns_nop 1")
                a("v_add_u32_dpp v59, v59, v59 row_ror:2 row_mask:0xf bank_mask:0xf\ns_nop 1")
                a("v_add_u32_dpp v59, v59, v59 row_ror:1 row_mask:0xf bank_mask:0xf\ns_nop 1")
                a("v_readfirstlane_b32 s32, v59\ns_nop 1")
            a("s_lshr_b32 s32, s32, 3\ns_sub_u32 s55, s32, s53")
            if self.gsh: a(f"s_ashr_i32 s55, s55, {self.gsh}")
            a("v_mov_b32 v58, s55\ns_mov_b64 exec, 1")
            a(f"buffer_store_dword v58, v9, s[20:23], s50 offen offset:128 {self.mst}\ns_mov_b64 exec, -1")
            if self.stamps: a("s_mov_b32 s58, s32\ns_mov_b32 s59, s53")
            a(f"{nl}:")
        a("s_sub_u32 s54, s52, s51\ns_lshl_b32 s54, s54, 6\ns_add_u32 s54, s54, s53")
        if self.gx: a("s_add_u32 s54, s54, s55")
        a(f"s_add_u32 s54, s54, {self.cbias}\ns_mov_b32 s51, s52")
        a("v_lshlrev_b32 v55, 8, v55\nv_sub_u32 v55, s54, v55")
        a(f"v_ashrrev_i32 v55, {self.csh}, v55\nv_add_u32 v55, {self.R}, v55")
        a(f"v_max_i32 v55, {self.Rlo}, v55\nv_min_i32 v55, {self.Rhi}, v55")
        a("ds_write_b32 v53, v55")
        a(f"s_sub_u32 s48, s48, 1\ns_cmp_lg_u32 s48, 0\ns_cbranch_scc1 {l}")
        a(f"{d}:")
        a(f"v_mov_b32 v56, 0x400\ns_mov_b64 exec, 1\nbuffer_store_dword v56, v9, s[20:23], s49 offen {self.mst}\ns_mov_b64 exec, -1")
        if self.gx:
            nl = self.label("nolead")
            a(f"s_cmp_ge_u32 s2, 248\ns_cbranch_scc0 {nl}")
            a("v_mov_b32 v58, 0x10000\ns_mov_b64 exec, 1\nbuffer_store_dword v58, v9, s[20:23], s57 offen sc1\ns_mov_b64 exec, -1")
            if self.stamps:
                a("s_and_b32 s32, s2, 7\ns_lshl_b32 s32, s32, 2\nv_mov_b32 v58, s58\nv_mov_b32 v59, s59\ns_mov_b64 exec, 1")
                a("buffer_store_dword v58, v9, s[24:27], s32 offen offset:64\nbuffer_store_dword v59, v9, s[24:27], s32 offen offset:96\ns_mov_b64 exec, -1")
            a(f"{nl}:")

    def wave4_mid(self):
        a = self.a
        self.c("---- wave 4: softmax statistics of this half, exchange with the other half ----")
        l, d = self.spin_head("mw", 48)
        a(f"v_mov_b32 v9, {MW}\nds_read_b128 v[52:55], v9\ns_waitcnt lgkmcnt(0)")
        a("v_max3_u32 v9, v52, v53, v54\nv_max_u32 v9, v9, v55\nv_cmp_eq_u32 vcc, -1, v9")
        a(f"s_cbranch_vccz {d}")
        if self.sleep: a("s_sleep 16")
        a(f"s_sub_u32 s48, s48, 1\ns_cmp_lg_u32 s48, 0\ns_cbranch_scc1 {l}")
        a(f"{d}:")
        self.stamp(6)
        a("v_max3_f32 v56, v52, v53, v54\nv_max_f32 v56, v56, v55")
        a(f"v_lshlrev_b32 v9, 4, v0\nv_add_u32 v9, {SC}, v9\nv_mov_b32 v57, 0\ns_mov_b32 s48, 4")
        lp = self.label("lsum")
        a(f"{lp}:")
        for i in range(4): a(f"ds_read_b128 v[{224+4*i}:{227+4*i}], v9 offset:{1024*i}")
        a("v_add_u32 v9, 4096, v9\ns_waitcnt lgkmcnt(0)")
        for i in range(16): a(f"v_sub_f32 v{224+i}, v{224+i}, v56")
        for i in range(16): a(f"v_mul_f32 v{224+i}, {LOG2E}, v{224+i}")
        for i in range(16): a(f"v_exp_f32 v{224+i}, v{224+i}")
        a("s_nop 0")
        for i in range(16): a(f"v_add_f32 v57, v57, v{224+i}")
        a(f"s_sub_u32 s48, s48, 1\ns_cmp_lg_u32 s48, 0\ns_cbranch_scc1 {lp}")
        a("s_nop 1")
        self.wave_reduce(57, "v_add_f32", 50)
        a("v_mov_b32 v57, s50")
        a(f"s_lshl_b32 s49, s47, 7\ns_add_u32 s49, s49, {ML_OFF}")
        a("v_mov_b32 v9, 0\ns_mov_b64 exec, 1")
        a(f"buffer_store_dwordx2 v[56:57], v9, s[20:23], s49 offen {self.mlfl}")
        a("s_mov_b64 exec, -1")
        if self.f2: self.ffn2()
        if self.clw == 'w4':
            l, d = self.spin_head("clr", 48)
            a("buffer_load_dword v58, off, s[24:27], 0 sc1\ns_waitcnt vmcnt(0)")
            a(f"v_cmp_gt_u32 vcc, {0 if self.xclr else 256}, v58")
            a(f"s_cbranch_vccz {d}")
            a(f"s_sub_u32 s48, s48, 1\ns_cmp_lg_u32 s48, 0\ns_cbranch_scc1 {l}")
            a(f"{d}:")
        a(f"s_xor_b32 s49, s47, 1\ns_lshl_b32 s49, s49, 7\ns_add_u32 s49, s49, {ML_OFF}\nv_mov_b32 v9, 0")
        l, d = self.spin_head("ml", 48)
        a(f"buffer_load_dwordx2 v[58:59], v9, s[20:23], s49 offen {'nt' if self.mlfl != 'sc1' else 'sc1'}\ns_waitcnt vmcnt(0)")
        a("v_max_u32 v60, v58, v59\nv_cmp_eq_u32 vcc, -1, v60")
        a(f"s_cbranch_vccz {d}")
        a(f"s_sub_u32 s48, s48, 1\ns_cmp_lg_u32 s48, 0\ns_cbranch_scc1 {l}")
        a(f"{d}:")
        a("v_max_f32 v60, v56, v58")
        a("v_sub_f32 v56, v56, v60\nv_sub_f32 v58, v58, v60")
        for i in range(4): a(f"v_sub_f32 v{52+i}, v{52+i}, v60")
        a(f"v_mul_f32 v56, {LOG2E}, v56\nv_mul_f32 v58, {LOG2E}, v58")
        for i in range(4): a(f"v_mul_f32 v{52+i}, {LOG2E}, v{52+i}")
        a("v_exp_f32 v56, v56\nv_exp_f32 v58, v58")
        for i in range(4): a(f"v_exp_f32 v{52+i}, v{52+i}")
        a("v_mul_f32 v57, v57, v56\nv_fmac_f32 v57, v59, v58\nv_rcp_f32 v57, v57\ns_nop 0")
        for i in range(4): a(f"v_mul_f32 v{52+i}, v{52+i}, v57")
        a(f"v_mov_b32 v9, {FW}\nds_write_b128 v9, v[52:55]\ns_waitcnt lgkmcnt(0)")
        l_nr = self.label("nored")
        a(f"s_cmp_lt_u32 s2, 80\ns_cbranch_scc0 {l_nr}")
        a("s_mul_i32 s62, s2, 205\ns_lshr_b32 s62, s62, 12\ns_mul_i32 s63, s62, 20\ns_sub_u32 s63, s2, s63")
        if self.f2:
            a("v_and_b32 v59, 7, v0\ns_mul_i32 s48, s62, 1280\ns_lshl_b32 s49, s63, 6\ns_add_u32 s48, s48, s49\nv_lshlrev_b32 v61, 3, v59")
            a("buffer_load_dwordx2 v[246:247], v61, s[8:11], s48 offen\ns_waitcnt vmcnt(0)")
            a("v_lshlrev_b32 v244, 16, v246\nv_and_b32 v245, 0xffff0000, v246\nv_lshlrev_b32 v246, 16, v247\nv_and_b32 v247, 0xffff0000, v247")
            a(f"{l_nr}:")
            return
        l, d = self.spin_head("zc", 48)
        a("buffer_load_dword v58, off, s[24:27], 0 offset:128 sc1\ns_waitcnt vmcnt(0)")
        a("v_cmp_gt_u32 vcc, 27, v58")
        a(f"s_cbranch_vccz {d}")
        a(f"s_sub_u32 s48, s48, 1\ns_cmp_lg_u32 s48, 0\ns_cbranch_scc1 {l}")
        a(f"{d}:")
        a("v_lshrrev_b32 v58, 3, v0\nv_and_b32 v59, 7, v0")
        a("v_mul_u32_u24 v60, 10240, v58\nv_lshlrev_b32 v61, 4, v59\nv_add_u32 v60, v60, v61")
        a(f"s_mul_i32 s48, s62, 2560\ns_lshl_b32 s49, s63, 7\ns_add_u32 s48, s48, s49\ns_add_u32 s48, s48, {Z_OFF}")
        for i in range(3):
            a(f"buffer_load_dwordx4 v[{224+4*i}:{227+4*i}], v60, s[20:23], s48 offen sc1")
            a(f"s_add_u32 s48, s48, {8*10240}")
        a("v_cmp_gt_u32 vcc, 3, v58\nv_mov_b32 v61, 0x7ffffff0\ns_nop 0\nv_cndmask_b32 v60, v61, v60, vcc")
        a("buffer_load_dwordx4 v[236:239], v60, s[20:23], s48 offen sc1")
        a("s_mul_i32 s48, s62, 1280\ns_lshl_b32 s49, s63, 6\ns_add_u32 s48, s48, s49\nv_lshlrev_b32 v61, 3, v59")
        a("buffer_load_dwordx2 v[246:247], v61, s[8:11], s48 offen")
        a("s_waitcnt vmcnt(0)")
        for j in range(4):
            a(f"v_add_f32 v{224+j}, v{224+j}, v{228+j}\nv_add_f32 v{232+j}, v{232+j}, v{236+j}\nv_add_f32 v{240+j}, v{224+j}, v{232+j}")
        self.reduce_hq(240, 4, 248)
        for j in range(4): self.rbf16(240 + j)
        a("v_lshlrev_b32 v244, 16, v246\nv_and_b32 v245, 0xffff0000, v246\nv_lshlrev_b32 v246, 16, v247\nv_and_b32 v247, 0xffff0000, v247")
        a(f"{l_nr}:")

    def final_reduce(self):
        a = self.a
        self.c("---- final sum over the 64 (head, half) rows for 32 output columns of one batch row ----")
        a("v_lshrrev_b32 v58, 3, v0\nv_and_b32 v59, 7, v0")
        a("v_mul_u32_u24 v60, 2560, v58\nv_lshlrev_b32 v61, 4, v59\nv_add_u32 v60, v60, v61")
        a(f"s_mul_i32 s48, s62, {64*2560}\ns_lshl_b32 s49, s63, 7\ns_add_u32 s48, s48, s49\ns_add_u32 s48, s48, {Y_OFF}")
        for i in range(1, 8): a(f"s_add_u32 s{48+i}, s{47+i}, {8*2560}")
        if self.yp > 1:
            S = self.yp
            def issue(st):
                for i in range(8): a(f"buffer_load_dwordx4 v[{64+32*st+4*i}:{67+32*st+4*i}], v60, s[20:23], s{48+i} offen sc1")
            l, fin = self.label("y"), self.label("yfin")
            dn = [self.label("ydone") for _ in range(S)]
            a(f"s_mov_b32 s56, {SPIN_MAX}")
            for st in range(S): issue(st)
            a(f"{l}:")
            for st in range(S):
                b0 = 64 + 32 * st
                a(f"s_waitcnt vmcnt({8*(S-1)})")
                for k in (16, 8, 4):
                    for i in range(0, k, 2):
                        a(f"v_pk_add_f32 v[{b0+i}:{b0+i+1}], v[{b0+i}:{b0+i+1}], v[{b0+k+i}:{b0+k+i+1}]")
                a(f"v_add_f32 v{b0+4}, v{b0}, v{b0+1}\nv_add_f32 v{b0+5}, v{b0+2}, v{b0+3}\nv_add_f32 v{b0+4}, v{b0+4}, v{b0+5}\nv_cmp_u_f32 vcc, v{b0+4}, v{b0+4}")
                a(f"s_cbranch_vccz {dn[st]}")
                issue(st)
            a(f"s_sub_u32 s56, s56, 1\ns_cmp_lg_u32 s56, 0\ns_cbranch_scc1 {l}")
            O = 64 + 32 * S
            for st in range(S):
                a(f"{dn[st]}:")
                for j in range(4): a(f"v_mov_b32 v{O+j}, v{64+32*st+j}")
                if st < S - 1: a(f"s_branch {fin}")
            a(f"{fin}:")
            self.reduce_hq(O, 4, O + 4)
            for j in range(4): a(f"v_add_f32 v{O+j}, v{244+j}, v{O+j}")
            a(f"v_cvt_pk_bf16_f32 v{O}, v{O}, v{O+1}\nv_cvt_pk_bf16_f32 v{O+1}, v{O+2}, v{O+3}")
            a("s_mul_i32 s48, s62, 1280\ns_lshl_b32 s49, s63, 6\ns_add_u32 s57, s48, s49\nv_lshlrev_b32 v61, 3, v59")
            a("s_mov_b64 exec, 0xff")
            a(f"buffer_store_dwordx2 v[{O}:{O+1}], v61, s[28:31], s57 offen")
            a("s_mov_b64 exec, -1")
            return
        l, d = self.spin_head("y", 56)
        for i in range(8):
            a(f"buffer_load_dwordx4 v[{64+4*i}:{67+4*i}], v60, s[20:23], s{48+i} offen sc1")
        a("s_waitcnt vmcnt(0)")
        for st in (16, 8, 4):
            for i in range(0, st, 2):
                a(f"v_pk_add_f32 v[{64+i}:{65+i}], v[{64+i}:{65+i}], v[{64+st+i}:{65+st+i}]")
        a("v_add_f32 v68, v64, v65\nv_add_f32 v69, v66, v67\nv_add_f32 v68, v68, v69\nv_cmp_u_f32 vcc, v68, v68")
        a(f"s_cbranch_vccz {d}")
        a(f"s_sub_u32 s56, s56, 1\ns_cmp_lg_u32 s56, 0\ns_cbranch_scc1 {l}")
        a(f"{d}:")
        self.reduce_hq(64, 4, 68)
        if self.f2:
            for j in range(4): a(f"v_add_f32 v{64+j}, v{244+j}, v{64+j}")
        else:
            for j in range(4): self.rbf16(64 + j)
            for j in range(4): a(f"v_add_f32 v{64+j}, v{244+j}, v{64+j}")
            for j in range(4): self.rbf16(64 + j)
            for j in range(4): a(f"v_add_f32 v{64+j}, v{64+j}, v{240+j}")
        a("v_cvt_pk_bf16_f32 v64, v64, v65\nv_cvt_pk_bf16_f32 v65, v66, v67")
        a("s_mul_i32 s48, s62, 1280\ns_lshl_b32 s49, s63, 6\ns_add_u32 s48, s48, s49\nv_lshlrev_b32 v61, 3, v59")
        a("s_mov_b64 exec, 0xff")
        a("buffer_store_dwordx2 v[64:65], v61, s[28:31], s48 offen")
        a("s_mov_b64 exec, -1")

    def ffn1(self):
        a = self.a
        self.c("---- FFN stage 1: columns 64*(s2>>3).., rows 80*(s2&7).. ----")
        Wg, X, M2, A0, DG, DU, XA = 64, 144, 44, 20, 28, 32, 184
        self.srd(32, 76, 2211840); self.srd(36, 78, 2211840)
        a("v_mul_u32_u24 v11, 3456, v2\nv_lshlrev_b32 v12, 3, v1\nv_add_u32 v11, v11, v12")
        a("s_lshr_b32 s54, s2, 3\ns_and_b32 s55, s2, 7")
        if self.fe == 1: a(f"s_lshr_b32 s48, s{self.HW}, 1\ns_add_u32 s55, s55, s48")
        if self.fe == 2: a(f"s_lshr_b32 s55, s55, 1\ns_lshr_b32 s48, s{self.HW}, 1\ns_lshl_b32 s48, s48, 2\ns_add_u32 s55, s55, s48")
        if self.fe == 3: a(f"s_lshr_b32 s48, s{self.HW}, 1\ns_add_u32 s55, s55, s48\ns_sub_u32 s55, s55, 1")
        a(f"s_lshl_b32 s48, s54, 7\ns_mul_i32 s49, s55, {80*3456}\ns_add_u32 s48, s48, s49")
        for u in range(20):
            a(f"buffer_load_dwordx2 v[{Wg+4*u}:{Wg+1+4*u}], v11, s[32:35], s48 offen nt")
            a(f"buffer_load_dwordx2 v[{Wg+2+4*u}:{Wg+3+4*u}], v11, s[36:39], s48 offen nt")
            if u < 19: a(f"s_add_u32 s48, s48, {4*3456}")
        a("v_lshlrev_b32 v8, 2, v1\nv_add_u32 v8, v8, v2\nv_lshlrev_b32 v8, 1, v8")
        a("s_mov_b32 s48, 0\ns_mov_b32 s49, 1280\ns_mov_b32 s50, 2560\ns_mov_b32 s51, 3840")
        for b in range(4):
            for r in range(10):
                a(f"buffer_load_ushort v{X+10*b+r}, v8, s[8:11], s{48+b} offen offset:{128*r}")
        self.const64(60, 0xAAAAAAAAAAAAAAAA)
        a("v_mov_b32 v52, 0xffff\nv_mov_b32 v53, 0xffff0000\nv_cndmask_b32_e64 v52, v52, v53, s[60:61]")
        for jj in range(2):
            self.const64(60, 0x3333333333333333 << (2 * jj))
            a(f"v_cndmask_b32_e64 v{M2+jj}, 0, v52, s[60:61]")
        a(f"v_mul_u32_u24 v9, 640, v2\nv_lshlrev_b32 v52, 2, v1\nv_add_u32 v9, v9, v52")
        for b in range(4):
            a(f"s_waitcnt vmcnt({30-10*b})")
            self.layernorm(X + 10 * b, 10, 52, 52)
            for r in range(10):
                a(f"ds_write_b32 v9, v{X+10*b+r} offset:{XNL+2560*b+64*r}")
        a("v_lshrrev_b32 v9, 2, v1\nv_lshlrev_b32 v9, 2, v9\nv_add_u32 v9, v9, v2\nv_mul_u32_u24 v10, 640, v9")
        a(f"s_mul_i32 s48, s55, 80\ns_add_u32 s48, s48, {XNL}\nv_add_u32 v10, s48, v10")
        a("s_waitcnt lgkmcnt(0)")
        for i in range(5): a(f"ds_read_b128 v[{XA+4*i}:{XA+3+4*i}], v10 offset:{16*i}")
        a("s_waitcnt lgkmcnt(0)")
        for u in range(20):
            A = A0 + 2 * (u & 1)
            for jj in range(2): a(f"v_and_b32 v{A+jj}, v{XA+u}, v{M2+jj}")
            a("s_nop 1")
            cg = "0" if u == 0 else f"v[{DG}:{DG+3}]"
            cu = "0" if u == 0 else f"v[{DU}:{DU+3}]"
            a(f"v_mfma_f32_16x16x16_bf16 v[{DG}:{DG+3}], v[{A}:{A+1}], v[{Wg+4*u}:{Wg+1+4*u}], {cg}")
            a(f"v_mfma_f32_16x16x16_bf16 v[{DU}:{DU+3}], v[{A}:{A+1}], v[{Wg+2+4*u}:{Wg+3+4*u}], {cu}")
        a("v_mul_u32_u24 v12, 6912, v2\nv_lshlrev_b32 v13, 4, v1\nv_add_u32 v12, v12, v13")
        a(f"s_mul_i32 s48, s55, {2*27648}\ns_lshl_b32 s49, s54, 8\ns_add_u32 s48, s48, s49\ns_add_u32 s48, s48, {P_OFF}\ns_add_u32 s49, s48, 27648")
        a("s_nop 7")
        a(f"buffer_store_dwordx4 v[{DG}:{DG+3}], v12, s[20:23], s48 offen {self.psfl}")
        a(f"buffer_store_dwordx4 v[{DU}:{DU+3}], v12, s[20:23], s49 offen {self.psfl}")
        if self.clw == 's':
            a("s_waitcnt vmcnt(0)")
            if self.fe:
                l5, le = self.label("f5"), self.label("f7e")
                a(f"v_mov_b32 v9, {F7}\ns_cmp_eq_u32 s{self.HW}, 1\ns_cbranch_scc1 {l5}")
                a(f"v_mov_b32 v52, 1\nds_write_b32 v9, v52\ns_branch {le}")
                a(f"{l5}:")
                l, d = self.spin_head("f7", 48)
                a("ds_read_b32 v52, v9\ns_waitcnt lgkmcnt(0)\nv_cmp_eq_u32 vcc, -1, v52")
                a(f"s_cbranch_vccz {d}")
                a(f"s_sub_u32 s48, s48, 1\ns_cmp_lg_u32 s48, 0\ns_cbranch_scc1 {l}")
                a(f"{d}:")
                self.signal()
                a(f"{le}:")
                return
            self.signal()
            return
        a("s_waitcnt vmcnt(0)\nv_mov_b32 v52, 1\ns_mov_b64 exec, 1")
        if not self.xzc: a("buffer_atomic_add v52, off, s[24:27], 0 offset:128 sc1")
        a("s_mov_b64 exec, -1")

    def ffn2(self):
        a = self.a
        MK, A0, YA, T = 4, 20, 32, 224
        self.c("---- FFN stage 2: hidden columns 27*(2h+half).. of batch row b ----")
        self.srd(40, 80, 2211840)
        if self.clw == 's':
            if not self.xchk: self.signal_check("zc")
        else:
            l, d = self.spin_head("zc", 48)
            a("buffer_load_dword v58, off, s[24:27], 0 offset:128 sc1\ns_waitcnt vmcnt(0)")
            a(f"v_cmp_gt_u32 vcc, {0 if self.xzc else 216}, v58")
            a(f"s_cbranch_vccz {d}")
            a(f"s_sub_u32 s48, s48, 1\ns_cmp_lg_u32 s48, 0\ns_cbranch_scc1 {l}")
            a(f"{d}:")
        a("s_lshl_b32 s54, s45, 1\ns_add_u32 s54, s54, s46\ns_mul_i32 s54, s54, 27")
        a("v_lshrrev_b32 v58, 2, v0\nv_mul_u32_u24 v58, 27648, v58\nv_and_b32 v59, 3, v0\nv_lshlrev_b32 v60, 5, v59\nv_add_u32 v58, v58, v60")
        a(f"s_mul_i32 s48, s44, 6912\ns_lshl_b32 s49, s54, 2\ns_add_u32 s48, s48, s49\ns_add_u32 s48, s48, {P_OFF}")
        a(f"buffer_load_dwordx4 v[{T}:{T+3}], v58, s[20:23], s48 offen {self.pfl}")
        a(f"buffer_load_dwordx4 v[{T+4}:{T+7}], v58, s[20:23], s48 offen offset:16 {self.pfl}")
        a("s_waitcnt vmcnt(0)")
        self.reduce_hq(T, 8, T + 8)
        for j in range(8): self.rbf16(T + j)
        a("s_nop 1")
        for j in range(8): a(f"v_mov_b32_dpp v{T+8+j}, v{T+j} row_ror:12 row_mask:0xf bank_mask:0xf")
        for j in range(8):
            a(f"v_max_f32 v{T+j}, 0, v{T+j}\nv_mul_f32 v{T+j}, v{T+j}, v{T+8+j}\nv_cvt_pk_bf16_f32 v{T+j}, v{T+j}, v{T+j}")
        a("v_cmp_gt_u32 vcc, 3, v59\ns_nop 1")
        for j in range(3, 8): a(f"v_cndmask_b32 v{T+j}, 0, v{T+j}, vcc")
        a(f"v_add_u32 v60, {HL}, v60\ns_mov_b64 exec, 15")
        a(f"ds_write_b128 v60, v[{T}:{T+3}]\nds_write_b128 v60, v[{T+4}:{T+7}] offset:16")
        a("s_mov_b64 exec, -1\ns_waitcnt lgkmcnt(0)")
        a(f"v_and_b32 v60, 7, v1\nv_lshlrev_b32 v60, 2, v60\nv_add_u32 v60, v60, v2\nv_lshlrev_b32 v60, 2, v60\nv_add_u32 v60, {HL}, v60")
        a("ds_read_b32 v61, v60")
        a("v_mul_u32_u24 v58, 1280, v2\nv_lshlrev_b32 v59, 4, v1\nv_add_u32 v58, v58, v59")
        a("s_mul_i32 s48, s54, 1280")
        for i in range(7):
            for cb in range(5):
                a(f"buffer_load_dwordx4 v[{T+4*cb}:{T+3+4*cb}], v58, s[40:43], s48 offen offset:{256*cb} nt")
            if i < 6: a(f"s_add_u32 s48, s48, {4*1280}")
            if i == 0: a("s_waitcnt lgkmcnt(0)")
            for jj in range(4):
                a(f"v_and_b32_dpp v{A0+4*(i&1)+jj}, v61, v{MK+jj} row_newbcast:{i} row_mask:0xf bank_mask:0xf")
            A = A0 + 4 * (i & 1)
            a("s_nop 1")
            for cb in range(5):
                acc = YA + 4 * cb
                cin = "0" if i == 0 else f"v[{acc}:{acc+3}]"
                a(f"s_waitcnt vmcnt({4-cb})")
                a(f"v_mfma_f32_16x16x32_bf16 v[{acc}:{acc+3}], v[{A}:{A+3}], v[{T+4*cb}:{T+3+4*cb}], {cin}")
            a("s_nop 7")

    def ffn(self):
        a = self.a
        self.c("---- FFN unit s2: 64 hidden columns for all four rows ----")
        X, M2, A0, DG, DU = 64, 44, 20, 28, 32
        self.srd(32, 76, 2211840); self.srd(36, 78, 2211840); self.srd(40, 80, 2211840)
        a("v_lshlrev_b32 v8, 2, v1\nv_add_u32 v8, v8, v2\nv_lshlrev_b32 v8, 1, v8")
        a("s_mov_b32 s48, 0\ns_mov_b32 s49, 1280\ns_mov_b32 s50, 2560\ns_mov_b32 s51, 3840")
        for b in range(4):
            for r in range(10):
                a(f"buffer_load_ushort v{X+10*b+r}, v8, s[8:11], s{48+b} offen offset:{128*r}")
        self.const64(60, 0xAAAAAAAAAAAAAAAA)
        a("v_mov_b32 v52, 0xffff\nv_mov_b32 v53, 0xffff0000\nv_cndmask_b32_e64 v52, v52, v53, s[60:61]")
        for jj in range(2):
            self.const64(60, 0x3333333333333333 << (2 * jj))
            a(f"v_cndmask_b32_e64 v{M2+jj}, 0, v52, s[60:61]")
        a(f"v_mul_u32_u24 v9, 640, v2\nv_lshlrev_b32 v52, 2, v1\nv_add_u32 v9, v9, v52")
        for b in range(4):
            a(f"s_waitcnt vmcnt({30-10*b})")
            self.layernorm(X + 10 * b, 10, 52, 52)
            for r in range(10):
                a(f"ds_write_b32 v9, v{X+10*b+r} offset:{XNL+2560*b+64*r}")
        a("v_lshrrev_b32 v9, 2, v1\nv_lshlrev_b32 v9, 2, v9\nv_add_u32 v9, v9, v2\nv_mul_u32_u24 v10, 640, v9")
        a(f"v_add_u32 v10, {XNL}, v10")
        a("v_mul_u32_u24 v11, 3456, v2\nv_lshlrev_b32 v12, 3, v1\nv_add_u32 v11, v11, v12")
        a("s_lshl_b32 s48, s2, 7")
        GUSTEP = 4 * 3456
        if self.ffn_exp == 2:
            a("v_lshlrev_b32 v11, 3, v0\ns_mul_i32 s48, s2, 81920")
            GUSTEP = 512
        G = self.ffn_gu
        def issue(u):
            u %= G
            a(f"buffer_load_dwordx2 v[{64+4*u}:{65+4*u}], v11, s[32:35], s48 offen nt")
            a(f"buffer_load_dwordx2 v[{66+4*u}:{67+4*u}], v11, s[36:39], s48 offen nt")
            a(f"s_add_u32 s48, s48, {GUSTEP}")
        a("s_waitcnt lgkmcnt(0)")
        for u in range(G): issue(u)
        for j in range(8): a(f"v_mov_b32 v{DG+j}, 0")
        def rnd(last):
            for i in range(4): a(f"ds_read_b128 v[{128+4*i}:{131+4*i}], v10 offset:{16*i}")
            a("v_add_u32 v10, 64, v10\ns_waitcnt lgkmcnt(0)")
            for u in range(16):
                A = A0 + 2 * (u & 1)
                r = 64 + 4 * (u % G)
                for jj in range(2): a(f"v_and_b32 v{A+jj}, v{128+u}, v{M2+jj}")
                a(f"s_waitcnt vmcnt({2*(G-1) if not last else 2*min(G-1, 15-u)})\ns_nop 0")
                if self.ffn_exp != 1:
                    a(f"v_mfma_f32_16x16x16_bf16 v[{DG}:{DG+3}], v[{A}:{A+1}], v[{r}:{r+1}], v[{DG}:{DG+3}]")
                    a(f"v_mfma_f32_16x16x16_bf16 v[{DU}:{DU+3}], v[{A}:{A+1}], v[{r+2}:{r+3}], v[{DU}:{DU+3}]")
                if not last or u + G < 16: issue(u)
        a("s_mov_b32 s49, 9")
        lp = self.label("gu")
        a(f"{lp}:")
        rnd(False)
        a(f"s_sub_u32 s49, s49, 1\ns_cmp_lg_u32 s49, 0\ns_cbranch_scc1 {lp}")
        rnd(True)
        DN = self.ffn_dn
        a("v_mul_u32_u24 v11, 1280, v2\nv_lshlrev_b32 v12, 3, v1\nv_add_u32 v11, v11, v12")
        a(f"s_mul_i32 s48, s2, {64*1280}")
        def issue2(u2):
            for cb in range(10):
                r = 64 + 2 * (10 * (u2 % DN) + cb)
                a(f"buffer_load_dwordx2 v[{r}:{r+1}], v11, s[40:43], s48 offen offset:{128*cb} nt")
            a(f"s_add_u32 s48, s48, {4*1280}")
        a("s_nop 7")
        for j in range(8): self.rbf16(DG + j)
        for uu in range(DN): issue2(uu)
        for j in range(4):
            a(f"v_max_f32 v{DG+j}, 0, v{DG+j}\nv_mul_f32 v{DG+j}, v{DG+j}, v{DU+j}\nv_cvt_pk_bf16_f32 v{DG+j}, v{DG+j}, v{DG+j}")
        a("v_lshlrev_b32 v12, 8, v2\nv_lshlrev_b32 v13, 2, v1\nv_add_u32 v12, v12, v13")
        for j in range(4): a(f"ds_write_b32 v12, v{DG+j} offset:{HL+64*j}")
        a(f"s_waitcnt lgkmcnt(0)\nv_lshlrev_b32 v12, 6, v9\nv_add_u32 v12, {HL}, v12")
        for i in range(4): a(f"ds_read_b128 v[{208+4*i}:{211+4*i}], v12 offset:{16*i}")
        for j in range(40): a(f"v_mov_b32 v{144+j}, 0")
        a("s_waitcnt lgkmcnt(0)")
        for u2 in range(16):
            A = A0 + 2 * (u2 & 1)
            for jj in range(2): a(f"v_and_b32 v{A+jj}, v{208+u2}, v{M2+jj}")
            for cb in range(10):
                r = 64 + 2 * (10 * (u2 % DN) + cb)
                left = (9 - cb) + 10 * (min(u2 + DN - 1, 15) - u2)
                a(f"s_waitcnt vmcnt({left})")
                if cb == 0: a("s_nop 0")
                a(f"v_mfma_f32_16x16x16_bf16 v[{144+4*cb}:{147+4*cb}], v[{A}:{A+1}], v[{r}:{r+1}], v[{144+4*cb}:{147+4*cb}]")
            if u2 + DN < 16: issue2(u2)
        a("v_mul_u32_u24 v12, 2560, v2\nv_lshlrev_b32 v13, 4, v1\nv_add_u32 v12, v12, v13")
        a(f"s_mul_i32 s48, s2, 10240\ns_add_u32 s48, s48, {Z_OFF}\ns_nop 7")
        for cb in range(10):
            a(f"buffer_store_dwordx4 v[{144+4*cb}:{147+4*cb}], v12, s[20:23], s48 offen offset:{256*cb} sc1")
        a("s_waitcnt vmcnt(0)\nv_mov_b32 v52, 1\ns_mov_b64 exec, 1")
        a("buffer_atomic_add v52, off, s[24:27], 0 offset:128 sc1")
        a("s_mov_b64 exec, -1")

    def build(self):
        a = self.a
        a("s_cmp_ge_u32 s2, 256\ns_cbranch_scc1 L_exit")
        if self.stamps: a("s_memrealtime s[96:97]")
        a("s_load_dwordx16 s[64:79], s[0:1], 0\ns_load_dwordx8 s[80:87], s[0:1], 64")
        a("v_lshrrev_b32 v1, 6, v0\nv_and_b32 v0, 63, v0\nv_readfirstlane_b32 s3, v1")
        if self.stamps:
            for k in range(8): a(f"s_mov_b32 s{88+k}, 0")
        a("s_and_b32 s40, s2, 7\ns_lshr_b32 s41, s2, 3")
        if self.mapping == "m4":
            a("s_lshr_b32 s43, s41, 1\ns_and_b32 s43, s43, 3\ns_lshl_b32 s45, s43, 3\ns_add_u32 s45, s45, s40")
            a("s_lshr_b32 s44, s41, 3\ns_and_b32 s46, s41, 1")
        elif self.mapping == "m6":
            a("s_lshr_b32 s43, s41, 1\ns_and_b32 s43, s43, 3\ns_add_u32 s45, s40, s43\ns_and_b32 s45, s45, 7\ns_lshl_b32 s43, s43, 3\ns_add_u32 s45, s45, s43")
            a("s_lshr_b32 s44, s41, 3\ns_and_b32 s46, s41, 1")
        elif self.mapping == "m7":
            a("s_lshr_b32 s43, s41, 1\ns_and_b32 s43, s43, 3\ns_lshl_b32 s45, s43, 3\ns_xor_b32 s43, s40, 1\ns_add_u32 s45, s45, s43")
            a("s_lshr_b32 s44, s41, 3\ns_and_b32 s46, s41, 1")
        elif self.mapping == "m8":
            a("s_lshr_b32 s43, s41, 1\ns_and_b32 s43, s43, 3\ns_lshl_b32 s45, s40, 2\ns_add_u32 s45, s45, s43")
            a("s_lshr_b32 s44, s41, 3\ns_and_b32 s46, s41, 1")
        elif self.mapping == "m3":
            a("s_and_b32 s43, s41, 3\ns_lshl_b32 s45, s43, 3\ns_add_u32 s45, s45, s40")
            a("s_lshr_b32 s44, s41, 2\ns_and_b32 s44, s44, 3\ns_lshr_b32 s46, s41, 4")
        elif self.mapping == "n":
            a("s_and_b32 s46, s2, 1\ns_lshr_b32 s45, s2, 1\ns_and_b32 s45, s45, 31\ns_lshr_b32 s44, s2, 6")
        a("s_lshl_b32 s47, s44, 5\ns_add_u32 s47, s47, s45\ns_lshl_b32 s47, s47, 1\ns_add_u32 s47, s47, s46")
        a("s_cmp_ge_u32 s3, 4\ns_cbranch_scc1 L_helper")
        if self.Rsplit:
            if self.splitx: a("s_and_b32 s18, s2, 1\ns_cmp_eq_u32 s18, 0\ns_cbranch_scc0 L_streamB")
            else: a("s_cmp_eq_u32 s46, 0\ns_cbranch_scc0 L_streamB")
            self.R = self.Rsplit[0]; self.stream()
            a("L_streamB:")
            self.R = self.Rsplit[1]; self.stream()
        else:
            self.stream()
        a("L_helper:")
        self.helper()
        a("L_exit:\ns_endpgm")
        return "\n".join(self.L)

HEADER = open("parallel_sum__gqa_block_cached__glu_gated_reglu__decode.s.ref").read().split("; Override launch")[0]

def full_source(g, nfv=256):
    body = g.build()
    s = HEADER
    s += "; Override launch geometry by editing the next line (default: block=256,\n"
    s += f"; @launch grid=(256,1,1) block=(512,1,1) lds={LDS_SIZE}\n"
    s += f""".amdgcn_target "amdgcn-amd-amdhsa--gfx950"
.text
.globl {NAME}
.p2align 8
.type {NAME},@function
{NAME}:
{body}
.section .rodata,"a"
.p2align 6
.amdhsa_kernel {NAME}
  .amdhsa_next_free_vgpr {nfv}
  .amdhsa_next_free_sgpr 102
  .amdhsa_accum_offset 256
  .amdhsa_group_segment_fixed_size 0
  .amdhsa_kernarg_size 96
  .amdhsa_user_sgpr_count 2
  .amdhsa_user_sgpr_kernarg_segment_ptr 1
  .amdhsa_system_sgpr_workgroup_id_x 1
.end_amdhsa_kernel
"""
    return s

if __name__ == "__main__":
    import argparse
    p = argparse.ArgumentParser()
    p.add_argument("-R", type=int, default=5); p.add_argument("--PG", type=int, default=1)
    p.add_argument("--stamps", action="store_true"); p.add_argument("--map", default="m4")
    p.add_argument("-o", default="/dev/stdout")
    x = p.parse_args()
    g = Gen(R=x.R, PG=x.PG, stamps=x.stamps, mapping=x.map)
    open(x.o, "w").write(full_source(g))
```

```python
import struct, sys
NAME = "parallel_sum__gqa_block_cached__glu_gated_reglu__decode_kernel"

def f2h(x):
    return "0x%08x" % struct.unpack("<I", struct.pack("<f", x))[0]

LOG2E = f2h(1.4426950408889634)
SCALE = f2h(128 ** -0.5)
INV640 = f2h(1.0 / 640.0)
EPS = f2h(1e-5)

QP, MW, FW, OP, YP, SC, XNL, HL, LDS_SIZE = 0, 2048, 2064, 4096, 6144, 16384, 32768, 43008, 45056
Y_OFF, ML_OFF, Z_OFF, PS_OFF = 0x100000, 0x1A0000, 0x1B0000, 0x280000
GL_OFF = 0x40000
P_OFF = Z_OFF
PRG, MODE = 3072, 2304
F7 = 2096
SPIN_MAX = 200000

class Gen:
    def __init__(self, R=5, PG=1, stamps=False, mapping="m4", sleep=True, b0=True, rot=True, pre=0, wo_win=2, ffn_gu=8, ffn_dn=2, skip_wo=False, skip_ffn=False, wo_flags='nt', wo_rot=False, wq_flags='', early=False, ffn_exp=0, Rsplit=None, ctl=False, Rlo=5, Rhi=8, csh=11, cbias=1024, pstep=4, cthr=896, cloc=True, mld='nt', mst='', f2=False, dbgst=False, kst=None, vst=None, splitx=False, gx=0, gsh=0, xclr=0, xzc=0, clw='w4', psp=0, flag='at', qo=0, b0at=39, fe=0, yp=1, schk=0, ofl='', tl=0, vwarm=0, spf=0, spst=128, spx=1, gM=1, gbias=0, f1win=0, sigk=0, xsig=0, xchk=0, pfl='sc1', mlfl='sc1', psfl='sc1'):
        self.xclr, self.xzc = xclr, xzc
        self.clw, self.psp, self.flag = clw, psp, flag
        self.qo, self.b0at, self.fe, self.yp = qo, b0at, fe, yp
        self.schk, self.xsig, self.sigk, self.f1win = schk, xsig, sigk, f1win
        self.gM, self.gbias, self.ofl = gM, gbias, ofl
        self.spf, self.spst, self.spx, self.vwarm, self.tl = spf, spst, spx, vwarm, tl
        self.xchk, self.pfl, self.mlfl, self.psfl = xchk, pfl, mlfl, psfl
        self.gx, self.gsh = gx, gsh
        self.splitx = splitx
        self.kst, self.vst = kst, vst
        self.f2 = f2
        self.dbgst = dbgst
        if dbgst: stamps = True
        self.cloc, self.mld, self.mst = cloc, mld, mst
        self.Rsplit = Rsplit
        self.ctl, self.Rlo, self.Rhi, self.csh, self.cbias, self.pstep, self.cthr = ctl, Rlo, Rhi, csh, cbias, pstep, cthr
        self.R, self.PG, self.stamps, self.mapping, self.sleep = R, PG, stamps, mapping, sleep
        self.skip_wo, self.skip_ffn, self.wo_flags, self.wo_rot = skip_wo, skip_ffn, wo_flags, wo_rot
        self.wq_flags, self.early, self.ffn_exp = wq_flags, early, ffn_exp
        self.b0, self.rot, self.pre, self.wo_win, self.ffn_gu, self.ffn_dn = b0, rot, pre, wo_win, ffn_gu, ffn_dn
        self.L = []
        self.uid = 0
        self.block = 512
        self.lds = LDS_SIZE
    def a(self, s):
        for line in s.split("\n"):
            line = line.strip()
            if line: self.L.append("    " + line if not line.endswith(":") else line)
    def c(self, s):
        self.L.append("    ; " + s)
    def label(self, p):
        self.uid += 1
        return f"L_{p}_{self.uid}"
    def stamp(self, k):
        if self.stamps:
            self.a(f"s_memrealtime s[98:99]\ns_waitcnt lgkmcnt(0)\ns_mov_b32 s{88+k}, s98")
    def stamp_flush(self, role="s"):
        if not self.stamps: return
        a = self.a
        if self.dbgst:
            skip = self.label("nodbg")
            a(f"s_and_b32 s56, s3, 3\ns_cmp_eq_u32 s56, 0\ns_cbranch_scc0 {skip}")
            if role == "s": a(f"s_lshr_b32 s56, s2, 3\ns_and_b32 s56, s56, 3\ns_cmp_eq_u32 s56, 0\ns_cbranch_scc0 {skip}")
            else: a(f"s_cmp_lt_u32 s2, 80\ns_cbranch_scc0 {skip}")
            a("s_mov_b32 s56, s84\ns_mov_b32 s57, s85\ns_mov_b32 s58, 256\ns_mov_b32 s59, 0x20000")
            a("s_mov_b64 exec, 1")
            def at(op, word, sreg, inv=False, low=False):
                a(f"v_mov_b32 v251, s{sreg}")
                if inv: a("v_not_b32 v251, v251")
                if low: a("v_and_b32 v251, 0xfffff, v251")
                a(f"buffer_atomic_{op} v251, off, s[56:59], 0 offset:{4*word} sc1\ns_nop 1")
            at("umax", 1, 96, inv=True); at("umax", 2, 96)
            if role == "s":
                at("umax", 3, 89, inv=True); at("umax", 4, 89); at("umax", 5, 90, inv=True); at("umax", 6, 90)
                at("umax", 7, 91, inv=True); at("umax", 8, 91); at("add", 11, 91, low=True); at("add", 12, 90, low=True)
            else:
                at("umax", 9, 93); at("umax", 10, 92); at("umax", 13, 88, inv=True); at("umax", 14, 88)
            a("s_mov_b64 exec, -1")
            a(f"{skip}:")
            return
        a("s_mov_b32 s56, s86\ns_mov_b32 s57, s87\ns_mov_b32 s58, 0x100000\ns_mov_b32 s59, 0x20000")
        a("s_lshl_b32 s60, s2, 3\ns_add_u32 s60, s60, s3\ns_lshl_b32 s60, s60, 6")
        a("s_mov_b64 exec, 1")
        a("v_mov_b32 v250, 0\ns_mov_b32 s95, s96")
        for k in range(8):
            a(f"v_mov_b32 v251, s{88+k}")
            a(f"buffer_store_dword v251, v250, s[56:59], s60 offen offset:{4*k} {'sc1' if self.ofl or not self.ctl else ''}")
            a("s_nop 1")
        a("s_mov_b64 exec, -1")

    def srd(self, base, ptr, nrec):
        self.a(f"s_mov_b32 s{base}, s{ptr}\ns_mov_b32 s{base+1}, s{ptr+1}\ns_mov_b32 s{base+2}, {hex(nrec)}\ns_mov_b32 s{base+3}, 0x20000")
    def const64(self, sreg, val):
        self.a(f"s_mov_b32 s{sreg}, {hex(val & 0xffffffff)}\ns_mov_b32 s{sreg+1}, {hex(val >> 32)}")
    def masks16x32(self, m0, tmp):
        a = self.a
        self.const64(60, 0xAAAAAAAAAAAAAAAA)
        a(f"v_mov_b32 v{tmp}, 0xffff\nv_mov_b32 v{tmp+1}, 0xffff0000")
        a(f"v_cndmask_b32_e64 v{tmp}, v{tmp}, v{tmp+1}, s[60:61]")
        for jj in range(4):
            self.const64(60, 0x0303030303030303 << (2 * jj))
            a(f"v_cndmask_b32_e64 v{m0+jj}, 0, v{tmp}, s[60:61]")
    def wave_reduce(self, v, op, sdst):
        a = self.a
        for r in (8, 4, 2, 1):
            a(f"{op}_dpp v{v}, v{v}, v{v} row_ror:{r} row_mask:0xf bank_mask:0xf\ns_nop 1")
        a(f"{op}_dpp v{v}, v{v}, v{v} row_bcast:15 row_mask:0xa bank_mask:0xf\ns_nop 1")
        a(f"{op}_dpp v{v}, v{v}, v{v} row_bcast:31 row_mask:0xc bank_mask:0xf\ns_nop 1")
        a(f"v_readlane_b32 s{sdst}, v{v}, 63\ns_nop 1")
    def rbf16(self, v):
        self.a(f"v_cvt_pk_bf16_f32 v{v}, v{v}, v{v}\nv_and_b32 v{v}, 0xffff0000, v{v}")
    def layernorm(self, xr, n_out, t0, s0):
        a = self.a
        for r in range(10): a(f"v_lshlrev_b32 v{xr+r}, 16, v{xr+r}")
        a(f"v_add_f32 v{t0}, v{xr}, v{xr+1}\nv_add_f32 v{t0+1}, v{xr+2}, v{xr+3}")
        for r in range(4, 10, 2):
            a(f"v_add_f32 v{t0}, v{t0}, v{xr+r}\nv_add_f32 v{t0+1}, v{t0+1}, v{xr+r+1}")
        a(f"v_add_f32 v{t0}, v{t0}, v{t0+1}\ns_nop 1")
        self.wave_reduce(t0, "v_add_f32", s0)
        a(f"v_mov_b32 v{t0}, {INV640}\nv_mul_f32 v{t0}, s{s0}, v{t0}")
        a(f"v_sub_f32 v{t0+1}, v{xr}, v{t0}\nv_mul_f32 v{t0+2}, v{t0+1}, v{t0+1}")
        for r in range(1, 10):
            a(f"v_sub_f32 v{t0+1}, v{xr+r}, v{t0}\nv_fmac_f32 v{t0+2}, v{t0+1}, v{t0+1}")
        a("s_nop 1")
        self.wave_reduce(t0 + 2, "v_add_f32", s0 + 1)
        a(f"v_mov_b32 v{t0+2}, {INV640}\nv_mul_f32 v{t0+2}, s{s0+1}, v{t0+2}")
        self.rbf16(t0); self.rbf16(t0 + 2)
        a(f"v_add_f32 v{t0+2}, {EPS}, v{t0+2}")
        self.rbf16(t0 + 2)
        a(f"v_sqrt_f32 v{t0+2}, v{t0+2}\ns_nop 0")
        self.rbf16(t0 + 2)
        a(f"v_rcp_f32 v{t0+2}, v{t0+2}\ns_nop 0")
        for r in range(n_out):
            a(f"v_sub_f32 v{xr+r}, v{xr+r}, v{t0}")
            self.rbf16(xr + r)
            a(f"v_mul_f32 v{xr+r}, v{xr+r}, v{t0+2}")
            a(f"v_cvt_pk_bf16_f32 v{xr+r}, v{xr+r}, v{xr+r}")
    def spin_head(self, name, scnt):
        l = self.label(name); d = self.label(name + "_done")
        self.a(f"s_mov_b32 s{scnt}, {SPIN_MAX}\n{l}:")
        return l, d
    def reduce_hq(self, v0, n, t):
        a = self.a
        a("s_nop 1")
        for i in range(n): a(f"v_add_f32_dpp v{v0+i}, v{v0+i}, v{v0+i} row_ror:8 row_mask:0xf bank_mask:0xf")
        for sw in ("v_permlane16_swap_b32", "v_permlane32_swap_b32"):
            for i in range(n): a(f"v_mov_b32 v{t+i}, v{v0+i}")
            a("s_nop 1")
            for i in range(n): a(f"{sw} v{t+i}, v{v0+i}")
            a("s_nop 1")
            for i in range(n): a(f"v_add_f32 v{v0+i}, v{v0+i}, v{t+i}")

    def stream(self):
        a, R, PG = self.a, self.R, self.PG
        vK, vV, vSW, vSR, vMax, vS, vT0, vT1, vP, vSn, vE = 1, 2, 3, 4, 5, 6, 7, 8, 9, 10, 11
        MK, AQ, D, ACC, PA = 12, 16, 32, 40, 44
        RING = 64
        TQ = 192
        self.c("==== streaming waves (0..3): K then V of this workgroup's 4096 keys ====")
        a(f"v_and_b32 v7, 15, v0\nv_lshrrev_b32 v8, 4, v0")
        a(f"v_lshrrev_b32 v9, 2, v7\nv_lshlrev_b32 v{vK}, 8, v9")
        a(f"v_lshlrev_b32 v10, 6, v8\nv_or_b32 v{vK}, v{vK}, v10")
        a(f"v_and_b32 v10, 3, v7\nv_lshlrev_b32 v10, 4, v10\nv_or_b32 v{vK}, v{vK}, v10")
        a(f"v_lshlrev_b32 v{vV}, 4, v0")
        a("s_lshl_b32 s16, s47, 20\ns_lshl_b32 s17, s3, 12\ns_add_u32 s16, s16, s17\ns_mov_b32 s17, s16")
        a("s_waitcnt lgkmcnt(0)")
        self.stamp(6)
        self.srd(8, 66, 0x10000000)
        self.srd(12, 68, 0x10000000)
        if self.ctl: a("s_add_u32 s14, s47, 1\ns_lshl_b32 s14, s14, 20")
        if self.clw == 's':
            self.srd(24, 86, 0x40000000)
            l3, ld = self.label("clr3"), self.label("clrd")
            a("v_mov_b32 v56, -1\nv_mov_b32 v57, -1\nv_mov_b32 v58, -1\nv_mov_b32 v59, -1\nv_lshlrev_b32 v60, 4, v0")
            a(f"s_cmp_eq_u32 s3, 3\ns_cbranch_scc1 {l3}")
            a(f"s_mul_i32 s48, s47, 2560\ns_add_u32 s48, s48, {Y_OFF}\ns_lshl_b32 s49, s3, 10\ns_add_u32 s48, s48, s49")
            a("s_cmp_eq_u32 s3, 2\ns_cselect_b32 exec_hi, 0, -1")
            a("buffer_store_dwordx4 v[56:59], v60, s[24:27], s48 offen sc1")
            a(f"s_mov_b64 exec, -1\ns_branch {ld}")
            a(f"{l3}:")
            a(f"s_lshl_b32 s48, s47, 7\ns_add_u32 s48, s48, {ML_OFF}\ns_mov_b64 exec, 1")
            a("buffer_store_dwordx2 v[56:57], v60, s[24:27], s48 offen sc1")
            if self.ctl:
                self.slot_addr(49, 50)
                a(f"v_mov_b32 v58, 0\nbuffer_store_dword v58, v60, s[24:27], s49 offen {'' if self.psp == 1 else 'sc1'}")
                if self.gx:
                    nl = self.label("nolead")
                    a(f"s_cmp_ge_u32 s2, 248\ns_cbranch_scc0 {nl}")
                    a(f"buffer_store_dword v58, v60, s[24:27], s50 offen offset:128 {'' if self.psp == 1 else 'sc1'}")
                    a(f"s_and_b32 s49, s2, 7\ns_lshl_b32 s49, s49, {8 if self.gx == 3 else 2}\ns_add_u32 s49, s49, {GL_OFF}")
                    a("buffer_store_dword v58, v60, s[24:27], s49 offen sc1")
                    a(f"{nl}:")
            a("s_mov_b64 exec, -1")
            a(f"{ld}:")
            if not self.spf and self.pre == 0 and self.b0 and self.b0at == 39: a("s_waitcnt vmcnt(0)")
        if self.spf:
            for i in range(self.spf):
                off = i * self.spst
                off = (off >> 12) * 0x4000 + (off & 4095)
                if i and i % (15 if self.spx == 1 else 7) == 0: a("s_waitcnt lgkmcnt(0)")
                if self.spx == 1: a(f"s_load_dword s100, s[66:67], s16 offset:{hex(off)}")
                else: a(f"s_load_dwordx2 s[100:101], s[66:67], s16 offset:{hex(off)}")
            if self.clw == 's' and self.pre == 0 and self.b0 and self.b0at == 39: a("s_waitcnt vmcnt(0)")
        st = {"issued": 0}
        def slot(n):
            if n < 16 * PG: return RING + 4 * n
            return RING + 4 * (n % 16)
        def issue(n):
            t = n & 3
            if n < 256:
                a(f"buffer_load_dwordx4 v[{slot(n)}:{slot(n)+3}], v{vK}, s[8:11], s16 offen offset:{t*1024} nt")
                if t == 3: a("s_add_u32 s16, s16, 0x4000")
            else:
                a(f"buffer_load_dwordx4 v[{slot(n)}:{slot(n)+3}], v{vV}, s[12:15], s17 offen offset:{t*1024} nt")
                if t == 3: a("s_add_u32 s17, s17, 0x4000")
        for n in range(16 * PG):
            if self.b0 and n == self.pre:
                if self.clw == 's' and self.pre and self.b0at == 39: a(f"s_waitcnt vmcnt({self.pre})")
                a("s_barrier")
            issue(n)
        self.stamp(0)
        self.masks16x32(MK, 7)
        self.const64(48, 0x2222222222222222); self.const64(50, 0x4444444444444444); self.const64(52, 0x8888888888888888)
        a("v_and_b32 v7, 15, v0\nv_lshrrev_b32 v8, 4, v0\nv_lshrrev_b32 v9, 2, v7\nv_and_b32 v10, 3, v7")
        a(f"v_lshlrev_b32 v9, 4, v9\nv_lshlrev_b32 v{vSW}, 2, v8\nv_add_u32 v{vSW}, v{vSW}, v9\nv_add_u32 v{vSW}, v{vSW}, v10")
        a(f"v_lshlrev_b32 v{vSW}, 2, v{vSW}")
        a(f"s_lshl_b32 s18, s3, 12\ns_add_u32 s18, s18, {SC}")
        a(f"v_add_u32 v{vSW}, s18, v{vSW}")
        a(f"v_lshlrev_b32 v{vSR}, 2, v0\nv_add_u32 v{vSR}, s18, v{vSR}")
        a(f"v_mov_b32 v{vMax}, 0xff800000")
        a(f"v_lshlrev_b32 v9, 2, v8\nv_add_u32 v9, v9, v10\nv_lshlrev_b32 v9, 5, v9")
        vProg, vPA, vMode, vMA = 52, 53, 54, 55
        if self.ctl:
            a(f"s_lshl_b32 s21, s3, 8\ns_add_u32 s21, s21, {PRG}\nv_lshlrev_b32 v{vPA}, 2, v0\nv_add_u32 v{vPA}, s21, v{vPA}")
            a(f"s_lshl_b32 s21, s3, 2\ns_add_u32 s21, s21, {MODE}\nv_mov_b32 v{vMA}, s21")
            a(f"v_mov_b32 v{vProg}, 0\nv_mov_b32 v{vMode}, {R}")
            a(f"ds_write_b32 v{vPA}, v{vProg}\nds_write_b32 v{vMA}, v{vMode}\ns_waitcnt lgkmcnt(0)")
        if self.clw == 's' and (not self.b0 or self.b0at != 39): a(f"s_waitcnt vmcnt({16*PG})")
        a("s_barrier")
        for hw in range(4):
            a(f"ds_read_b128 v[{TQ+8*hw}:{TQ+8*hw+3}], v9 offset:{QP+512*hw}")
            a(f"ds_read_b128 v[{TQ+8*hw+4}:{TQ+8*hw+7}], v9 offset:{QP+512*hw+16}")
        a("s_waitcnt lgkmcnt(0)")
        for j in range(8): a(f"v_add_f32 v{TQ+j}, v{TQ+j}, v{TQ+8+j}\nv_add_f32 v{TQ+16+j}, v{TQ+16+j}, v{TQ+24+j}")
        for j in range(8): a(f"v_add_f32 v{TQ+j}, v{TQ+j}, v{TQ+16+j}")
        for jj in range(4): a(f"v_cvt_pk_bf16_f32 v{TQ+8+jj}, v{TQ+2*jj}, v{TQ+2*jj+1}")
        for t in range(4):
            self.const64(60, 0x000F000F000F000F << (4 * t))
            for jj in range(4): a(f"v_cndmask_b32_e64 v{AQ+4*t+jj}, 0, v{TQ+8+jj}, s[60:61]")
        a("s_nop 1")
        self.stamp(1)

        issued = [16 * PG]
        def kgroup(G, mode):
            for s in range(16):
                n = 16 * G + s
                tau, t = s >> 2, s & 3
                a(f"s_waitcnt vmcnt({issued[0]-1-n})")
                cin = "0" if t == 0 else f"v[{D}:{D+3}]"
                mf = f"v_mfma_f32_16x16x32_bf16 v[{D}:{D+3}], v[{AQ+4*t}:{AQ+4*t+3}], v[{slot(n)}:{slot(n)+3}], {cin}"
                nxt = None
                if n < 16 * PG:
                    if n < R: nxt = 16 * PG + n
                else:
                    nxt = n + R
                early = self.early and nxt is not None and slot(nxt) != slot(n)
                if not early: a(mf)
                if nxt is not None:
                    assert nxt == issued[0], (n, nxt, issued)
                    issue(nxt); issued[0] += 1
                if early: a(mf)
                if t == 3:
                    a("s_nop 7")
                    a(f"v_mov_b32_dpp v{vT0}, v{D} quad_perm:[0,0,0,0] row_mask:0xf bank_mask:0xf")
                    a(f"v_mov_b32_dpp v{vT1}, v{D+2} quad_perm:[2,2,2,2] row_mask:0xf bank_mask:0xf")
                    a("s_nop 0")
                    a(f"v_add_f32_dpp v{vT0}, v{D+1}, v{vT0} quad_perm:[1,1,1,1] row_mask:0xf bank_mask:0xf")
                    a(f"v_add_f32_dpp v{vT1}, v{D+3}, v{vT1} quad_perm:[3,3,3,3] row_mask:0xf bank_mask:0xf")
                    if tau == 0:
                        a(f"v_add_f32 v{vS}, v{vT0}, v{vT1}")
                    else:
                        a(f"v_add_f32 v{vT0}, v{vT0}, v{vT1}")
                        a(f"v_cndmask_b32_e64 v{vS}, v{vS}, v{vT0}, s[{46+2*tau}:{47+2*tau}]")
            self.rbf16(vS)
            a(f"v_mul_f32 v{vS}, {SCALE}, v{vS}")
            self.rbf16(vS)
            a(f"v_max_f32 v{vMax}, v{vMax}, v{vS}")
            a(f"ds_write_b32 v{vSW}, v{vS}")
            a(f"v_add_u32 v{vSW}, 0x100, v{vSW}")
        for G in range(PG): kgroup(G, "first")
        a(f"s_mov_b32 s19, {15-PG}")
        lk = self.label("K")
        a(f"{lk}:")
        save = issued[0]
        kgroup(PG, "steady")
        if self.kst and self.stamps:
            a("s_memrealtime s[98:99]\ns_waitcnt lgkmcnt(0)")
            for slot_, G_ in zip((4, 5), self.kst):
                a(f"s_cmp_eq_u32 s19, {15-G_}\ns_cselect_b32 s{88+slot_}, s98, s{88+slot_}")
        a(f"s_sub_u32 s19, s19, 1\ns_cmp_lg_u32 s19, 0\ns_cbranch_scc1 {lk}")
        issued[0] = save + 16 * (15 - PG)
        kgroup(15, "last")
        a("s_nop 1")
        self.wave_reduce(vMax, "v_max_f32", 20)
        a(f"v_mov_b32 v{vMax}, s20")
        a(f"s_lshl_b32 s18, s3, 2\ns_add_u32 s18, s18, {MW}\nv_mov_b32 v7, s18")
        a(f"ds_write_b32 v7, v{vMax}")
        a(f"ds_read_b32 v{vSn}, v{vSR}\nv_add_u32 v{vSR}, 0x100, v{vSR}")
        for j in range(4): a(f"v_mov_b32 v{ACC+j}, 0")
        self.stamp(2)
        def abuild(s):
            tau, t = s >> 2, s & 3
            for jj in range(4):
                a(f"v_and_b32_dpp v{PA+4*(s&1)+jj}, v{vP}, v{MK+jj} row_newbcast:{4*t+tau} row_mask:0xf bank_mask:0xf")
        def vgroup(G, last):
            a("s_waitcnt lgkmcnt(0)")
            a(f"v_sub_f32 v{vE}, v{vSn}, v{vMax}\nv_mul_f32 v{vE}, {LOG2E}, v{vE}\nv_exp_f32 v{vE}, v{vE}")
            if not last:
                a(f"ds_read_b32 v{vSn}, v{vSR}\nv_add_u32 v{vSR}, 0x100, v{vSR}")
            else:
                a("s_nop 0")
            a(f"v_cvt_pk_bf16_f32 v{vP}, v{vE}, v{vE}\ns_nop 1")
            abuild(0)
            for s in range(16):
                n = 256 + 16 * G + s
                A = PA + 4 * (s & 1)
                mf = f"v_mfma_f32_16x16x32_bf16 v[{ACC}:{ACC+3}], v[{A}:{A+3}], v[{slot(n)}:{slot(n)+3}], v[{ACC}:{ACC+3}]"
                nxt = n + R
                early = self.early and nxt < 512
                a(f"s_waitcnt vmcnt({issued[0]-1-n})")
                if not early: a("s_nop 0\n" + mf)
                if nxt < 512:
                    assert nxt == issued[0]
                    issue(nxt); issued[0] += 1
                if early: a(mf)
                if s < 15: abuild(s + 1)
        if not self.ctl:
            a("s_mov_b32 s19, 15")
            lv = self.label("V")
            a(f"{lv}:")
            save = issued[0]
            vgroup(0, False)
            a(f"s_sub_u32 s19, s19, 1\ns_cmp_lg_u32 s19, 0\ns_cbranch_scc1 {lv}")
            issued[0] = save + 16 * 15
            vgroup(15, True)
        else:
            def vissue(n):
                t = n & 3
                a(f"buffer_load_dwordx4 v[{RING+4*(n%16)}:{RING+4*(n%16)+3}], v{vV}, s[12:15], s17 offen offset:{t*1024} nt")
                if t == 3: a("s_add_u32 s17, s17, 0x4000")
            def vhead():
                a("s_waitcnt lgkmcnt(0)")
                a(f"v_sub_f32 v{vE}, v{vSn}, v{vMax}\nv_mul_f32 v{vE}, {LOG2E}, v{vE}\nv_exp_f32 v{vE}, v{vE}")
                a(f"ds_read_b32 v{vSn}, v{vSR}\nv_add_u32 v{vSR}, 0x100, v{vSR}")
                a(f"v_cvt_pk_bf16_f32 v{vP}, v{vE}, v{vE}\ns_nop 1")
                abuild(0)
            def vstep(s, Rw, Ri):
                A = PA + 4 * (s & 1)
                a(f"s_waitcnt vmcnt({Rw-1})\ns_nop 0")
                a(f"v_mfma_f32_16x16x32_bf16 v[{ACC}:{ACC+3}], v[{A}:{A+3}], v[{RING+4*s}:{RING+4*s+3}], v[{ACC}:{ACC+3}]")
                if Ri is not None: vissue(s + Ri)
                if s < 15: abuild(s + 1)
                if (s + 1) % self.pstep == 0:
                    a(f"v_add_u32 v{vProg}, {self.pstep}, v{vProg}\nds_write_b32 v{vPA}, v{vProg}")
                if s == 13: a(f"ds_read_b32 v{vMode}, v{vMA}")
            uid = self.label("vc")
            if self.tl:
                a("v_and_b32 v7, 15, v0\nv_lshrrev_b32 v8, 4, v0\nv_and_b32 v8, 1, v8\nv_lshlrev_b32 v7, 5, v7\nv_lshlrev_b32 v8, 4, v8\nv_add_u32 v7, v7, v8")
                a(f"s_lshl_b32 s18, s3, 9\ns_add_u32 s18, s18, {OP}\nv_add_u32 v7, s18, v7")
            modes = list(range(self.Rlo, self.Rhi + 1))
            assert R in modes
            a(f"s_mov_b32 s19, 16\ns_branch {uid}_top{R}")
            for m in modes:
                a(f"{uid}_top{m}:")
                vhead(); vstep(0, m, m)
                a(f"{uid}_s1_{m}:")
                for s in range(1, 16): vstep(s, m, m)
                a(f"s_sub_u32 s19, s19, 1\ns_cmp_eq_u32 s19, 0\ns_cbranch_scc1 {uid}_done")
                a(f"s_waitcnt lgkmcnt(0)\nv_readfirstlane_b32 s21, v{vMode}")
                if m < self.Rhi: a(f"s_cmp_gt_u32 s21, {m}\ns_cbranch_scc1 {uid}_up{m}")
                if m > self.Rlo: a(f"s_cmp_lt_u32 s21, {m}\ns_cbranch_scc1 {uid}_dn{m}")
                a(f"s_branch {uid}_top{m}")
                if m < self.Rhi:
                    a(f"{uid}_up{m}:")
                    vissue(m)
                    a(f"s_branch {uid}_top{m+1}")
                if m > self.Rlo:
                    a(f"{uid}_dn{m}:")
                    vhead(); vstep(0, m, None)
                    a(f"s_branch {uid}_s1_{m-1}")
            a(f"{uid}_done:")
            if not self.tl: a("s_waitcnt vmcnt(0)")
        if self.tl and self.ctl:
            a(f"s_nop 7\nds_write_b128 v7, v[{ACC}:{ACC+3}]\ns_waitcnt lgkmcnt(0)")
        else:
            a("v_and_b32 v7, 15, v0\nv_lshrrev_b32 v8, 4, v0\nv_and_b32 v8, 1, v8\nv_lshlrev_b32 v7, 5, v7\nv_lshlrev_b32 v8, 4, v8\nv_add_u32 v7, v7, v8")
            a(f"s_lshl_b32 s18, s3, 9\ns_add_u32 s18, s18, {OP}\nv_add_u32 v7, s18, v7")
            a(f"s_nop 1\nds_write_b128 v7, v[{ACC}:{ACC+3}]\ns_waitcnt lgkmcnt(0)")
        self.stamp(3)
        a("s_barrier")
        self.stamp_flush()
        a("s_endpgm")

    def helper(self):
        a = self.a
        MK, A0, D, YA, W = 4, 20, 28, 32, 64
        self.c("==== helper waves (4..7): q projection, FFN, softmax denominators, output projection, final sum ====")
        a("s_sub_u32 s5, s3, 4")
        HW = 5
        self.HW = HW
        a("v_and_b32 v1, 15, v0\nv_lshrrev_b32 v2, 4, v0")
        a(f"s_mul_i32 s48, s{HW}, 40")
        a("s_lshl_b32 s52, s44, 1\ns_add_u32 s52, s52, s46\ns_mul_i32 s52, s52, 5" if self.rot else "s_mov_b32 s52, 0")
        a("s_mul_i32 s49, s44, 1280")
        a("v_lshlrev_b32 v3, 13, v2\nv_lshlrev_b32 v9, 4, v1\nv_add_u32 v3, v3, v9")
        a(f"s_mul_i32 s53, s{HW}, {160*8192}\ns_lshl_b32 s51, s45, 8\ns_add_u32 s53, s53, s51")
        a(f"s_lshl_b32 s50, s52, 15\ns_add_u32 s50, s50, s53\ns_add_u32 s51, s53, {40*32768}")
        a("s_waitcnt lgkmcnt(0)")
        self.stamp(6)
        self.srd(8, 64, 5120)
        self.srd(12, 70, 5242880)
        for r in range(10):
            t = 52 + (r & 3)
            a(f"v_add_u32 v{t}, {16*r}, v1")
            if r <= 2:
                a(f"v_add_u32 v8, s52, v{t}\nv_subrev_u32 v9, 40, v8\nv_min_u32 v8, v8, v9\nv_add_u32 v8, s48, v8")
            if r >= 2:
                a(f"v_add_u32 v{t}, s48, v{t}\nv_subrev_u32 v9, 160, v{t}\nv_min_u32 v{t}, v{t}, v9")
            if r < 2:
                a(f"v_mov_b32 v{t}, v8")
            elif r == 2:
                a(f"v_cmp_gt_u32 vcc, 8, v1\ns_nop 1\nv_cndmask_b32 v{t}, v{t}, v8, vcc")
            a(f"v_lshlrev_b32 v{t}, 2, v{t}\nv_add_u32 v{t}, v{t}, v2\nv_lshlrev_b32 v{t}, 1, v{t}")
            a(f"buffer_load_ushort v{10+r}, v{t}, s[8:11], s49 offen")
        def wq_issue(u):
            a(f"buffer_load_dwordx4 v[{W+4*u}:{W+4*u+3}], v3, s[12:15], s50 offen {self.wq_flags}")
            if u < 39: a("s_add_u32 s50, s50, 0x8000\ns_cmp_eq_u32 s50, s51\ns_cselect_b32 s50, s53, s50")
        N1 = self.qo if self.qo else 40
        for u in range(N1):
            wq_issue(u)
            if self.qo and u == self.b0at:
                if self.b0: a("s_barrier")
                self.stamp(0)
        if not self.qo:
            if self.b0: a("s_barrier")
            self.stamp(0)
        self.masks16x32(MK, 8)
        a(f"v_mov_b32 v52, -1\nv_mov_b32 v53, -1\nv_mov_b32 v54, -1\nv_mov_b32 v55, -1\nv_mov_b32 v9, {MW}\nds_write_b128 v9, v[52:55]")
        if self.fe: a(f"ds_write_b32 v9, v52 offset:{F7-MW}")
        self.srd(16, 72, 5242880)
        self.srd(20, 86, 0x40000000)
        self.srd(24, 84, 256)
        self.srd(28, 82, 5120)
        a(f"s_waitcnt vmcnt({N1})")
        self.layernorm(10, 3, 54 if self.qo else 52, 54 if self.qo else 52)
        def abuild(src, u, buf, MKr=MK):
            for jj in range(4):
                a(f"v_and_b32_dpp v{A0+4*buf+jj}, v{src}, v{MKr+jj} row_newbcast:{u} row_mask:0xf bank_mask:0xf")
        a("s_nop 1")
        abuild(10, 0, 0)
        for u in range(40):
            if u + N1 < 40:
                wq_issue(u + N1)
                if u + N1 == self.b0at:
                    if self.b0: a("s_barrier")
                    self.stamp(0)
            if u < 39: abuild(10 + ((u + 1) >> 4), (u + 1) & 15, (u + 1) & 1)
            else: a("s_nop 1")
            a(f"s_waitcnt vmcnt({min(N1, 39-u)})")
            A = A0 + 4 * (u & 1)
            cin = "0" if u == 0 else f"v[{D}:{D+3}]"
            a(f"v_mfma_f32_16x16x32_bf16 v[{D}:{D+3}], v[{A}:{A+3}], v[{W+4*u}:{W+4*u+3}], {cin}")
        a("v_lshlrev_b32 v8, 5, v1\nv_and_b32 v9, 1, v2\nv_lshlrev_b32 v9, 4, v9\nv_add_u32 v8, v8, v9")
        a(f"s_lshl_b32 s48, s{HW}, 9\nv_add_u32 v9, s48, v8")
        a(f"s_nop 3\nds_write_b128 v9, v[{D}:{D+3}] offset:{QP}\ns_waitcnt lgkmcnt(0)")
        a("s_barrier")
        self.stamp(1)
        l_wo = self.label("wo")
        l_w5 = self.label("w5") if self.clw == 's' else l_wo
        if self.fe:
            a(f"s_and_b32 s48, s{HW}, 1\ns_cmp_eq_u32 s48, 1\ns_cbranch_scc0 {l_wo}")
            a(f"s_and_b32 s48, s2, 1\ns_cmp_eq_u32 s48, {1 if self.fe == 3 else 0}\ns_cbranch_scc0 {l_w5}\ns_cmp_lt_u32 s2, 216\ns_cbranch_scc0 {l_w5}")
        else:
            a(f"s_cmp_eq_u32 s{HW}, 1\ns_cbranch_scc0 {l_wo}\ns_cmp_lt_u32 s2, {216 if self.f2 else 27}\ns_cbranch_scc0 {l_w5}")
        if self.skip_ffn:
            a("v_mov_b32 v52, 1\ns_mov_b64 exec, 1\nbuffer_atomic_add v52, off, s[24:27], 0 offset:128 sc1\ns_mov_b64 exec, -1")
        elif self.f2:
            self.ffn1()
        else:
            self.ffn()
        if self.clw == 's':
            l_sg = self.label("sig")
            a(f"s_branch {l_wo}")
            a(f"{l_w5}:")
            a(f"s_cmp_eq_u32 s{HW}, 1\ns_cbranch_scc0 {l_wo}")
            self.signal()
        a(f"{l_wo}:")
        l_nc = self.label("noclear")
        if self.clw == 'w4': self.wave4_clear(l_nc)
        self.wo_prefetch_and_rest(MK, A0, D, YA, W, HW, abuild)

    def signal(self, sr=48, now=False):
        a = self.a
        if self.xsig: return
        if self.sigk and not now: return
        a("v_mov_b32 v52, 1\ns_mov_b64 exec, 1")
        if self.flag == 'at': a("buffer_atomic_add v52, off, s[24:27], 0 sc1")
        elif self.flag.startswith('at'):
            N = int(self.flag[2:]); sh = {2: 7, 4: 6, 8: 5, 16: 4, 32: 3, 64: 2}[N]
            a(f"s_and_b32 s{sr}, s2, {N-1}\ns_lshl_b32 s{sr}, s{sr}, {sh}\nbuffer_atomic_add v52, off, s[24:27], s{sr} sc1")
        elif self.flag == 'byte': a("v_mov_b32 v53, s2\nbuffer_store_byte v52, v53, s[24:27], 0 offen sc1")
        a("s_mov_b64 exec, -1")
    def signal_check(self, name):
        a = self.a
        if self.schk:
            assert self.flag == 'at4'
            fast = self.label("chkfast")
            g = " glc" if self.schk == 1 else ""
            for i in range(4): a(f"s_load_dword s{48+i}, s[84:85], {hex(64*i)}{g}")
            a("s_waitcnt lgkmcnt(0)\ns_min_u32 s48, s48, s49\ns_min_u32 s50, s50, s51\ns_min_u32 s48, s48, s50")
            a(f"s_cmp_ge_u32 s48, 64\ns_cbranch_scc1 {fast}")
            self.schk, keep = 0, self.schk
            self.signal_check(name)
            self.schk = keep
            a(f"{fast}:")
            return
        N = int(self.flag[2:]) if self.flag.startswith('at') and self.flag != 'at' else 0
        if N: a(f"v_and_b32 v59, {N-1}, v0\nv_lshlrev_b32 v59, {({2: 7, 4: 6, 8: 5, 16: 4, 32: 3, 64: 2}[N])}, v59")
        elif self.flag == 'byte': a("v_lshlrev_b32 v59, 2, v0")
        l, d = self.spin_head(name, 48)
        if self.flag == 'at':
            a("buffer_load_dword v58, off, s[24:27], 0 sc1\ns_waitcnt vmcnt(0)\nv_cmp_gt_u32 vcc, 256, v58")
        else:
            a("buffer_load_dword v58, v59, s[24:27], 0 offen sc1\ns_waitcnt vmcnt(0)")
            if self.flag == 'byte': a("v_cmp_ne_u32 vcc, 0x01010101, v58")
            else: a(f"v_cmp_gt_u32 vcc, {256 // N}, v58")
        a(f"s_cbranch_vccz {d}")
        a(f"s_sub_u32 s48, s48, 1\ns_cmp_lg_u32 s48, 0\ns_cbranch_scc1 {l}")
        a(f"{d}:")

    def wave4_clear(self, l_nc):
        a = self.a
        HW = self.HW
        a(f"s_cmp_eq_u32 s{HW}, {7 if self.xclr == 2 else 0}\ns_cbranch_scc0 {l_nc}")
        a("v_mov_b32 v52, -1\nv_mov_b32 v53, -1\nv_mov_b32 v54, -1\nv_mov_b32 v55, -1")
        a(f"s_mul_i32 s48, s47, 2560\ns_add_u32 s48, s48, {Y_OFF}\nv_lshlrev_b32 v9, 4, v0")
        a("buffer_store_dwordx4 v[52:55], v9, s[20:23], s48 offen sc1")
        a("buffer_store_dwordx4 v[52:55], v9, s[20:23], s48 offen offset:1024 sc1")
        a("s_mov_b32 exec_hi, 0")
        a("buffer_store_dwordx4 v[52:55], v9, s[20:23], s48 offen offset:2048 sc1")
        a("s_mov_b64 exec, 1")
        a(f"s_lshl_b32 s49, s47, 7\ns_add_u32 s49, s49, {ML_OFF}")
        a("buffer_store_dwordx2 v[52:53], v9, s[20:23], s49 offen sc1")
        if self.ctl:
            self.slot_addr(49, 50)
            a(f"v_mov_b32 v56, 0\nbuffer_store_dword v56, v9, s[20:23], s49 offen {'' if self.psp else 'sc1'}")
            if self.gx:
                nl = self.label("nolead")
                a(f"s_cmp_ge_u32 s2, 248\ns_cbranch_scc0 {nl}")
                a("buffer_store_dword v56, v9, s[20:23], s50 offen offset:128 sc1")
                a(f"s_and_b32 s49, s2, 7\ns_lshl_b32 s49, s49, 2\ns_add_u32 s49, s49, {GL_OFF}")
                a("buffer_store_dword v56, v9, s[20:23], s49 offen sc1")
                a(f"{nl}:")
        a("s_waitcnt vmcnt(0)")
        a("v_mov_b32 v52, 1")
        if not self.xclr: a("buffer_atomic_add v52, off, s[24:27], 0 sc1")
        a("s_mov_b64 exec, -1")
        a(f"{l_nc}:")

    def wo_prefetch_and_rest(self, MK, A0, D, YA, W, HW, abuild):
        a = self.a
        a("v_mul_u32_u24 v3, 1280, v2\nv_lshlrev_b32 v9, 4, v1\nv_add_u32 v3, v3, v9")
        a(f"s_lshl_b32 s48, s45, 7\ns_lshl_b32 s49, s{HW}, 5\ns_add_u32 s48, s48, s49\ns_mul_i32 s48, s48, 1280")
        if self.sigk:
            a(f"s_lshr_b32 s58, s2, {3 + self.sigk - 1}\ns_cmp_eq_u32 s{HW}, 1\ns_cselect_b32 s58, s58, -1")
        for u in range(8):
            if self.skip_wo: break
            for cb in range(5):
                r = W + 4 * (5 * u + cb)
                if self.wo_win and 5 * u + cb >= self.wo_win: a(f"s_waitcnt vmcnt({self.wo_win-1})")
                a(f"buffer_load_dwordx4 v[{r}:{r+3}], v3, s[16:19], s48 offen offset:{256*cb} {self.wo_flags}")
                if self.sigk and 5 * u + cb < (32 >> (self.sigk - 1)):
                    sk = self.label("sk")
                    a(f"s_cmp_eq_u32 s58, {5*u+cb}\ns_cbranch_scc0 {sk}")
                    self.signal(59, True)
                    a(f"{sk}:")
            if u < 7: a(f"s_add_u32 s48, s48, {4*1280}")
        if self.vwarm:
            lw = self.label("novw")
            a(f"s_cmp_eq_u32 s{HW}, 3\ns_cbranch_scc0 {lw}\ns_lshl_b32 s49, s47, 20")
            if self.vwarm == 1:
                self.srd(32, 68, 0x10000000)
                a("s_mov_b64 exec, 1\nbuffer_load_dword v60, off, s[32:35], s49\ns_mov_b64 exec, -1")
            else:
                a("s_load_dword s100, s[68:69], s49")
            a(f"{lw}:")
        l_b2 = self.label("toB2")
        a(f"s_cmp_eq_u32 s{HW}, 0\ns_cbranch_scc0 {l_b2}")
        self.wave4_mid()
        l_b3 = self.label("toB2b")
        if self.ctl or self.f2: a(f"s_branch {l_b3}")
        a(f"{l_b2}:")
        if self.f2:
            for j in range(20): a(f"v_mov_b32 v{YA+j}, 0")
        if self.ctl:
            a(f"s_cmp_eq_u32 s{HW}, 2\ns_cbranch_scc0 {l_b3}")
            self.monitor()
        if self.ctl or self.f2: a(f"{l_b3}:")
        a("s_waitcnt vmcnt(0)")
        a(f"v_and_b32 v8, 7, v1\nv_lshlrev_b32 v8, 2, v8\nv_add_u32 v8, v8, v2\nv_lshlrev_b32 v8, 2, v8\ns_lshl_b32 s48, s{HW}, 7\nv_add_u32 v8, s48, v8")
        a(f"v_mov_b32 v9, {FW}")
        a("v_lshlrev_b32 v10, 5, v1\nv_and_b32 v11, 1, v2\nv_lshlrev_b32 v11, 4, v11\nv_add_u32 v10, v10, v11")
        a(f"s_mul_i32 s48, s{HW}, 2560\nv_add_u32 v10, s48, v10")
        a(f"s_mul_i32 s48, s{HW}, 640\nv_lshlrev_b32 v11, 4, v0\nv_add_u32 v11, s48, v11")
        a(f"s_mul_i32 s49, s47, 2560\ns_add_u32 s49, s49, {Y_OFF}")
        self.stamp(2)
        a("s_barrier")
        self.stamp(3)
        a("ds_read_b128 v[52:55], v9")
        for w in range(4): a(f"ds_read_b32 v{56+w}, v8 offset:{OP+512*w}")
        a("s_waitcnt lgkmcnt(0)")
        a("v_mul_f32 v56, v52, v56\nv_mul_f32 v58, v54, v58\nv_fmac_f32 v56, v53, v57\nv_fmac_f32 v58, v55, v59\nv_add_f32 v56, v56, v58")
        a("v_cvt_pk_bf16_f32 v56, v56, v56\ns_nop 1")
        abuild(56, 0, 0)
        for u in range(8):
            if u < 7: abuild(56, u + 1, (u + 1) & 1)
            else: a("s_nop 1")
            A = A0 + 4 * (u & 1)
            for cb in range(5):
                r = W + 4 * (5 * u + cb)
                acc = YA + 4 * cb
                cin = "0" if (u == 0 and not self.f2) else f"v[{acc}:{acc+3}]"
                a(f"v_mfma_f32_16x16x32_bf16 v[{acc}:{acc+3}], v[{A}:{A+3}], v[{r}:{r+3}], {cin}")
        a("s_nop 3")
        for cb in range(5):
            if cb == 4: a("s_nop 3")
            a(f"ds_write_b128 v10, v[{YA+4*cb}:{YA+4*cb+3}] offset:{YP+512*cb}")
        a("s_waitcnt lgkmcnt(0)")
        a("s_barrier")
        a("s_mov_b32 exec_hi, 0xff")
        for w in range(4): a(f"ds_read_b128 v[{64+4*w}:{64+4*w+3}], v11 offset:{YP+2560*w}")
        a("s_waitcnt lgkmcnt(0)")
        a("v_pk_add_f32 v[64:65], v[64:65], v[68:69]\nv_pk_add_f32 v[66:67], v[66:67], v[70:71]")
        a("v_pk_add_f32 v[72:73], v[72:73], v[76:77]\nv_pk_add_f32 v[74:75], v[74:75], v[78:79]")
        a("v_pk_add_f32 v[64:65], v[64:65], v[72:73]\nv_pk_add_f32 v[66:67], v[66:67], v[74:75]")
        a("buffer_store_dwordx4 v[64:67], v11, s[20:23], s49 offen sc1")
        a("s_mov_b64 exec, -1")
        self.stamp(4)
        l_fin = self.label("fin")
        a(f"s_cmp_eq_u32 s{HW}, 0\ns_cbranch_scc0 {l_fin}\ns_cmp_lt_u32 s2, 80\ns_cbranch_scc0 {l_fin}")
        self.final_reduce()
        a(f"{l_fin}:")
        self.stamp(5)
        self.stamp_flush("h")
        a("s_endpgm")

    def slot_addr(self, sa, sb):
        a = self.a
        if self.cloc:
            a(f"s_lshr_b32 s{sa}, s2, 3\ns_and_b32 s{sb}, s2, 7\ns_lshl_b32 s{sb}, s{sb}, 8\ns_add_u32 s{sb}, s{sb}, {PS_OFF}")
        else:
            a(f"s_lshr_b32 s{sa}, s2, 3\ns_add_u32 s{sb}, s{sa}, s2\ns_and_b32 s{sb}, s{sb}, 7\ns_lshl_b32 s{sb}, s{sb}, 7\ns_add_u32 s{sb}, s{sb}, {PS_OFF}")
        a(f"s_lshl_b32 s{sa}, s{sa}, 2\ns_add_u32 s{sa}, s{sa}, s{sb}")
    def monitor(self):
        a = self.a
        self.c("---- wave 6: balances the V phase by steering each streaming wave's lookahead depth ----")
        l, d = self.spin_head("mw6", 48)
        a(f"v_mov_b32 v9, {MW}\nds_read_b128 v[52:55], v9\ns_waitcnt lgkmcnt(0)")
        a("v_max3_u32 v9, v52, v53, v54\nv_max_u32 v9, v9, v55\nv_cmp_eq_u32 vcc, -1, v9")
        a(f"s_cbranch_vccz {d}")
        a(f"s_sub_u32 s48, s48, 1\ns_cmp_lg_u32 s48, 0\ns_cbranch_scc1 {l}")
        a(f"{d}:")
        if self.psp == 2: self.signal_check("clr6")
        if not self.psp:
            l, d = self.spin_head("clr6", 48)
            a("buffer_load_dword v58, off, s[24:27], 0 sc1\ns_waitcnt vmcnt(0)")
            a(f"v_cmp_gt_u32 vcc, {0 if self.xclr else 256}, v58")
            a(f"s_cbranch_vccz {d}")
            a(f"s_sub_u32 s48, s48, 1\ns_cmp_lg_u32 s48, 0\ns_cbranch_scc1 {l}")
            a(f"{d}:")
        self.slot_addr(49, 50)
        a(f"v_and_b32 v52, 3, v0\nv_lshlrev_b32 v53, 2, v52\nv_add_u32 v53, {MODE}, v53")
        a(f"v_lshlrev_b32 v52, 8, v52\nv_add_u32 v52, {PRG}, v52")
        if not self.gx:
            a("v_and_b32 v54, 31, v0\nv_lshlrev_b32 v54, 2, v54\nv_mov_b32 v9, 0\ns_mov_b32 s51, 0")
        else:
            a("v_lshlrev_b32 v54, 2, v0\nv_min_u32 v54, 128, v54\nv_mov_b32 v9, 0\ns_mov_b32 s51, 0")
            a(f"s_mov_b32 s58, 0\ns_mov_b32 s59, 0\ns_and_b32 s57, s2, 7\ns_lshl_b32 s57, s57, {8 if self.gx == 3 else 2}\ns_add_u32 s57, s57, {GL_OFF}")
        l, d = self.spin_head("mon", 48)
        a("ds_read_b32 v55, v52\ns_waitcnt lgkmcnt(0)")
        a("v_add_u32_dpp v56, v55, v55 quad_perm:[1,0,3,2] row_mask:0xf bank_mask:0xf\ns_nop 1")
        a("v_add_u32_dpp v56, v56, v56 quad_perm:[2,3,0,1] row_mask:0xf bank_mask:0xf\ns_nop 1")
        a("v_readfirstlane_b32 s52, v56")
        a(f"s_nop 1\ns_cmp_ge_u32 s52, {self.cthr}\ns_cbranch_scc1 {d}")
        a(f"s_mov_b64 exec, 1\nbuffer_store_dword v56, v9, s[20:23], s49 offen {self.mst}\ns_mov_b64 exec, -1")
        a(f"buffer_load_dword v57, v54, s[20:23], s50 offen {self.mld}\ns_waitcnt vmcnt(0)")
        if self.gx:
            a("v_readlane_b32 s55, v57, 32\ns_mov_b32 exec_lo, 0\nv_mov_b32 v57, 0\ns_mov_b32 exec_lo, -1\ns_nop 1")
        self.wave_reduce(57, "v_add_u32", 53)
        if self.gx:
            a("s_lshl_b32 s53, s53, 1")
            nl = self.label("nolead")
            a(f"s_cmp_ge_u32 s2, 248\ns_cbranch_scc0 {nl}")
            if self.gM > 1: a(f"s_and_b32 s32, s48, {self.gM-1}\ns_cmp_eq_u32 s32, 0\ns_cbranch_scc0 {nl}")
            a("v_mov_b32 v58, s53\ns_mov_b64 exec, 1\nbuffer_store_dword v58, v9, s[20:23], s57 offen sc1\ns_mov_b64 exec, -1")
            if self.gx == 1:
                a(f"s_waitcnt vmcnt(0)\ns_load_dwordx8 s[32:39], s[86:87], {hex(GL_OFF)} glc\ns_waitcnt lgkmcnt(0)")
                a("s_add_u32 s32, s32, s33\ns_add_u32 s34, s34, s35\ns_add_u32 s36, s36, s37\ns_add_u32 s38, s38, s39")
                a("s_add_u32 s32, s32, s34\ns_add_u32 s36, s36, s38\ns_add_u32 s32, s32, s36")
            else:
                a(f"v_and_b32 v58, 7, v0\nv_lshlrev_b32 v58, {8 if self.gx == 3 else 2}, v58\ns_mov_b32 s32, {GL_OFF}\nbuffer_load_dword v59, v58, s[20:23], s32 offen sc1\ns_waitcnt vmcnt(0)")
                a("v_add_u32_dpp v59, v59, v59 row_ror:4 row_mask:0xf bank_mask:0xf\ns_nop 1")
                a("v_add_u32_dpp v59, v59, v59 row_ror:2 row_mask:0xf bank_mask:0xf\ns_nop 1")
                a("v_add_u32_dpp v59, v59, v59 row_ror:1 row_mask:0xf bank_mask:0xf\ns_nop 1")
                a("v_readfirstlane_b32 s32, v59\ns_nop 1")
            a("s_lshr_b32 s32, s32, 3\ns_sub_u32 s55, s32, s53")
            if self.gbias: a(f"s_add_u32 s55, s55, {self.gbias}")
            if self.gsh: a(f"s_ashr_i32 s55, s55, {self.gsh}")
            a("v_mov_b32 v58, s55\ns_mov_b64 exec, 1")
            a(f"buffer_store_dword v58, v9, s[20:23], s50 offen offset:128 {self.mst}\ns_mov_b64 exec, -1")
            if self.stamps: a("s_mov_b32 s58, s32\ns_mov_b32 s59, s53")
            a(f"{nl}:")
        a("s_sub_u32 s54, s52, s51\ns_lshl_b32 s54, s54, 6\ns_add_u32 s54, s54, s53")
        if self.gx: a("s_add_u32 s54, s54, s55")
        a(f"s_add_u32 s54, s54, {self.cbias}\ns_mov_b32 s51, s52")
        a("v_lshlrev_b32 v55, 8, v55\nv_sub_u32 v55, s54, v55")
        a(f"v_ashrrev_i32 v55, {self.csh}, v55\nv_add_u32 v55, {self.R}, v55")
        a(f"v_max_i32 v55, {self.Rlo}, v55\nv_min_i32 v55, {self.Rhi}, v55")
        a("ds_write_b32 v53, v55")
        a(f"s_sub_u32 s48, s48, 1\ns_cmp_lg_u32 s48, 0\ns_cbranch_scc1 {l}")
        a(f"{d}:")
        a(f"v_mov_b32 v56, 0x400\ns_mov_b64 exec, 1\nbuffer_store_dword v56, v9, s[20:23], s49 offen {self.mst}\ns_mov_b64 exec, -1")
        if self.gx:
            nl = self.label("nolead")
            a(f"s_cmp_ge_u32 s2, 248\ns_cbranch_scc0 {nl}")
            a("v_mov_b32 v58, 0x10000\ns_mov_b64 exec, 1\nbuffer_store_dword v58, v9, s[20:23], s57 offen sc1\ns_mov_b64 exec, -1")
            if self.stamps and self.clw == 'w4':
                a("s_and_b32 s32, s2, 7\ns_lshl_b32 s32, s32, 2\nv_mov_b32 v58, s58\nv_mov_b32 v59, s59\ns_mov_b64 exec, 1")
                a("buffer_store_dword v58, v9, s[24:27], s32 offen offset:64\nbuffer_store_dword v59, v9, s[24:27], s32 offen offset:96\ns_mov_b64 exec, -1")
            a(f"{nl}:")

    def wave4_mid(self):
        a = self.a
        self.c("---- wave 4: softmax statistics of this half, exchange with the other half ----")
        l, d = self.spin_head("mw", 48)
        a(f"v_mov_b32 v9, {MW}\nds_read_b128 v[52:55], v9\ns_waitcnt lgkmcnt(0)")
        a("v_max3_u32 v9, v52, v53, v54\nv_max_u32 v9, v9, v55\nv_cmp_eq_u32 vcc, -1, v9")
        a(f"s_cbranch_vccz {d}")
        if self.sleep: a("s_sleep 16")
        a(f"s_sub_u32 s48, s48, 1\ns_cmp_lg_u32 s48, 0\ns_cbranch_scc1 {l}")
        a(f"{d}:")
        self.stamp(6)
        a("v_max3_f32 v56, v52, v53, v54\nv_max_f32 v56, v56, v55")
        a(f"v_lshlrev_b32 v9, 4, v0\nv_add_u32 v9, {SC}, v9\nv_mov_b32 v57, 0\ns_mov_b32 s48, 4")
        lp = self.label("lsum")
        a(f"{lp}:")
        for i in range(4): a(f"ds_read_b128 v[{224+4*i}:{227+4*i}], v9 offset:{1024*i}")
        a("v_add_u32 v9, 4096, v9\ns_waitcnt lgkmcnt(0)")
        for i in range(16): a(f"v_sub_f32 v{224+i}, v{224+i}, v56")
        for i in range(16): a(f"v_mul_f32 v{224+i}, {LOG2E}, v{224+i}")
        for i in range(16): a(f"v_exp_f32 v{224+i}, v{224+i}")
        a("s_nop 0")
        for i in range(16): a(f"v_add_f32 v57, v57, v{224+i}")
        a(f"s_sub_u32 s48, s48, 1\ns_cmp_lg_u32 s48, 0\ns_cbranch_scc1 {lp}")
        a("s_nop 1")
        self.wave_reduce(57, "v_add_f32", 50)
        a("v_mov_b32 v57, s50")
        a(f"s_lshl_b32 s49, s47, 7\ns_add_u32 s49, s49, {ML_OFF}")
        a("v_mov_b32 v9, 0\ns_mov_b64 exec, 1")
        a(f"buffer_store_dwordx2 v[56:57], v9, s[20:23], s49 offen {self.mlfl}")
        a("s_mov_b64 exec, -1")
        if self.f2: self.ffn2()
        if self.clw == 'w4':
            l, d = self.spin_head("clr", 48)
            a("buffer_load_dword v58, off, s[24:27], 0 sc1\ns_waitcnt vmcnt(0)")
            a(f"v_cmp_gt_u32 vcc, {0 if self.xclr else 256}, v58")
            a(f"s_cbranch_vccz {d}")
            a(f"s_sub_u32 s48, s48, 1\ns_cmp_lg_u32 s48, 0\ns_cbranch_scc1 {l}")
            a(f"{d}:")
        a(f"s_xor_b32 s49, s47, 1\ns_lshl_b32 s49, s49, 7\ns_add_u32 s49, s49, {ML_OFF}\nv_mov_b32 v9, 0")
        l, d = self.spin_head("ml", 48)
        a(f"buffer_load_dwordx2 v[58:59], v9, s[20:23], s49 offen {'nt' if self.mlfl != 'sc1' else 'sc1'}\ns_waitcnt vmcnt(0)")
        a("v_max_u32 v60, v58, v59\nv_cmp_eq_u32 vcc, -1, v60")
        a(f"s_cbranch_vccz {d}")
        a(f"s_sub_u32 s48, s48, 1\ns_cmp_lg_u32 s48, 0\ns_cbranch_scc1 {l}")
        a(f"{d}:")
        a("v_max_f32 v60, v56, v58")
        a("v_sub_f32 v56, v56, v60\nv_sub_f32 v58, v58, v60")
        for i in range(4): a(f"v_sub_f32 v{52+i}, v{52+i}, v60")
        a(f"v_mul_f32 v56, {LOG2E}, v56\nv_mul_f32 v58, {LOG2E}, v58")
        for i in range(4): a(f"v_mul_f32 v{52+i}, {LOG2E}, v{52+i}")
        a("v_exp_f32 v56, v56\nv_exp_f32 v58, v58")
        for i in range(4): a(f"v_exp_f32 v{52+i}, v{52+i}")
        a("v_mul_f32 v57, v57, v56\nv_fmac_f32 v57, v59, v58\nv_rcp_f32 v57, v57\ns_nop 0")
        for i in range(4): a(f"v_mul_f32 v{52+i}, v{52+i}, v57")
        a(f"v_mov_b32 v9, {FW}\nds_write_b128 v9, v[52:55]\ns_waitcnt lgkmcnt(0)")
        l_nr = self.label("nored")
        a(f"s_cmp_lt_u32 s2, 80\ns_cbranch_scc0 {l_nr}")
        a("s_mul_i32 s62, s2, 205\ns_lshr_b32 s62, s62, 12\ns_mul_i32 s63, s62, 20\ns_sub_u32 s63, s2, s63")
        if self.f2:
            a("v_and_b32 v59, 7, v0\ns_mul_i32 s48, s62, 1280\ns_lshl_b32 s49, s63, 6\ns_add_u32 s48, s48, s49\nv_lshlrev_b32 v61, 3, v59")
            a("buffer_load_dwordx2 v[246:247], v61, s[8:11], s48 offen\ns_waitcnt vmcnt(0)")
            a("v_lshlrev_b32 v244, 16, v246\nv_and_b32 v245, 0xffff0000, v246\nv_lshlrev_b32 v246, 16, v247\nv_and_b32 v247, 0xffff0000, v247")
            a(f"{l_nr}:")
            return
        l, d = self.spin_head("zc", 48)
        a("buffer_load_dword v58, off, s[24:27], 0 offset:128 sc1\ns_waitcnt vmcnt(0)")
        a("v_cmp_gt_u32 vcc, 27, v58")
        a(f"s_cbranch_vccz {d}")
        a(f"s_sub_u32 s48, s48, 1\ns_cmp_lg_u32 s48, 0\ns_cbranch_scc1 {l}")
        a(f"{d}:")
        a("v_lshrrev_b32 v58, 3, v0\nv_and_b32 v59, 7, v0")
        a("v_mul_u32_u24 v60, 10240, v58\nv_lshlrev_b32 v61, 4, v59\nv_add_u32 v60, v60, v61")
        a(f"s_mul_i32 s48, s62, 2560\ns_lshl_b32 s49, s63, 7\ns_add_u32 s48, s48, s49\ns_add_u32 s48, s48, {Z_OFF}")
        for i in range(3):
            a(f"buffer_load_dwordx4 v[{224+4*i}:{227+4*i}], v60, s[20:23], s48 offen sc1")
            a(f"s_add_u32 s48, s48, {8*10240}")
        a("v_cmp_gt_u32 vcc, 3, v58\nv_mov_b32 v61, 0x7ffffff0\ns_nop 0\nv_cndmask_b32 v60, v61, v60, vcc")
        a("buffer_load_dwordx4 v[236:239], v60, s[20:23], s48 offen sc1")
        a("s_mul_i32 s48, s62, 1280\ns_lshl_b32 s49, s63, 6\ns_add_u32 s48, s48, s49\nv_lshlrev_b32 v61, 3, v59")
        a("buffer_load_dwordx2 v[246:247], v61, s[8:11], s48 offen")
        a("s_waitcnt vmcnt(0)")
        for j in range(4):
            a(f"v_add_f32 v{224+j}, v{224+j}, v{228+j}\nv_add_f32 v{232+j}, v{232+j}, v{236+j}\nv_add_f32 v{240+j}, v{224+j}, v{232+j}")
        self.reduce_hq(240, 4, 248)
        for j in range(4): self.rbf16(240 + j)
        a("v_lshlrev_b32 v244, 16, v246\nv_and_b32 v245, 0xffff0000, v246\nv_lshlrev_b32 v246, 16, v247\nv_and_b32 v247, 0xffff0000, v247")
        a(f"{l_nr}:")

    def final_reduce(self):
        a = self.a
        self.c("---- final sum over the 64 (head, half) rows for 32 output columns of one batch row ----")
        a("v_lshrrev_b32 v58, 3, v0\nv_and_b32 v59, 7, v0")
        a("v_mul_u32_u24 v60, 2560, v58\nv_lshlrev_b32 v61, 4, v59\nv_add_u32 v60, v60, v61")
        a(f"s_mul_i32 s48, s62, {64*2560}\ns_lshl_b32 s49, s63, 7\ns_add_u32 s48, s48, s49\ns_add_u32 s48, s48, {Y_OFF}")
        for i in range(1, 8): a(f"s_add_u32 s{48+i}, s{47+i}, {8*2560}")
        if self.yp > 1:
            S = self.yp
            def issue(st):
                for i in range(8): a(f"buffer_load_dwordx4 v[{64+32*st+4*i}:{67+32*st+4*i}], v60, s[20:23], s{48+i} offen sc1")
            l, fin = self.label("y"), self.label("yfin")
            dn = [self.label("ydone") for _ in range(S)]
            a(f"s_mov_b32 s56, {SPIN_MAX}")
            for st in range(S): issue(st)
            a(f"{l}:")
            for st in range(S):
                b0 = 64 + 32 * st
                a(f"s_waitcnt vmcnt({8*(S-1)})")
                for k in (16, 8, 4):
                    for i in range(0, k, 2):
                        a(f"v_pk_add_f32 v[{b0+i}:{b0+i+1}], v[{b0+i}:{b0+i+1}], v[{b0+k+i}:{b0+k+i+1}]")
                a(f"v_add_f32 v{b0+4}, v{b0}, v{b0+1}\nv_add_f32 v{b0+5}, v{b0+2}, v{b0+3}\nv_add_f32 v{b0+4}, v{b0+4}, v{b0+5}\nv_cmp_u_f32 vcc, v{b0+4}, v{b0+4}")
                a(f"s_cbranch_vccz {dn[st]}")
                issue(st)
            a(f"s_sub_u32 s56, s56, 1\ns_cmp_lg_u32 s56, 0\ns_cbranch_scc1 {l}")
            O = 64 + 32 * S
            for st in range(S):
                a(f"{dn[st]}:")
                for j in range(4): a(f"v_mov_b32 v{O+j}, v{64+32*st+j}")
                if st < S - 1: a(f"s_branch {fin}")
            a(f"{fin}:")
            self.reduce_hq(O, 4, O + 4)
            for j in range(4): a(f"v_add_f32 v{O+j}, v{244+j}, v{O+j}")
            a(f"v_cvt_pk_bf16_f32 v{O}, v{O}, v{O+1}\nv_cvt_pk_bf16_f32 v{O+1}, v{O+2}, v{O+3}")
            a("s_mul_i32 s48, s62, 1280\ns_lshl_b32 s49, s63, 6\ns_add_u32 s57, s48, s49\nv_lshlrev_b32 v61, 3, v59")
            a("s_mov_b64 exec, 0xff")
            a(f"buffer_store_dwordx2 v[{O}:{O+1}], v61, s[28:31], s57 offen {self.ofl}")
            a("s_mov_b64 exec, -1")
            return
        l, d = self.spin_head("y", 56)
        for i in range(8):
            a(f"buffer_load_dwordx4 v[{64+4*i}:{67+4*i}], v60, s[20:23], s{48+i} offen sc1")
        a("s_waitcnt vmcnt(0)")
        for st in (16, 8, 4):
            for i in range(0, st, 2):
                a(f"v_pk_add_f32 v[{64+i}:{65+i}], v[{64+i}:{65+i}], v[{64+st+i}:{65+st+i}]")
        a("v_add_f32 v68, v64, v65\nv_add_f32 v69, v66, v67\nv_add_f32 v68, v68, v69\nv_cmp_u_f32 vcc, v68, v68")
        a(f"s_cbranch_vccz {d}")
        a(f"s_sub_u32 s56, s56, 1\ns_cmp_lg_u32 s56, 0\ns_cbranch_scc1 {l}")
        a(f"{d}:")
        self.reduce_hq(64, 4, 68)
        if self.f2:
            for j in range(4): a(f"v_add_f32 v{64+j}, v{244+j}, v{64+j}")
        else:
            for j in range(4): self.rbf16(64 + j)
            for j in range(4): a(f"v_add_f32 v{64+j}, v{244+j}, v{64+j}")
            for j in range(4): self.rbf16(64 + j)
            for j in range(4): a(f"v_add_f32 v{64+j}, v{64+j}, v{240+j}")
        a("v_cvt_pk_bf16_f32 v64, v64, v65\nv_cvt_pk_bf16_f32 v65, v66, v67")
        a("s_mul_i32 s48, s62, 1280\ns_lshl_b32 s49, s63, 6\ns_add_u32 s48, s48, s49\nv_lshlrev_b32 v61, 3, v59")
        a("s_mov_b64 exec, 0xff")
        a("buffer_store_dwordx2 v[64:65], v61, s[28:31], s48 offen")
        a("s_mov_b64 exec, -1")

    def ffn1(self):
        a = self.a
        self.c("---- FFN stage 1: columns 64*(s2>>3).., rows 80*(s2&7).. ----")
        Wg, X, M2, A0, DG, DU, XA = 64, 144, 44, 20, 28, 32, 184
        self.srd(32, 76, 2211840); self.srd(36, 78, 2211840)
        a("v_mul_u32_u24 v11, 3456, v2\nv_lshlrev_b32 v12, 3, v1\nv_add_u32 v11, v11, v12")
        a("s_lshr_b32 s54, s2, 3\ns_and_b32 s55, s2, 7")
        if self.fe == 1: a(f"s_lshr_b32 s48, s{self.HW}, 1\ns_add_u32 s55, s55, s48")
        if self.fe == 2: a(f"s_lshr_b32 s55, s55, 1\ns_lshr_b32 s48, s{self.HW}, 1\ns_lshl_b32 s48, s48, 2\ns_add_u32 s55, s55, s48")
        if self.fe == 3: a(f"s_lshr_b32 s48, s{self.HW}, 1\ns_add_u32 s55, s55, s48\ns_sub_u32 s55, s55, 1")
        a(f"s_lshl_b32 s48, s54, 7\ns_mul_i32 s49, s55, {80*3456}\ns_add_u32 s48, s48, s49")
        for u in range(20):
            if self.f1win and 2 * u >= self.f1win: a(f"s_waitcnt vmcnt({self.f1win-2})")
            a(f"buffer_load_dwordx2 v[{Wg+4*u}:{Wg+1+4*u}], v11, s[32:35], s48 offen nt")
            a(f"buffer_load_dwordx2 v[{Wg+2+4*u}:{Wg+3+4*u}], v11, s[36:39], s48 offen nt")
            if u < 19: a(f"s_add_u32 s48, s48, {4*3456}")
        a("v_lshlrev_b32 v8, 2, v1\nv_add_u32 v8, v8, v2\nv_lshlrev_b32 v8, 1, v8")
        a("s_mov_b32 s48, 0\ns_mov_b32 s49, 1280\ns_mov_b32 s50, 2560\ns_mov_b32 s51, 3840")
        for b in range(4):
            for r in range(10):
                a(f"buffer_load_ushort v{X+10*b+r}, v8, s[8:11], s{48+b} offen offset:{128*r}")
        self.const64(60, 0xAAAAAAAAAAAAAAAA)
        a("v_mov_b32 v52, 0xffff\nv_mov_b32 v53, 0xffff0000\nv_cndmask_b32_e64 v52, v52, v53, s[60:61]")
        for jj in range(2):
            self.const64(60, 0x3333333333333333 << (2 * jj))
            a(f"v_cndmask_b32_e64 v{M2+jj}, 0, v52, s[60:61]")
        a(f"v_mul_u32_u24 v9, 640, v2\nv_lshlrev_b32 v52, 2, v1\nv_add_u32 v9, v9, v52")
        for b in range(4):
            a(f"s_waitcnt vmcnt({30-10*b})")
            self.layernorm(X + 10 * b, 10, 52, 52)
            for r in range(10):
                a(f"ds_write_b32 v9, v{X+10*b+r} offset:{XNL+2560*b+64*r}")
        a("v_lshrrev_b32 v9, 2, v1\nv_lshlrev_b32 v9, 2, v9\nv_add_u32 v9, v9, v2\nv_mul_u32_u24 v10, 640, v9")
        a(f"s_mul_i32 s48, s55, 80\ns_add_u32 s48, s48, {XNL}\nv_add_u32 v10, s48, v10")
        a("s_waitcnt lgkmcnt(0)")
        for i in range(5): a(f"ds_read_b128 v[{XA+4*i}:{XA+3+4*i}], v10 offset:{16*i}")
        a("s_waitcnt lgkmcnt(0)")
        for u in range(20):
            A = A0 + 2 * (u & 1)
            for jj in range(2): a(f"v_and_b32 v{A+jj}, v{XA+u}, v{M2+jj}")
            a("s_nop 1")
            cg = "0" if u == 0 else f"v[{DG}:{DG+3}]"
            cu = "0" if u == 0 else f"v[{DU}:{DU+3}]"
            a(f"v_mfma_f32_16x16x16_bf16 v[{DG}:{DG+3}], v[{A}:{A+1}], v[{Wg+4*u}:{Wg+1+4*u}], {cg}")
            a(f"v_mfma_f32_16x16x16_bf16 v[{DU}:{DU+3}], v[{A}:{A+1}], v[{Wg+2+4*u}:{Wg+3+4*u}], {cu}")
        a("v_mul_u32_u24 v12, 6912, v2\nv_lshlrev_b32 v13, 4, v1\nv_add_u32 v12, v12, v13")
        a(f"s_mul_i32 s48, s55, {2*27648}\ns_lshl_b32 s49, s54, 8\ns_add_u32 s48, s48, s49\ns_add_u32 s48, s48, {P_OFF}\ns_add_u32 s49, s48, 27648")
        a("s_nop 7")
        a(f"buffer_store_dwordx4 v[{DG}:{DG+3}], v12, s[20:23], s48 offen {self.psfl}")
        a(f"buffer_store_dwordx4 v[{DU}:{DU+3}], v12, s[20:23], s49 offen {self.psfl}")
        if self.clw == 's':
            a("s_waitcnt vmcnt(0)")
            if self.fe:
                l5, le = self.label("f5"), self.label("f7e")
                a(f"v_mov_b32 v9, {F7}\ns_cmp_eq_u32 s{self.HW}, 1\ns_cbranch_scc1 {l5}")
                a(f"v_mov_b32 v52, 1\nds_write_b32 v9, v52\ns_branch {le}")
                a(f"{l5}:")
                l, d = self.spin_head("f7", 48)
                a("ds_read_b32 v52, v9\ns_waitcnt lgkmcnt(0)\nv_cmp_eq_u32 vcc, -1, v52")
                a(f"s_cbranch_vccz {d}")
                a(f"s_sub_u32 s48, s48, 1\ns_cmp_lg_u32 s48, 0\ns_cbranch_scc1 {l}")
                a(f"{d}:")
                self.signal()
                a(f"{le}:")
                return
            self.signal()
            return
        a("s_waitcnt vmcnt(0)\nv_mov_b32 v52, 1\ns_mov_b64 exec, 1")
        if not self.xzc: a("buffer_atomic_add v52, off, s[24:27], 0 offset:128 sc1")
        a("s_mov_b64 exec, -1")

    def ffn2(self):
        a = self.a
        MK, A0, YA, T = 4, 20, 32, 224
        self.c("---- FFN stage 2: hidden columns 27*(2h+half).. of batch row b ----")
        self.srd(40, 80, 2211840)
        if self.clw == 's':
            if not self.xchk: self.signal_check("zc")
        else:
            l, d = self.spin_head("zc", 48)
            a("buffer_load_dword v58, off, s[24:27], 0 offset:128 sc1\ns_waitcnt vmcnt(0)")
            a(f"v_cmp_gt_u32 vcc, {0 if self.xzc else 216}, v58")
            a(f"s_cbranch_vccz {d}")
            a(f"s_sub_u32 s48, s48, 1\ns_cmp_lg_u32 s48, 0\ns_cbranch_scc1 {l}")
            a(f"{d}:")
        a("s_lshl_b32 s54, s45, 1\ns_add_u32 s54, s54, s46\ns_mul_i32 s54, s54, 27")
        a("v_lshrrev_b32 v58, 2, v0\nv_mul_u32_u24 v58, 27648, v58\nv_and_b32 v59, 3, v0\nv_lshlrev_b32 v60, 5, v59\nv_add_u32 v58, v58, v60")
        a(f"s_mul_i32 s48, s44, 6912\ns_lshl_b32 s49, s54, 2\ns_add_u32 s48, s48, s49\ns_add_u32 s48, s48, {P_OFF}")
        a(f"buffer_load_dwordx4 v[{T}:{T+3}], v58, s[20:23], s48 offen {self.pfl}")
        a(f"buffer_load_dwordx4 v[{T+4}:{T+7}], v58, s[20:23], s48 offen offset:16 {self.pfl}")
        a("s_waitcnt vmcnt(0)")
        self.reduce_hq(T, 8, T + 8)
        for j in range(8): self.rbf16(T + j)
        a("s_nop 1")
        for j in range(8): a(f"v_mov_b32_dpp v{T+8+j}, v{T+j} row_ror:12 row_mask:0xf bank_mask:0xf")
        for j in range(8):
            a(f"v_max_f32 v{T+j}, 0, v{T+j}\nv_mul_f32 v{T+j}, v{T+j}, v{T+8+j}\nv_cvt_pk_bf16_f32 v{T+j}, v{T+j}, v{T+j}")
        a("v_cmp_gt_u32 vcc, 3, v59\ns_nop 1")
        for j in range(3, 8): a(f"v_cndmask_b32 v{T+j}, 0, v{T+j}, vcc")
        a(f"v_add_u32 v60, {HL}, v60\ns_mov_b64 exec, 15")
        a(f"ds_write_b128 v60, v[{T}:{T+3}]\nds_write_b128 v60, v[{T+4}:{T+7}] offset:16")
        a("s_mov_b64 exec, -1\ns_waitcnt lgkmcnt(0)")
        a(f"v_and_b32 v60, 7, v1\nv_lshlrev_b32 v60, 2, v60\nv_add_u32 v60, v60, v2\nv_lshlrev_b32 v60, 2, v60\nv_add_u32 v60, {HL}, v60")
        a("ds_read_b32 v61, v60")
        a("v_mul_u32_u24 v58, 1280, v2\nv_lshlrev_b32 v59, 4, v1\nv_add_u32 v58, v58, v59")
        a("s_mul_i32 s48, s54, 1280")
        for i in range(7):
            for cb in range(5):
                a(f"buffer_load_dwordx4 v[{T+4*cb}:{T+3+4*cb}], v58, s[40:43], s48 offen offset:{256*cb} nt")
            if i < 6: a(f"s_add_u32 s48, s48, {4*1280}")
            if i == 0: a("s_waitcnt lgkmcnt(0)")
            for jj in range(4):
                a(f"v_and_b32_dpp v{A0+4*(i&1)+jj}, v61, v{MK+jj} row_newbcast:{i} row_mask:0xf bank_mask:0xf")
            A = A0 + 4 * (i & 1)
            a("s_nop 1")
            for cb in range(5):
                acc = YA + 4 * cb
                cin = "0" if i == 0 else f"v[{acc}:{acc+3}]"
                a(f"s_waitcnt vmcnt({4-cb})")
                a(f"v_mfma_f32_16x16x32_bf16 v[{acc}:{acc+3}], v[{A}:{A+3}], v[{T+4*cb}:{T+3+4*cb}], {cin}")
            a("s_nop 7")

    def ffn(self):
        a = self.a
        self.c("---- FFN unit s2: 64 hidden columns for all four rows ----")
        X, M2, A0, DG, DU = 64, 44, 20, 28, 32
        self.srd(32, 76, 2211840); self.srd(36, 78, 2211840); self.srd(40, 80, 2211840)
        a("v_lshlrev_b32 v8, 2, v1\nv_add_u32 v8, v8, v2\nv_lshlrev_b32 v8, 1, v8")
        a("s_mov_b32 s48, 0\ns_mov_b32 s49, 1280\ns_mov_b32 s50, 2560\ns_mov_b32 s51, 3840")
        for b in range(4):
            for r in range(10):
                a(f"buffer_load_ushort v{X+10*b+r}, v8, s[8:11], s{48+b} offen offset:{128*r}")
        self.const64(60, 0xAAAAAAAAAAAAAAAA)
        a("v_mov_b32 v52, 0xffff\nv_mov_b32 v53, 0xffff0000\nv_cndmask_b32_e64 v52, v52, v53, s[60:61]")
        for jj in range(2):
            self.const64(60, 0x3333333333333333 << (2 * jj))
            a(f"v_cndmask_b32_e64 v{M2+jj}, 0, v52, s[60:61]")
        a(f"v_mul_u32_u24 v9, 640, v2\nv_lshlrev_b32 v52, 2, v1\nv_add_u32 v9, v9, v52")
        for b in range(4):
            a(f"s_waitcnt vmcnt({30-10*b})")
            self.layernorm(X + 10 * b, 10, 52, 52)
            for r in range(10):
                a(f"ds_write_b32 v9, v{X+10*b+r} offset:{XNL+2560*b+64*r}")
        a("v_lshrrev_b32 v9, 2, v1\nv_lshlrev_b32 v9, 2, v9\nv_add_u32 v9, v9, v2\nv_mul_u32_u24 v10, 640, v9")
        a(f"v_add_u32 v10, {XNL}, v10")
        a("v_mul_u32_u24 v11, 3456, v2\nv_lshlrev_b32 v12, 3, v1\nv_add_u32 v11, v11, v12")
        a("s_lshl_b32 s48, s2, 7")
        GUSTEP = 4 * 3456
        if self.ffn_exp == 2:
            a("v_lshlrev_b32 v11, 3, v0\ns_mul_i32 s48, s2, 81920")
            GUSTEP = 512
        G = self.ffn_gu
        def issue(u):
            u %= G
            a(f"buffer_load_dwordx2 v[{64+4*u}:{65+4*u}], v11, s[32:35], s48 offen nt")
            a(f"buffer_load_dwordx2 v[{66+4*u}:{67+4*u}], v11, s[36:39], s48 offen nt")
            a(f"s_add_u32 s48, s48, {GUSTEP}")
        a("s_waitcnt lgkmcnt(0)")
        for u in range(G): issue(u)
        for j in range(8): a(f"v_mov_b32 v{DG+j}, 0")
        def rnd(last):
            for i in range(4): a(f"ds_read_b128 v[{128+4*i}:{131+4*i}], v10 offset:{16*i}")
            a("v_add_u32 v10, 64, v10\ns_waitcnt lgkmcnt(0)")
            for u in range(16):
                A = A0 + 2 * (u & 1)
                r = 64 + 4 * (u % G)
                for jj in range(2): a(f"v_and_b32 v{A+jj}, v{128+u}, v{M2+jj}")
                a(f"s_waitcnt vmcnt({2*(G-1) if not last else 2*min(G-1, 15-u)})\ns_nop 0")
                if self.ffn_exp != 1:
                    a(f"v_mfma_f32_16x16x16_bf16 v[{DG}:{DG+3}], v[{A}:{A+1}], v[{r}:{r+1}], v[{DG}:{DG+3}]")
                    a(f"v_mfma_f32_16x16x16_bf16 v[{DU}:{DU+3}], v[{A}:{A+1}], v[{r+2}:{r+3}], v[{DU}:{DU+3}]")
                if not last or u + G < 16: issue(u)
        a("s_mov_b32 s49, 9")
        lp = self.label("gu")
        a(f"{lp}:")
        rnd(False)
        a(f"s_sub_u32 s49, s49, 1\ns_cmp_lg_u32 s49, 0\ns_cbranch_scc1 {lp}")
        rnd(True)
        DN = self.ffn_dn
        a("v_mul_u32_u24 v11, 1280, v2\nv_lshlrev_b32 v12, 3, v1\nv_add_u32 v11, v11, v12")
        a(f"s_mul_i32 s48, s2, {64*1280}")
        def issue2(u2):
            for cb in range(10):
                r = 64 + 2 * (10 * (u2 % DN) + cb)
                a(f"buffer_load_dwordx2 v[{r}:{r+1}], v11, s[40:43], s48 offen offset:{128*cb} nt")
            a(f"s_add_u32 s48, s48, {4*1280}")
        a("s_nop 7")
        for j in range(8): self.rbf16(DG + j)
        for uu in range(DN): issue2(uu)
        for j in range(4):
            a(f"v_max_f32 v{DG+j}, 0, v{DG+j}\nv_mul_f32 v{DG+j}, v{DG+j}, v{DU+j}\nv_cvt_pk_bf16_f32 v{DG+j}, v{DG+j}, v{DG+j}")
        a("v_lshlrev_b32 v12, 8, v2\nv_lshlrev_b32 v13, 2, v1\nv_add_u32 v12, v12, v13")
        for j in range(4): a(f"ds_write_b32 v12, v{DG+j} offset:{HL+64*j}")
        a(f"s_waitcnt lgkmcnt(0)\nv_lshlrev_b32 v12, 6, v9\nv_add_u32 v12, {HL}, v12")
        for i in range(4): a(f"ds_read_b128 v[{208+4*i}:{211+4*i}], v12 offset:{16*i}")
        for j in range(40): a(f"v_mov_b32 v{144+j}, 0")
        a("s_waitcnt lgkmcnt(0)")
        for u2 in range(16):
            A = A0 + 2 * (u2 & 1)
            for jj in range(2): a(f"v_and_b32 v{A+jj}, v{208+u2}, v{M2+jj}")
            for cb in range(10):
                r = 64 + 2 * (10 * (u2 % DN) + cb)
                left = (9 - cb) + 10 * (min(u2 + DN - 1, 15) - u2)
                a(f"s_waitcnt vmcnt({left})")
                if cb == 0: a("s_nop 0")
                a(f"v_mfma_f32_16x16x16_bf16 v[{144+4*cb}:{147+4*cb}], v[{A}:{A+1}], v[{r}:{r+1}], v[{144+4*cb}:{147+4*cb}]")
            if u2 + DN < 16: issue2(u2)
        a("v_mul_u32_u24 v12, 2560, v2\nv_lshlrev_b32 v13, 4, v1\nv_add_u32 v12, v12, v13")
        a(f"s_mul_i32 s48, s2, 10240\ns_add_u32 s48, s48, {Z_OFF}\ns_nop 7")
        for cb in range(10):
            a(f"buffer_store_dwordx4 v[{144+4*cb}:{147+4*cb}], v12, s[20:23], s48 offen offset:{256*cb} sc1")
        a("s_waitcnt vmcnt(0)\nv_mov_b32 v52, 1\ns_mov_b64 exec, 1")
        a("buffer_atomic_add v52, off, s[24:27], 0 offset:128 sc1")
        a("s_mov_b64 exec, -1")

    def build(self):
        a = self.a
        a("s_cmp_ge_u32 s2, 256\ns_cbranch_scc1 L_exit")
        if self.stamps: a("s_memrealtime s[96:97]")
        a("s_load_dwordx16 s[64:79], s[0:1], 0\ns_load_dwordx8 s[80:87], s[0:1], 64")
        a("v_lshrrev_b32 v1, 6, v0\nv_and_b32 v0, 63, v0\nv_readfirstlane_b32 s3, v1")
        if self.stamps:
            for k in range(8): a(f"s_mov_b32 s{88+k}, 0")
        a("s_and_b32 s40, s2, 7\ns_lshr_b32 s41, s2, 3")
        if self.mapping == "m4":
            a("s_lshr_b32 s43, s41, 1\ns_and_b32 s43, s43, 3\ns_lshl_b32 s45, s43, 3\ns_add_u32 s45, s45, s40")
            a("s_lshr_b32 s44, s41, 3\ns_and_b32 s46, s41, 1")
        elif self.mapping == "m6":
            a("s_lshr_b32 s43, s41, 1\ns_and_b32 s43, s43, 3\ns_add_u32 s45, s40, s43\ns_and_b32 s45, s45, 7\ns_lshl_b32 s43, s43, 3\ns_add_u32 s45, s45, s43")
            a("s_lshr_b32 s44, s41, 3\ns_and_b32 s46, s41, 1")
        elif self.mapping == "m7":
            a("s_lshr_b32 s43, s41, 1\ns_and_b32 s43, s43, 3\ns_lshl_b32 s45, s43, 3\ns_xor_b32 s43, s40, 1\ns_add_u32 s45, s45, s43")
            a("s_lshr_b32 s44, s41, 3\ns_and_b32 s46, s41, 1")
        elif self.mapping == "m8":
            a("s_lshr_b32 s43, s41, 1\ns_and_b32 s43, s43, 3\ns_lshl_b32 s45, s40, 2\ns_add_u32 s45, s45, s43")
            a("s_lshr_b32 s44, s41, 3\ns_and_b32 s46, s41, 1")
        elif self.mapping == "m3":
            a("s_and_b32 s43, s41, 3\ns_lshl_b32 s45, s43, 3\ns_add_u32 s45, s45, s40")
            a("s_lshr_b32 s44, s41, 2\ns_and_b32 s44, s44, 3\ns_lshr_b32 s46, s41, 4")
        elif self.mapping == "n":
            a("s_and_b32 s46, s2, 1\ns_lshr_b32 s45, s2, 1\ns_and_b32 s45, s45, 31\ns_lshr_b32 s44, s2, 6")
        a("s_lshl_b32 s47, s44, 5\ns_add_u32 s47, s47, s45\ns_lshl_b32 s47, s47, 1\ns_add_u32 s47, s47, s46")
        a("s_cmp_ge_u32 s3, 4\ns_cbranch_scc1 L_helper")
        if self.Rsplit:
            if self.splitx: a("s_and_b32 s18, s2, 1\ns_cmp_eq_u32 s18, 0\ns_cbranch_scc0 L_streamB")
            else: a("s_cmp_eq_u32 s46, 0\ns_cbranch_scc0 L_streamB")
            self.R = self.Rsplit[0]; self.stream()
            a("L_streamB:")
            self.R = self.Rsplit[1]; self.stream()
        else:
            self.stream()
        a("L_helper:")
        self.helper()
        a("L_exit:\ns_endpgm")
        return "\n".join(self.L)

HEADER = open("parallel_sum__gqa_block_cached__glu_gated_reglu__decode.s.ref").read().split("; Override launch")[0]

def full_source(g, nfv=256):
    body = g.build()
    s = HEADER
    s += "; Override launch geometry by editing the next line (default: block=256,\n"
    s += f"; @launch grid=(256,1,1) block=(512,1,1) lds={LDS_SIZE}\n"
    s += f""".amdgcn_target "amdgcn-amd-amdhsa--gfx950"
.text
.globl {NAME}
.p2align 8
.type {NAME},@function
{NAME}:
{body}
.section .rodata,"a"
.p2align 6
.amdhsa_kernel {NAME}
  .amdhsa_next_free_vgpr {nfv}
  .amdhsa_next_free_sgpr 102
  .amdhsa_accum_offset 256
  .amdhsa_group_segment_fixed_size 0
  .amdhsa_kernarg_size 96
  .amdhsa_user_sgpr_count 2
  .amdhsa_user_sgpr_kernarg_segment_ptr 1
  .amdhsa_system_sgpr_workgroup_id_x 1
.end_amdhsa_kernel
"""
    return s

if __name__ == "__main__":
    import argparse
    p = argparse.ArgumentParser()
    p.add_argument("-R", type=int, default=5); p.add_argument("--PG", type=int, default=1)
    p.add_argument("--stamps", action="store_true"); p.add_argument("--map", default="m4")
    p.add_argument("-o", default="/dev/stdout")
    x = p.parse_args()
    g = Gen(R=x.R, PG=x.PG, stamps=x.stamps, mapping=x.map)
    open(x.o, "w").write(full_source(g))
```

```python
import struct, sys
NAME = "parallel_sum__gqa_block_cached__glu_gated_reglu__decode_kernel"

def f2h(x):
    return "0x%08x" % struct.unpack("<I", struct.pack("<f", x))[0]

LOG2E = f2h(1.4426950408889634)
SCALE = f2h(128 ** -0.5)
INV640 = f2h(1.0 / 640.0)
EPS = f2h(1e-5)

QP, MW, FW, OP, YP, SC, XNL, HL, LDS_SIZE = 0, 2048, 2064, 4096, 6144, 16384, 32768, 43008, 45056
Y_OFF, ML_OFF, Z_OFF, PS_OFF = 0x100000, 0x1A0000, 0x1B0000, 0x280000
GL_OFF = 0x40000
P_OFF = Z_OFF
PRG, MODE = 3072, 2304
F7 = 2096
SPIN_MAX = 200000

class Gen:
    def __init__(self, owarm=0, hfirst=False, cpf=0, cpw=0, R=5, PG=1, stamps=False, mapping="m4", sleep=True, b0=True, rot=True, pre=0, wo_win=2, ffn_gu=8, ffn_dn=2, skip_wo=False, skip_ffn=False, wo_flags='nt', wo_rot=False, wq_flags='', early=False, ffn_exp=0, Rsplit=None, ctl=False, Rlo=5, Rhi=8, csh=11, cbias=1024, pstep=4, cthr=896, cloc=True, mld='nt', mst='', f2=False, dbgst=False, kst=None, vst=None, splitx=False, gx=0, gsh=0, xclr=0, xzc=0, clw='w4', psp=0, flag='at', qo=0, b0at=39, fe=0, yp=1, schk=0, ofl='', tl=0, vwarm=0, spf=0, spst=128, spx=1, gM=1, gbias=0, f1win=0, sigk=0, xsig=0, xchk=0, pfl='sc1', mlfl='sc1', psfl='sc1'):
        self.cpf, self.cpw, self.hfirst, self.owarm = cpf, cpw, hfirst, owarm
        self.xclr, self.xzc = xclr, xzc
        self.clw, self.psp, self.flag = clw, psp, flag
        self.qo, self.b0at, self.fe, self.yp = qo, b0at, fe, yp
        self.schk, self.xsig, self.sigk, self.f1win = schk, xsig, sigk, f1win
        self.gM, self.gbias, self.ofl = gM, gbias, ofl
        self.spf, self.spst, self.spx, self.vwarm, self.tl = spf, spst, spx, vwarm, tl
        self.xchk, self.pfl, self.mlfl, self.psfl = xchk, pfl, mlfl, psfl
        self.gx, self.gsh = gx, gsh
        self.splitx = splitx
        self.kst, self.vst = kst, vst
        self.f2 = f2
        self.dbgst = dbgst
        if dbgst: stamps = True
        self.cloc, self.mld, self.mst = cloc, mld, mst
        self.Rsplit = Rsplit
        self.ctl, self.Rlo, self.Rhi, self.csh, self.cbias, self.pstep, self.cthr = ctl, Rlo, Rhi, csh, cbias, pstep, cthr
        self.R, self.PG, self.stamps, self.mapping, self.sleep = R, PG, stamps, mapping, sleep
        self.skip_wo, self.skip_ffn, self.wo_flags, self.wo_rot = skip_wo, skip_ffn, wo_flags, wo_rot
        self.wq_flags, self.early, self.ffn_exp = wq_flags, early, ffn_exp
        self.b0, self.rot, self.pre, self.wo_win, self.ffn_gu, self.ffn_dn = b0, rot, pre, wo_win, ffn_gu, ffn_dn
        self.L = []
        self.uid = 0
        self.block = 512
        self.lds = LDS_SIZE
    def a(self, s):
        for line in s.split("\n"):
            line = line.strip()
            if line: self.L.append("    " + line if not line.endswith(":") else line)
    def c(self, s):
        self.L.append("    ; " + s)
    def label(self, p):
        self.uid += 1
        return f"L_{p}_{self.uid}"
    def stamp(self, k):
        if self.stamps:
            self.a(f"s_memrealtime s[98:99]\ns_waitcnt lgkmcnt(0)\ns_mov_b32 s{88+k}, s98")
    def stamp_flush(self, role="s"):
        if not self.stamps: return
        a = self.a
        if self.dbgst:
            skip = self.label("nodbg")
            a(f"s_and_b32 s56, s3, 3\ns_cmp_eq_u32 s56, 0\ns_cbranch_scc0 {skip}")
            if role == "s": a(f"s_lshr_b32 s56, s2, 3\ns_and_b32 s56, s56, 3\ns_cmp_eq_u32 s56, 0\ns_cbranch_scc0 {skip}")
            else: a(f"s_cmp_lt_u32 s2, 80\ns_cbranch_scc0 {skip}")
            a("s_mov_b32 s56, s84\ns_mov_b32 s57, s85\ns_mov_b32 s58, 256\ns_mov_b32 s59, 0x20000")
            a("s_mov_b64 exec, 1")
            def at(op, word, sreg, inv=False, low=False):
                a(f"v_mov_b32 v251, s{sreg}")
                if inv: a("v_not_b32 v251, v251")
                if low: a("v_and_b32 v251, 0xfffff, v251")
                a(f"buffer_atomic_{op} v251, off, s[56:59], 0 offset:{4*word} sc1\ns_nop 1")
            at("umax", 1, 96, inv=True); at("umax", 2, 96)
            if role == "s":
                at("umax", 3, 89, inv=True); at("umax", 4, 89); at("umax", 5, 90, inv=True); at("umax", 6, 90)
                at("umax", 7, 91, inv=True); at("umax", 8, 91); at("add", 11, 91, low=True); at("add", 12, 90, low=True)
            else:
                at("umax", 9, 93); at("umax", 10, 92); at("umax", 13, 88, inv=True); at("umax", 14, 88)
            a("s_mov_b64 exec, -1")
            a(f"{skip}:")
            return
        a("s_mov_b32 s56, s86\ns_mov_b32 s57, s87\ns_mov_b32 s58, 0x100000\ns_mov_b32 s59, 0x20000")
        a("s_lshl_b32 s60, s2, 3\ns_add_u32 s60, s60, s3\ns_lshl_b32 s60, s60, 6")
        a("s_mov_b64 exec, 1")
        a("v_mov_b32 v250, 0\ns_mov_b32 s95, s96")
        for k in range(8):
            a(f"v_mov_b32 v251, s{88+k}")
            a(f"buffer_store_dword v251, v250, s[56:59], s60 offen offset:{4*k} {'sc1' if self.ofl or not self.ctl else ''}")
            a("s_nop 1")
        a("s_mov_b64 exec, -1")

    def srd(self, base, ptr, nrec):
        self.a(f"s_mov_b32 s{base}, s{ptr}\ns_mov_b32 s{base+1}, s{ptr+1}\ns_mov_b32 s{base+2}, {hex(nrec)}\ns_mov_b32 s{base+3}, 0x20000")
    def const64(self, sreg, val):
        self.a(f"s_mov_b32 s{sreg}, {hex(val & 0xffffffff)}\ns_mov_b32 s{sreg+1}, {hex(val >> 32)}")
    def masks16x32(self, m0, tmp):
        a = self.a
        self.const64(60, 0xAAAAAAAAAAAAAAAA)
        a(f"v_mov_b32 v{tmp}, 0xffff\nv_mov_b32 v{tmp+1}, 0xffff0000")
        a(f"v_cndmask_b32_e64 v{tmp}, v{tmp}, v{tmp+1}, s[60:61]")
        for jj in range(4):
            self.const64(60, 0x0303030303030303 << (2 * jj))
            a(f"v_cndmask_b32_e64 v{m0+jj}, 0, v{tmp}, s[60:61]")
    def wave_reduce(self, v, op, sdst):
        a = self.a
        for r in (8, 4, 2, 1):
            a(f"{op}_dpp v{v}, v{v}, v{v} row_ror:{r} row_mask:0xf bank_mask:0xf\ns_nop 1")
        a(f"{op}_dpp v{v}, v{v}, v{v} row_bcast:15 row_mask:0xa bank_mask:0xf\ns_nop 1")
        a(f"{op}_dpp v{v}, v{v}, v{v} row_bcast:31 row_mask:0xc bank_mask:0xf\ns_nop 1")
        a(f"v_readlane_b32 s{sdst}, v{v}, 63\ns_nop 1")
    def rbf16(self, v):
        self.a(f"v_cvt_pk_bf16_f32 v{v}, v{v}, v{v}\nv_and_b32 v{v}, 0xffff0000, v{v}")
    def layernorm(self, xr, n_out, t0, s0):
        a = self.a
        for r in range(10): a(f"v_lshlrev_b32 v{xr+r}, 16, v{xr+r}")
        a(f"v_add_f32 v{t0}, v{xr}, v{xr+1}\nv_add_f32 v{t0+1}, v{xr+2}, v{xr+3}")
        for r in range(4, 10, 2):
            a(f"v_add_f32 v{t0}, v{t0}, v{xr+r}\nv_add_f32 v{t0+1}, v{t0+1}, v{xr+r+1}")
        a(f"v_add_f32 v{t0}, v{t0}, v{t0+1}\ns_nop 1")
        self.wave_reduce(t0, "v_add_f32", s0)
        a(f"v_mov_b32 v{t0}, {INV640}\nv_mul_f32 v{t0}, s{s0}, v{t0}")
        a(f"v_sub_f32 v{t0+1}, v{xr}, v{t0}\nv_mul_f32 v{t0+2}, v{t0+1}, v{t0+1}")
        for r in range(1, 10):
            a(f"v_sub_f32 v{t0+1}, v{xr+r}, v{t0}\nv_fmac_f32 v{t0+2}, v{t0+1}, v{t0+1}")
        a("s_nop 1")
        self.wave_reduce(t0 + 2, "v_add_f32", s0 + 1)
        a(f"v_mov_b32 v{t0+2}, {INV640}\nv_mul_f32 v{t0+2}, s{s0+1}, v{t0+2}")
        self.rbf16(t0); self.rbf16(t0 + 2)
        a(f"v_add_f32 v{t0+2}, {EPS}, v{t0+2}")
        self.rbf16(t0 + 2)
        a(f"v_sqrt_f32 v{t0+2}, v{t0+2}\ns_nop 0")
        self.rbf16(t0 + 2)
        a(f"v_rcp_f32 v{t0+2}, v{t0+2}\ns_nop 0")
        for r in range(n_out):
            a(f"v_sub_f32 v{xr+r}, v{xr+r}, v{t0}")
            self.rbf16(xr + r)
            a(f"v_mul_f32 v{xr+r}, v{xr+r}, v{t0+2}")
            a(f"v_cvt_pk_bf16_f32 v{xr+r}, v{xr+r}, v{xr+r}")
    def spin_head(self, name, scnt):
        l = self.label(name); d = self.label(name + "_done")
        self.a(f"s_mov_b32 s{scnt}, {SPIN_MAX}\n{l}:")
        return l, d
    def reduce_hq(self, v0, n, t):
        a = self.a
        a("s_nop 1")
        for i in range(n): a(f"v_add_f32_dpp v{v0+i}, v{v0+i}, v{v0+i} row_ror:8 row_mask:0xf bank_mask:0xf")
        for sw in ("v_permlane16_swap_b32", "v_permlane32_swap_b32"):
            for i in range(n): a(f"v_mov_b32 v{t+i}, v{v0+i}")
            a("s_nop 1")
            for i in range(n): a(f"{sw} v{t+i}, v{v0+i}")
            a("s_nop 1")
            for i in range(n): a(f"v_add_f32 v{v0+i}, v{v0+i}, v{t+i}")

    def stream(self):
        a, R, PG = self.a, self.R, self.PG
        vK, vV, vSW, vSR, vMax, vS, vT0, vT1, vP, vSn, vE = 1, 2, 3, 4, 5, 6, 7, 8, 9, 10, 11
        MK, AQ, D, ACC, PA = 12, 16, 32, 40, 44
        RING = 64
        TQ = 192
        self.c("==== streaming waves (0..3): K then V of this workgroup's 4096 keys ====")
        a(f"v_and_b32 v7, 15, v0\nv_lshrrev_b32 v8, 4, v0")
        a(f"v_lshrrev_b32 v9, 2, v7\nv_lshlrev_b32 v{vK}, 8, v9")
        a(f"v_lshlrev_b32 v10, 6, v8\nv_or_b32 v{vK}, v{vK}, v10")
        a(f"v_and_b32 v10, 3, v7\nv_lshlrev_b32 v10, 4, v10\nv_or_b32 v{vK}, v{vK}, v10")
        a(f"v_lshlrev_b32 v{vV}, 4, v0")
        a("s_lshl_b32 s16, s47, 20\ns_lshl_b32 s17, s3, 12\ns_add_u32 s16, s16, s17\ns_mov_b32 s17, s16")
        a("s_waitcnt lgkmcnt(0)")
        self.stamp(6)
        self.srd(8, 66, 0x10000000)
        self.srd(12, 68, 0x10000000)
        if self.ctl: a("s_add_u32 s14, s47, 1\ns_lshl_b32 s14, s14, 20")
        if self.clw == 's':
            self.srd(24, 86, 0x40000000)
            l3, ld = self.label("clr3"), self.label("clrd")
            a("v_mov_b32 v56, -1\nv_mov_b32 v57, -1\nv_mov_b32 v58, -1\nv_mov_b32 v59, -1\nv_lshlrev_b32 v60, 4, v0")
            a(f"s_cmp_eq_u32 s3, 3\ns_cbranch_scc1 {l3}")
            a(f"s_mul_i32 s48, s47, 2560\ns_add_u32 s48, s48, {Y_OFF}\ns_lshl_b32 s49, s3, 10\ns_add_u32 s48, s48, s49")
            a("s_cmp_eq_u32 s3, 2\ns_cselect_b32 exec_hi, 0, -1")
            a("buffer_store_dwordx4 v[56:59], v60, s[24:27], s48 offen sc1")
            a(f"s_mov_b64 exec, -1\ns_branch {ld}")
            a(f"{l3}:")
            a(f"s_lshl_b32 s48, s47, 7\ns_add_u32 s48, s48, {ML_OFF}\ns_mov_b64 exec, 1")
            a("buffer_store_dwordx2 v[56:57], v60, s[24:27], s48 offen sc1")
            if self.ctl:
                self.slot_addr(49, 50)
                a(f"v_mov_b32 v58, 0\nbuffer_store_dword v58, v60, s[24:27], s49 offen {'' if self.psp == 1 else 'sc1'}")
                if self.gx:
                    nl = self.label("nolead")
                    a(f"s_cmp_ge_u32 s2, 248\ns_cbranch_scc0 {nl}")
                    a(f"buffer_store_dword v58, v60, s[24:27], s50 offen offset:128 {'' if self.psp == 1 else 'sc1'}")
                    a(f"s_and_b32 s49, s2, 7\ns_lshl_b32 s49, s49, {8 if self.gx == 3 else 2}\ns_add_u32 s49, s49, {GL_OFF}")
                    a("buffer_store_dword v58, v60, s[24:27], s49 offen sc1")
                    a(f"{nl}:")
            a("s_mov_b64 exec, -1")
            a(f"{ld}:")
            if not self.spf and self.pre == 0 and self.b0 and self.b0at == 39: a("s_waitcnt vmcnt(0)")
        if self.spf:
            for i in range(self.spf):
                off = i * self.spst
                off = (off >> 12) * 0x4000 + (off & 4095)
                if i and i % (15 if self.spx == 1 else 7) == 0: a("s_waitcnt lgkmcnt(0)")
                if self.spx == 1: a(f"s_load_dword s100, s[66:67], s16 offset:{hex(off)}")
                else: a(f"s_load_dwordx2 s[100:101], s[66:67], s16 offset:{hex(off)}")
            if self.clw == 's' and self.pre == 0 and self.b0 and self.b0at == 39: a("s_waitcnt vmcnt(0)")
        st = {"issued": 0}
        def slot(n):
            if n < 16 * PG: return RING + 4 * n
            return RING + 4 * (n % 16)
        def issue(n):
            t = n & 3
            if n < 256:
                a(f"buffer_load_dwordx4 v[{slot(n)}:{slot(n)+3}], v{vK}, s[8:11], s16 offen offset:{t*1024} nt")
                if t == 3: a("s_add_u32 s16, s16, 0x4000")
            else:
                a(f"buffer_load_dwordx4 v[{slot(n)}:{slot(n)+3}], v{vV}, s[12:15], s17 offen offset:{t*1024} nt")
                if t == 3: a("s_add_u32 s17, s17, 0x4000")
        for n in range(16 * PG):
            if self.b0 and n == self.pre:
                if self.clw == 's' and self.pre and self.b0at == 39: a(f"s_waitcnt vmcnt({self.pre})")
                a("s_barrier")
            issue(n)
        self.stamp(0)
        self.masks16x32(MK, 7)
        self.const64(48, 0x2222222222222222); self.const64(50, 0x4444444444444444); self.const64(52, 0x8888888888888888)
        a("v_and_b32 v7, 15, v0\nv_lshrrev_b32 v8, 4, v0\nv_lshrrev_b32 v9, 2, v7\nv_and_b32 v10, 3, v7")
        a(f"v_lshlrev_b32 v9, 4, v9\nv_lshlrev_b32 v{vSW}, 2, v8\nv_add_u32 v{vSW}, v{vSW}, v9\nv_add_u32 v{vSW}, v{vSW}, v10")
        a(f"v_lshlrev_b32 v{vSW}, 2, v{vSW}")
        a(f"s_lshl_b32 s18, s3, 12\ns_add_u32 s18, s18, {SC}")
        a(f"v_add_u32 v{vSW}, s18, v{vSW}")
        a(f"v_lshlrev_b32 v{vSR}, 2, v0\nv_add_u32 v{vSR}, s18, v{vSR}")
        a(f"v_mov_b32 v{vMax}, 0xff800000")
        a(f"v_lshlrev_b32 v9, 2, v8\nv_add_u32 v9, v9, v10\nv_lshlrev_b32 v9, 5, v9")
        vProg, vPA, vMode, vMA = 52, 53, 54, 55
        if self.ctl:
            a(f"s_lshl_b32 s21, s3, 8\ns_add_u32 s21, s21, {PRG}\nv_lshlrev_b32 v{vPA}, 2, v0\nv_add_u32 v{vPA}, s21, v{vPA}")
            a(f"s_lshl_b32 s21, s3, 2\ns_add_u32 s21, s21, {MODE}\nv_mov_b32 v{vMA}, s21")
            a(f"v_mov_b32 v{vProg}, 0\nv_mov_b32 v{vMode}, {R}")
            a(f"ds_write_b32 v{vPA}, v{vProg}\nds_write_b32 v{vMA}, v{vMode}\ns_waitcnt lgkmcnt(0)")
        if self.clw == 's' and (not self.b0 or self.b0at != 39): a(f"s_waitcnt vmcnt({16*PG})")
        a("s_barrier")
        for hw in range(4):
            a(f"ds_read_b128 v[{TQ+8*hw}:{TQ+8*hw+3}], v9 offset:{QP+512*hw}")
            a(f"ds_read_b128 v[{TQ+8*hw+4}:{TQ+8*hw+7}], v9 offset:{QP+512*hw+16}")
        a("s_waitcnt lgkmcnt(0)")
        for j in range(8): a(f"v_add_f32 v{TQ+j}, v{TQ+j}, v{TQ+8+j}\nv_add_f32 v{TQ+16+j}, v{TQ+16+j}, v{TQ+24+j}")
        for j in range(8): a(f"v_add_f32 v{TQ+j}, v{TQ+j}, v{TQ+16+j}")
        for jj in range(4): a(f"v_cvt_pk_bf16_f32 v{TQ+8+jj}, v{TQ+2*jj}, v{TQ+2*jj+1}")
        for t in range(4):
            self.const64(60, 0x000F000F000F000F << (4 * t))
            for jj in range(4): a(f"v_cndmask_b32_e64 v{AQ+4*t+jj}, 0, v{TQ+8+jj}, s[60:61]")
        a("s_nop 1")
        self.stamp(1)

        issued = [16 * PG]
        def kgroup(G, mode):
            for s in range(16):
                n = 16 * G + s
                tau, t = s >> 2, s & 3
                a(f"s_waitcnt vmcnt({issued[0]-1-n})")
                cin = "0" if t == 0 else f"v[{D}:{D+3}]"
                mf = f"v_mfma_f32_16x16x32_bf16 v[{D}:{D+3}], v[{AQ+4*t}:{AQ+4*t+3}], v[{slot(n)}:{slot(n)+3}], {cin}"
                nxt = None
                if n < 16 * PG:
                    if n < R: nxt = 16 * PG + n
                else:
                    nxt = n + R
                early = self.early and nxt is not None and slot(nxt) != slot(n)
                if not early: a(mf)
                if nxt is not None:
                    assert nxt == issued[0], (n, nxt, issued)
                    issue(nxt); issued[0] += 1
                if early: a(mf)
                if t == 3:
                    a("s_nop 7")
                    a(f"v_mov_b32_dpp v{vT0}, v{D} quad_perm:[0,0,0,0] row_mask:0xf bank_mask:0xf")
                    a(f"v_mov_b32_dpp v{vT1}, v{D+2} quad_perm:[2,2,2,2] row_mask:0xf bank_mask:0xf")
                    a("s_nop 0")
                    a(f"v_add_f32_dpp v{vT0}, v{D+1}, v{vT0} quad_perm:[1,1,1,1] row_mask:0xf bank_mask:0xf")
                    a(f"v_add_f32_dpp v{vT1}, v{D+3}, v{vT1} quad_perm:[3,3,3,3] row_mask:0xf bank_mask:0xf")
                    if tau == 0:
                        a(f"v_add_f32 v{vS}, v{vT0}, v{vT1}")
                    else:
                        a(f"v_add_f32 v{vT0}, v{vT0}, v{vT1}")
                        a(f"v_cndmask_b32_e64 v{vS}, v{vS}, v{vT0}, s[{46+2*tau}:{47+2*tau}]")
            self.rbf16(vS)
            a(f"v_mul_f32 v{vS}, {SCALE}, v{vS}")
            self.rbf16(vS)
            a(f"v_max_f32 v{vMax}, v{vMax}, v{vS}")
            a(f"ds_write_b32 v{vSW}, v{vS}")
            a(f"v_add_u32 v{vSW}, 0x100, v{vSW}")
        for G in range(PG): kgroup(G, "first")
        a(f"s_mov_b32 s19, {15-PG}")
        lk = self.label("K")
        a(f"{lk}:")
        save = issued[0]
        kgroup(PG, "steady")
        if self.kst and self.stamps:
            a("s_memrealtime s[98:99]\ns_waitcnt lgkmcnt(0)")
            for slot_, G_ in zip((4, 5), self.kst):
                a(f"s_cmp_eq_u32 s19, {15-G_}\ns_cselect_b32 s{88+slot_}, s98, s{88+slot_}")
        a(f"s_sub_u32 s19, s19, 1\ns_cmp_lg_u32 s19, 0\ns_cbranch_scc1 {lk}")
        issued[0] = save + 16 * (15 - PG)
        kgroup(15, "last")
        a("s_nop 1")
        self.wave_reduce(vMax, "v_max_f32", 20)
        a(f"v_mov_b32 v{vMax}, s20")
        a(f"s_lshl_b32 s18, s3, 2\ns_add_u32 s18, s18, {MW}\nv_mov_b32 v7, s18")
        a(f"ds_write_b32 v7, v{vMax}")
        a(f"ds_read_b32 v{vSn}, v{vSR}\nv_add_u32 v{vSR}, 0x100, v{vSR}")
        for j in range(4): a(f"v_mov_b32 v{ACC+j}, 0")
        self.stamp(2)
        def abuild(s):
            tau, t = s >> 2, s & 3
            for jj in range(4):
                a(f"v_and_b32_dpp v{PA+4*(s&1)+jj}, v{vP}, v{MK+jj} row_newbcast:{4*t+tau} row_mask:0xf bank_mask:0xf")
        def vgroup(G, last):
            a("s_waitcnt lgkmcnt(0)")
            a(f"v_sub_f32 v{vE}, v{vSn}, v{vMax}\nv_mul_f32 v{vE}, {LOG2E}, v{vE}\nv_exp_f32 v{vE}, v{vE}")
            if not last:
                a(f"ds_read_b32 v{vSn}, v{vSR}\nv_add_u32 v{vSR}, 0x100, v{vSR}")
            else:
                a("s_nop 0")
            a(f"v_cvt_pk_bf16_f32 v{vP}, v{vE}, v{vE}\ns_nop 1")
            abuild(0)
            for s in range(16):
                n = 256 + 16 * G + s
                A = PA + 4 * (s & 1)
                mf = f"v_mfma_f32_16x16x32_bf16 v[{ACC}:{ACC+3}], v[{A}:{A+3}], v[{slot(n)}:{slot(n)+3}], v[{ACC}:{ACC+3}]"
                nxt = n + R
                early = self.early and nxt < 512
                a(f"s_waitcnt vmcnt({issued[0]-1-n})")
                if not early: a("s_nop 0\n" + mf)
                if nxt < 512:
                    assert nxt == issued[0]
                    issue(nxt); issued[0] += 1
                if early: a(mf)
                if s < 15: abuild(s + 1)
        if not self.ctl:
            a("s_mov_b32 s19, 15")
            lv = self.label("V")
            a(f"{lv}:")
            save = issued[0]
            vgroup(0, False)
            a(f"s_sub_u32 s19, s19, 1\ns_cmp_lg_u32 s19, 0\ns_cbranch_scc1 {lv}")
            issued[0] = save + 16 * 15
            vgroup(15, True)
        else:
            def vissue(n):
                t = n & 3
                a(f"buffer_load_dwordx4 v[{RING+4*(n%16)}:{RING+4*(n%16)+3}], v{vV}, s[12:15], s17 offen offset:{t*1024} nt")
                if t == 3: a("s_add_u32 s17, s17, 0x4000")
            def vhead():
                a("s_waitcnt lgkmcnt(0)")
                a(f"v_sub_f32 v{vE}, v{vSn}, v{vMax}\nv_mul_f32 v{vE}, {LOG2E}, v{vE}\nv_exp_f32 v{vE}, v{vE}")
                a(f"ds_read_b32 v{vSn}, v{vSR}\nv_add_u32 v{vSR}, 0x100, v{vSR}")
                a(f"v_cvt_pk_bf16_f32 v{vP}, v{vE}, v{vE}\ns_nop 1")
                abuild(0)
            def vstep(s, Rw, Ri):
                A = PA + 4 * (s & 1)
                a(f"s_waitcnt vmcnt({Rw-1})\ns_nop 0")
                a(f"v_mfma_f32_16x16x32_bf16 v[{ACC}:{ACC+3}], v[{A}:{A+3}], v[{RING+4*s}:{RING+4*s+3}], v[{ACC}:{ACC+3}]")
                if Ri is not None: vissue(s + Ri)
                if s < 15: abuild(s + 1)
                if (s + 1) % self.pstep == 0:
                    a(f"v_add_u32 v{vProg}, {self.pstep}, v{vProg}\nds_write_b32 v{vPA}, v{vProg}")
                if s == 13: a(f"ds_read_b32 v{vMode}, v{vMA}")
            uid = self.label("vc")
            if self.tl:
                a("v_and_b32 v7, 15, v0\nv_lshrrev_b32 v8, 4, v0\nv_and_b32 v8, 1, v8\nv_lshlrev_b32 v7, 5, v7\nv_lshlrev_b32 v8, 4, v8\nv_add_u32 v7, v7, v8")
                a(f"s_lshl_b32 s18, s3, 9\ns_add_u32 s18, s18, {OP}\nv_add_u32 v7, s18, v7")
            modes = list(range(self.Rlo, self.Rhi + 1))
            assert R in modes
            a(f"s_mov_b32 s19, 16\ns_branch {uid}_top{R}")
            for m in modes:
                a(f"{uid}_top{m}:")
                vhead(); vstep(0, m, m)
                a(f"{uid}_s1_{m}:")
                for s in range(1, 16): vstep(s, m, m)
                a(f"s_sub_u32 s19, s19, 1\ns_cmp_eq_u32 s19, 0\ns_cbranch_scc1 {uid}_done")
                a(f"s_waitcnt lgkmcnt(0)\nv_readfirstlane_b32 s21, v{vMode}")
                if m < self.Rhi: a(f"s_cmp_gt_u32 s21, {m}\ns_cbranch_scc1 {uid}_up{m}")
                if m > self.Rlo: a(f"s_cmp_lt_u32 s21, {m}\ns_cbranch_scc1 {uid}_dn{m}")
                a(f"s_branch {uid}_top{m}")
                if m < self.Rhi:
                    a(f"{uid}_up{m}:")
                    vissue(m)
                    a(f"s_branch {uid}_top{m+1}")
                if m > self.Rlo:
                    a(f"{uid}_dn{m}:")
                    vhead(); vstep(0, m, None)
                    a(f"s_branch {uid}_s1_{m-1}")
            a(f"{uid}_done:")
            if not self.tl: a("s_waitcnt vmcnt(0)")
        if self.tl and self.ctl:
            a(f"s_nop 7\nds_write_b128 v7, v[{ACC}:{ACC+3}]\ns_waitcnt lgkmcnt(0)")
        else:
            a("v_and_b32 v7, 15, v0\nv_lshrrev_b32 v8, 4, v0\nv_and_b32 v8, 1, v8\nv_lshlrev_b32 v7, 5, v7\nv_lshlrev_b32 v8, 4, v8\nv_add_u32 v7, v7, v8")
            a(f"s_lshl_b32 s18, s3, 9\ns_add_u32 s18, s18, {OP}\nv_add_u32 v7, s18, v7")
            a(f"s_nop 1\nds_write_b128 v7, v[{ACC}:{ACC+3}]\ns_waitcnt lgkmcnt(0)")
        self.stamp(3)
        a("s_barrier")
        self.stamp_flush()
        a("s_endpgm")

    def helper(self):
        a = self.a
        MK, A0, D, YA, W = 4, 20, 28, 32, 64
        self.c("==== helper waves (4..7): q projection, FFN, softmax denominators, output projection, final sum ====")
        a("s_sub_u32 s5, s3, 4")
        HW = 5
        self.HW = HW
        a("v_and_b32 v1, 15, v0\nv_lshrrev_b32 v2, 4, v0")
        a(f"s_mul_i32 s48, s{HW}, 40")
        a("s_lshl_b32 s52, s44, 1\ns_add_u32 s52, s52, s46\ns_mul_i32 s52, s52, 5" if self.rot else "s_mov_b32 s52, 0")
        a("s_mul_i32 s49, s44, 1280")
        a("v_lshlrev_b32 v3, 13, v2\nv_lshlrev_b32 v9, 4, v1\nv_add_u32 v3, v3, v9")
        a(f"s_mul_i32 s53, s{HW}, {160*8192}\ns_lshl_b32 s51, s45, 8\ns_add_u32 s53, s53, s51")
        a(f"s_lshl_b32 s50, s52, 15\ns_add_u32 s50, s50, s53\ns_add_u32 s51, s53, {40*32768}")
        a("s_waitcnt lgkmcnt(0)")
        self.stamp(6)
        self.srd(8, 64, 5120)
        self.srd(12, 70, 5242880)
        for r in range(10):
            t = 52 + (r & 3)
            a(f"v_add_u32 v{t}, {16*r}, v1")
            if r <= 2:
                a(f"v_add_u32 v8, s52, v{t}\nv_subrev_u32 v9, 40, v8\nv_min_u32 v8, v8, v9\nv_add_u32 v8, s48, v8")
            if r >= 2:
                a(f"v_add_u32 v{t}, s48, v{t}\nv_subrev_u32 v9, 160, v{t}\nv_min_u32 v{t}, v{t}, v9")
            if r < 2:
                a(f"v_mov_b32 v{t}, v8")
            elif r == 2:
                a(f"v_cmp_gt_u32 vcc, 8, v1\ns_nop 1\nv_cndmask_b32 v{t}, v{t}, v8, vcc")
            a(f"v_lshlrev_b32 v{t}, 2, v{t}\nv_add_u32 v{t}, v{t}, v2\nv_lshlrev_b32 v{t}, 1, v{t}")
            a(f"buffer_load_ushort v{10+r}, v{t}, s[8:11], s49 offen")
        def wq_issue(u):
            a(f"buffer_load_dwordx4 v[{W+4*u}:{W+4*u+3}], v3, s[12:15], s50 offen {self.wq_flags}")
            if u < 39: a("s_add_u32 s50, s50, 0x8000\ns_cmp_eq_u32 s50, s51\ns_cselect_b32 s50, s53, s50")
        N1 = self.qo if self.qo else 40
        for u in range(N1):
            wq_issue(u)
            if self.qo and u == self.b0at:
                if self.b0: a("s_barrier")
                self.stamp(0)
        if not self.qo:
            if self.b0: a("s_barrier")
            self.stamp(0)
        self.masks16x32(MK, 8)
        a(f"v_mov_b32 v52, -1\nv_mov_b32 v53, -1\nv_mov_b32 v54, -1\nv_mov_b32 v55, -1\nv_mov_b32 v9, {MW}\nds_write_b128 v9, v[52:55]")
        if self.fe: a(f"ds_write_b32 v9, v52 offset:{F7-MW}")
        self.srd(16, 72, 5242880)
        self.srd(20, 86, 0x40000000)
        self.srd(24, 84, 256)
        self.srd(28, 82, 5120)
        a(f"s_waitcnt vmcnt({N1})")
        self.layernorm(10, 3, 54 if self.qo else 52, 54 if self.qo else 52)
        def abuild(src, u, buf, MKr=MK):
            for jj in range(4):
                a(f"v_and_b32_dpp v{A0+4*buf+jj}, v{src}, v{MKr+jj} row_newbcast:{u} row_mask:0xf bank_mask:0xf")
        a("s_nop 1")
        abuild(10, 0, 0)
        for u in range(40):
            if u + N1 < 40:
                wq_issue(u + N1)
                if u + N1 == self.b0at:
                    if self.b0: a("s_barrier")
                    self.stamp(0)
            if u < 39: abuild(10 + ((u + 1) >> 4), (u + 1) & 15, (u + 1) & 1)
            else: a("s_nop 1")
            a(f"s_waitcnt vmcnt({min(N1, 39-u)})")
            A = A0 + 4 * (u & 1)
            cin = "0" if u == 0 else f"v[{D}:{D+3}]"
            a(f"v_mfma_f32_16x16x32_bf16 v[{D}:{D+3}], v[{A}:{A+3}], v[{W+4*u}:{W+4*u+3}], {cin}")
        a("v_lshlrev_b32 v8, 5, v1\nv_and_b32 v9, 1, v2\nv_lshlrev_b32 v9, 4, v9\nv_add_u32 v8, v8, v9")
        a(f"s_lshl_b32 s48, s{HW}, 9\nv_add_u32 v9, s48, v8")
        a(f"s_nop 3\nds_write_b128 v9, v[{D}:{D+3}] offset:{QP}\ns_waitcnt lgkmcnt(0)")
        a("s_barrier")
        self.stamp(1)
        if self.owarm:
            a("s_mov_b64 exec, 1\nbuffer_load_dword v249, off, s[28:31], 0\nbuffer_load_dword v250, off, s[28:31], 0 offset:4092\ns_mov_b64 exec, -1")
        l_wo = self.label("wo")
        l_w5 = self.label("w5") if self.clw == 's' else l_wo
        if self.fe:
            a(f"s_and_b32 s48, s{HW}, 1\ns_cmp_eq_u32 s48, 1\ns_cbranch_scc0 {l_wo}")
            a(f"s_and_b32 s48, s2, 1\ns_cmp_eq_u32 s48, {1 if self.fe == 3 else 0}\ns_cbranch_scc0 {l_w5}\ns_cmp_lt_u32 s2, 216\ns_cbranch_scc0 {l_w5}")
        else:
            a(f"s_cmp_eq_u32 s{HW}, 1\ns_cbranch_scc0 {l_wo}\ns_cmp_lt_u32 s2, {216 if self.f2 else 27}\ns_cbranch_scc0 {l_w5}")
        if self.skip_ffn:
            a("v_mov_b32 v52, 1\ns_mov_b64 exec, 1\nbuffer_atomic_add v52, off, s[24:27], 0 offset:128 sc1\ns_mov_b64 exec, -1")
        elif self.f2:
            self.ffn1()
        else:
            self.ffn()
        if self.clw == 's':
            l_sg = self.label("sig")
            a(f"s_branch {l_wo}")
            a(f"{l_w5}:")
            a(f"s_cmp_eq_u32 s{HW}, 1\ns_cbranch_scc0 {l_wo}")
            self.signal()
        a(f"{l_wo}:")
        l_nc = self.label("noclear")
        if self.clw == 'w4': self.wave4_clear(l_nc)
        self.wo_prefetch_and_rest(MK, A0, D, YA, W, HW, abuild)

    def signal(self, sr=48, now=False):
        a = self.a
        if self.xsig: return
        if self.sigk and not now: return
        a("v_mov_b32 v52, 1\ns_mov_b64 exec, 1")
        if self.flag == 'at': a("buffer_atomic_add v52, off, s[24:27], 0 sc1")
        elif self.flag.startswith('at'):
            N = int(self.flag[2:]); sh = {2: 7, 4: 6, 8: 5, 16: 4, 32: 3, 64: 2}[N]
            a(f"s_and_b32 s{sr}, s2, {N-1}\ns_lshl_b32 s{sr}, s{sr}, {sh}\nbuffer_atomic_add v52, off, s[24:27], s{sr} sc1")
        elif self.flag == 'byte': a("v_mov_b32 v53, s2\nbuffer_store_byte v52, v53, s[24:27], 0 offen sc1")
        a("s_mov_b64 exec, -1")
    def signal_check(self, name):
        a = self.a
        if self.schk:
            assert self.flag == 'at4'
            fast = self.label("chkfast")
            g = " glc" if self.schk == 1 else ""
            for i in range(4): a(f"s_load_dword s{48+i}, s[84:85], {hex(64*i)}{g}")
            a("s_waitcnt lgkmcnt(0)\ns_min_u32 s48, s48, s49\ns_min_u32 s50, s50, s51\ns_min_u32 s48, s48, s50")
            a(f"s_cmp_ge_u32 s48, 64\ns_cbranch_scc1 {fast}")
            self.schk, keep = 0, self.schk
            self.signal_check(name)
            self.schk = keep
            a(f"{fast}:")
            return
        N = int(self.flag[2:]) if self.flag.startswith('at') and self.flag != 'at' else 0
        if N: a(f"v_and_b32 v59, {N-1}, v0\nv_lshlrev_b32 v59, {({2: 7, 4: 6, 8: 5, 16: 4, 32: 3, 64: 2}[N])}, v59")
        elif self.flag == 'byte': a("v_lshlrev_b32 v59, 2, v0")
        l, d = self.spin_head(name, 48)
        if self.flag == 'at':
            a("buffer_load_dword v58, off, s[24:27], 0 sc1\ns_waitcnt vmcnt(0)\nv_cmp_gt_u32 vcc, 256, v58")
        else:
            a("buffer_load_dword v58, v59, s[24:27], 0 offen sc1\ns_waitcnt vmcnt(0)")
            if self.flag == 'byte': a("v_cmp_ne_u32 vcc, 0x01010101, v58")
            else: a(f"v_cmp_gt_u32 vcc, {256 // N}, v58")
        a(f"s_cbranch_vccz {d}")
        a(f"s_sub_u32 s48, s48, 1\ns_cmp_lg_u32 s48, 0\ns_cbranch_scc1 {l}")
        a(f"{d}:")

    def wave4_clear(self, l_nc):
        a = self.a
        HW = self.HW
        a(f"s_cmp_eq_u32 s{HW}, {7 if self.xclr == 2 else 0}\ns_cbranch_scc0 {l_nc}")
        a("v_mov_b32 v52, -1\nv_mov_b32 v53, -1\nv_mov_b32 v54, -1\nv_mov_b32 v55, -1")
        a(f"s_mul_i32 s48, s47, 2560\ns_add_u32 s48, s48, {Y_OFF}\nv_lshlrev_b32 v9, 4, v0")
        a("buffer_store_dwordx4 v[52:55], v9, s[20:23], s48 offen sc1")
        a("buffer_store_dwordx4 v[52:55], v9, s[20:23], s48 offen offset:1024 sc1")
        a("s_mov_b32 exec_hi, 0")
        a("buffer_store_dwordx4 v[52:55], v9, s[20:23], s48 offen offset:2048 sc1")
        a("s_mov_b64 exec, 1")
        a(f"s_lshl_b32 s49, s47, 7\ns_add_u32 s49, s49, {ML_OFF}")
        a("buffer_store_dwordx2 v[52:53], v9, s[20:23], s49 offen sc1")
        if self.ctl:
            self.slot_addr(49, 50)
            a(f"v_mov_b32 v56, 0\nbuffer_store_dword v56, v9, s[20:23], s49 offen {'' if self.psp else 'sc1'}")
            if self.gx:
                nl = self.label("nolead")
                a(f"s_cmp_ge_u32 s2, 248\ns_cbranch_scc0 {nl}")
                a("buffer_store_dword v56, v9, s[20:23], s50 offen offset:128 sc1")
                a(f"s_and_b32 s49, s2, 7\ns_lshl_b32 s49, s49, 2\ns_add_u32 s49, s49, {GL_OFF}")
                a("buffer_store_dword v56, v9, s[20:23], s49 offen sc1")
                a(f"{nl}:")
        a("s_waitcnt vmcnt(0)")
        a("v_mov_b32 v52, 1")
        if not self.xclr: a("buffer_atomic_add v52, off, s[24:27], 0 sc1")
        a("s_mov_b64 exec, -1")
        a(f"{l_nc}:")

    def wo_prefetch_and_rest(self, MK, A0, D, YA, W, HW, abuild):
        a = self.a
        a("v_mul_u32_u24 v3, 1280, v2\nv_lshlrev_b32 v9, 4, v1\nv_add_u32 v3, v3, v9")
        a(f"s_lshl_b32 s48, s45, 7\ns_lshl_b32 s49, s{HW}, 5\ns_add_u32 s48, s48, s49\ns_mul_i32 s48, s48, 1280")
        if self.sigk:
            a(f"s_lshr_b32 s58, s2, {3 + self.sigk - 1}\ns_cmp_eq_u32 s{HW}, 1\ns_cselect_b32 s58, s58, -1")
        for u in range(8):
            if self.skip_wo: break
            for cb in range(5):
                r = W + 4 * (5 * u + cb)
                if self.wo_win and 5 * u + cb >= self.wo_win: a(f"s_waitcnt vmcnt({self.wo_win-1})")
                a(f"buffer_load_dwordx4 v[{r}:{r+3}], v3, s[16:19], s48 offen offset:{256*cb} {self.wo_flags}")
                if self.sigk and 5 * u + cb < (32 >> (self.sigk - 1)):
                    sk = self.label("sk")
                    a(f"s_cmp_eq_u32 s58, {5*u+cb}\ns_cbranch_scc0 {sk}")
                    self.signal(59, True)
                    a(f"{sk}:")
            if u < 7: a(f"s_add_u32 s48, s48, {4*1280}")
        if self.vwarm:
            lw = self.label("novw")
            a(f"s_cmp_eq_u32 s{HW}, 3\ns_cbranch_scc0 {lw}\ns_lshl_b32 s49, s47, 20")
            if self.vwarm == 1:
                self.srd(32, 68, 0x10000000)
                a("s_mov_b64 exec, 1\nbuffer_load_dword v60, off, s[32:35], s49\ns_mov_b64 exec, -1")
            else:
                a("s_load_dword s100, s[68:69], s49")
            a(f"{lw}:")
        l_b2 = self.label("toB2")
        a(f"s_cmp_eq_u32 s{HW}, 0\ns_cbranch_scc0 {l_b2}")
        self.wave4_mid()
        l_b3 = self.label("toB2b")
        if self.ctl or self.f2: a(f"s_branch {l_b3}")
        a(f"{l_b2}:")
        if self.f2:
            for j in range(20): a(f"v_mov_b32 v{YA+j}, 0")
        if self.ctl:
            a(f"s_cmp_eq_u32 s{HW}, 2\ns_cbranch_scc0 {l_b3}")
            self.monitor()
        if self.ctl or self.f2: a(f"{l_b3}:")
        a("s_waitcnt vmcnt(0)")
        a(f"v_and_b32 v8, 7, v1\nv_lshlrev_b32 v8, 2, v8\nv_add_u32 v8, v8, v2\nv_lshlrev_b32 v8, 2, v8\ns_lshl_b32 s48, s{HW}, 7\nv_add_u32 v8, s48, v8")
        a(f"v_mov_b32 v9, {FW}")
        a("v_lshlrev_b32 v10, 5, v1\nv_and_b32 v11, 1, v2\nv_lshlrev_b32 v11, 4, v11\nv_add_u32 v10, v10, v11")
        a(f"s_mul_i32 s48, s{HW}, 2560\nv_add_u32 v10, s48, v10")
        a(f"s_mul_i32 s48, s{HW}, 640\nv_lshlrev_b32 v11, 4, v0\nv_add_u32 v11, s48, v11")
        a(f"s_mul_i32 s49, s47, 2560\ns_add_u32 s49, s49, {Y_OFF}")
        self.stamp(2)
        a("s_barrier")
        self.stamp(3)
        a("ds_read_b128 v[52:55], v9")
        for w in range(4): a(f"ds_read_b32 v{56+w}, v8 offset:{OP+512*w}")
        a("s_waitcnt lgkmcnt(0)")
        a("v_mul_f32 v56, v52, v56\nv_mul_f32 v58, v54, v58\nv_fmac_f32 v56, v53, v57\nv_fmac_f32 v58, v55, v59\nv_add_f32 v56, v56, v58")
        a("v_cvt_pk_bf16_f32 v56, v56, v56\ns_nop 1")
        abuild(56, 0, 0)
        for u in range(8):
            if u < 7: abuild(56, u + 1, (u + 1) & 1)
            else: a("s_nop 1")
            A = A0 + 4 * (u & 1)
            for cb in range(5):
                r = W + 4 * (5 * u + cb)
                acc = YA + 4 * cb
                cin = "0" if (u == 0 and not self.f2) else f"v[{acc}:{acc+3}]"
                a(f"v_mfma_f32_16x16x32_bf16 v[{acc}:{acc+3}], v[{A}:{A+3}], v[{r}:{r+3}], {cin}")
        a("s_nop 3")
        for cb in range(5):
            if cb == 4: a("s_nop 3")
            a(f"ds_write_b128 v10, v[{YA+4*cb}:{YA+4*cb+3}] offset:{YP+512*cb}")
        a("s_waitcnt lgkmcnt(0)")
        a("s_barrier")
        a("s_mov_b32 exec_hi, 0xff")
        for w in range(4): a(f"ds_read_b128 v[{64+4*w}:{64+4*w+3}], v11 offset:{YP+2560*w}")
        a("s_waitcnt lgkmcnt(0)")
        a("v_pk_add_f32 v[64:65], v[64:65], v[68:69]\nv_pk_add_f32 v[66:67], v[66:67], v[70:71]")
        a("v_pk_add_f32 v[72:73], v[72:73], v[76:77]\nv_pk_add_f32 v[74:75], v[74:75], v[78:79]")
        a("v_pk_add_f32 v[64:65], v[64:65], v[72:73]\nv_pk_add_f32 v[66:67], v[66:67], v[74:75]")
        a("buffer_store_dwordx4 v[64:67], v11, s[20:23], s49 offen sc1")
        a("s_mov_b64 exec, -1")
        self.stamp(4)
        l_fin = self.label("fin")
        a(f"s_cmp_eq_u32 s{HW}, 0\ns_cbranch_scc0 {l_fin}\ns_cmp_lt_u32 s2, 80\ns_cbranch_scc0 {l_fin}")
        self.final_reduce()
        a(f"{l_fin}:")
        self.stamp(5)
        self.stamp_flush("h")
        a("s_endpgm")

    def slot_addr(self, sa, sb):
        a = self.a
        if self.cloc:
            a(f"s_lshr_b32 s{sa}, s2, 3\ns_and_b32 s{sb}, s2, 7\ns_lshl_b32 s{sb}, s{sb}, 8\ns_add_u32 s{sb}, s{sb}, {PS_OFF}")
        else:
            a(f"s_lshr_b32 s{sa}, s2, 3\ns_add_u32 s{sb}, s{sa}, s2\ns_and_b32 s{sb}, s{sb}, 7\ns_lshl_b32 s{sb}, s{sb}, 7\ns_add_u32 s{sb}, s{sb}, {PS_OFF}")
        a(f"s_lshl_b32 s{sa}, s{sa}, 2\ns_add_u32 s{sa}, s{sa}, s{sb}")
    def monitor(self):
        a = self.a
        self.c("---- wave 6: balances the V phase by steering each streaming wave's lookahead depth ----")
        l, d = self.spin_head("mw6", 48)
        a(f"v_mov_b32 v9, {MW}\nds_read_b128 v[52:55], v9\ns_waitcnt lgkmcnt(0)")
        a("v_max3_u32 v9, v52, v53, v54\nv_max_u32 v9, v9, v55\nv_cmp_eq_u32 vcc, -1, v9")
        a(f"s_cbranch_vccz {d}")
        a(f"s_sub_u32 s48, s48, 1\ns_cmp_lg_u32 s48, 0\ns_cbranch_scc1 {l}")
        a(f"{d}:")
        if self.psp == 2: self.signal_check("clr6")
        if not self.psp:
            l, d = self.spin_head("clr6", 48)
            a("buffer_load_dword v58, off, s[24:27], 0 sc1\ns_waitcnt vmcnt(0)")
            a(f"v_cmp_gt_u32 vcc, {0 if self.xclr else 256}, v58")
            a(f"s_cbranch_vccz {d}")
            a(f"s_sub_u32 s48, s48, 1\ns_cmp_lg_u32 s48, 0\ns_cbranch_scc1 {l}")
            a(f"{d}:")
        self.slot_addr(49, 50)
        a(f"v_and_b32 v52, 3, v0\nv_lshlrev_b32 v53, 2, v52\nv_add_u32 v53, {MODE}, v53")
        a(f"v_lshlrev_b32 v52, 8, v52\nv_add_u32 v52, {PRG}, v52")
        if not self.gx:
            a("v_and_b32 v54, 31, v0\nv_lshlrev_b32 v54, 2, v54\nv_mov_b32 v9, 0\ns_mov_b32 s51, 0")
        else:
            a("v_lshlrev_b32 v54, 2, v0\nv_min_u32 v54, 128, v54\nv_mov_b32 v9, 0\ns_mov_b32 s51, 0")
            a(f"s_mov_b32 s58, 0\ns_mov_b32 s59, 0\ns_and_b32 s57, s2, 7\ns_lshl_b32 s57, s57, {8 if self.gx == 3 else 2}\ns_add_u32 s57, s57, {GL_OFF}")
        l, d = self.spin_head("mon", 48)
        a("ds_read_b32 v55, v52\ns_waitcnt lgkmcnt(0)")
        a("v_add_u32_dpp v56, v55, v55 quad_perm:[1,0,3,2] row_mask:0xf bank_mask:0xf\ns_nop 1")
        a("v_add_u32_dpp v56, v56, v56 quad_perm:[2,3,0,1] row_mask:0xf bank_mask:0xf\ns_nop 1")
        a("v_readfirstlane_b32 s52, v56")
        a(f"s_nop 1\ns_cmp_ge_u32 s52, {self.cthr}\ns_cbranch_scc1 {d}")
        a(f"s_mov_b64 exec, 1\nbuffer_store_dword v56, v9, s[20:23], s49 offen {self.mst}\ns_mov_b64 exec, -1")
        a(f"buffer_load_dword v57, v54, s[20:23], s50 offen {self.mld}\ns_waitcnt vmcnt(0)")
        if self.gx:
            a("v_readlane_b32 s55, v57, 32\ns_mov_b32 exec_lo, 0\nv_mov_b32 v57, 0\ns_mov_b32 exec_lo, -1\ns_nop 1")
        self.wave_reduce(57, "v_add_u32", 53)
        if self.gx:
            a("s_lshl_b32 s53, s53, 1")
            nl = self.label("nolead")
            a(f"s_cmp_ge_u32 s2, 248\ns_cbranch_scc0 {nl}")
            if self.gM > 1: a(f"s_and_b32 s32, s48, {self.gM-1}\ns_cmp_eq_u32 s32, 0\ns_cbranch_scc0 {nl}")
            a("v_mov_b32 v58, s53\ns_mov_b64 exec, 1\nbuffer_store_dword v58, v9, s[20:23], s57 offen sc1\ns_mov_b64 exec, -1")
            if self.gx == 1:
                a(f"s_waitcnt vmcnt(0)\ns_load_dwordx8 s[32:39], s[86:87], {hex(GL_OFF)} glc\ns_waitcnt lgkmcnt(0)")
                a("s_add_u32 s32, s32, s33\ns_add_u32 s34, s34, s35\ns_add_u32 s36, s36, s37\ns_add_u32 s38, s38, s39")
                a("s_add_u32 s32, s32, s34\ns_add_u32 s36, s36, s38\ns_add_u32 s32, s32, s36")
            else:
                a(f"v_and_b32 v58, 7, v0\nv_lshlrev_b32 v58, {8 if self.gx == 3 else 2}, v58\ns_mov_b32 s32, {GL_OFF}\nbuffer_load_dword v59, v58, s[20:23], s32 offen sc1\ns_waitcnt vmcnt(0)")
                a("v_add_u32_dpp v59, v59, v59 row_ror:4 row_mask:0xf bank_mask:0xf\ns_nop 1")
                a("v_add_u32_dpp v59, v59, v59 row_ror:2 row_mask:0xf bank_mask:0xf\ns_nop 1")
                a("v_add_u32_dpp v59, v59, v59 row_ror:1 row_mask:0xf bank_mask:0xf\ns_nop 1")
                a("v_readfirstlane_b32 s32, v59\ns_nop 1")
            a("s_lshr_b32 s32, s32, 3\ns_sub_u32 s55, s32, s53")
            if self.gbias: a(f"s_add_u32 s55, s55, {self.gbias}")
            if self.gsh: a(f"s_ashr_i32 s55, s55, {self.gsh}")
            a("v_mov_b32 v58, s55\ns_mov_b64 exec, 1")
            a(f"buffer_store_dword v58, v9, s[20:23], s50 offen offset:128 {self.mst}\ns_mov_b64 exec, -1")
            if self.stamps: a("s_mov_b32 s58, s32\ns_mov_b32 s59, s53")
            a(f"{nl}:")
        a("s_sub_u32 s54, s52, s51\ns_lshl_b32 s54, s54, 6\ns_add_u32 s54, s54, s53")
        if self.gx: a("s_add_u32 s54, s54, s55")
        a(f"s_add_u32 s54, s54, {self.cbias}\ns_mov_b32 s51, s52")
        a("v_lshlrev_b32 v55, 8, v55\nv_sub_u32 v55, s54, v55")
        a(f"v_ashrrev_i32 v55, {self.csh}, v55\nv_add_u32 v55, {self.R}, v55")
        a(f"v_max_i32 v55, {self.Rlo}, v55\nv_min_i32 v55, {self.Rhi}, v55")
        a("ds_write_b32 v53, v55")
        a(f"s_sub_u32 s48, s48, 1\ns_cmp_lg_u32 s48, 0\ns_cbranch_scc1 {l}")
        a(f"{d}:")
        a(f"v_mov_b32 v56, 0x400\ns_mov_b64 exec, 1\nbuffer_store_dword v56, v9, s[20:23], s49 offen {self.mst}\ns_mov_b64 exec, -1")
        if self.gx:
            nl = self.label("nolead")
            a(f"s_cmp_ge_u32 s2, 248\ns_cbranch_scc0 {nl}")
            a("v_mov_b32 v58, 0x10000\ns_mov_b64 exec, 1\nbuffer_store_dword v58, v9, s[20:23], s57 offen sc1\ns_mov_b64 exec, -1")
            if self.stamps and self.clw == 'w4':
                a("s_and_b32 s32, s2, 7\ns_lshl_b32 s32, s32, 2\nv_mov_b32 v58, s58\nv_mov_b32 v59, s59\ns_mov_b64 exec, 1")
                a("buffer_store_dword v58, v9, s[24:27], s32 offen offset:64\nbuffer_store_dword v59, v9, s[24:27], s32 offen offset:96\ns_mov_b64 exec, -1")
            a(f"{nl}:")

    def wave4_mid(self):
        a = self.a
        self.c("---- wave 4: softmax statistics of this half, exchange with the other half ----")
        l, d = self.spin_head("mw", 48)
        a(f"v_mov_b32 v9, {MW}\nds_read_b128 v[52:55], v9\ns_waitcnt lgkmcnt(0)")
        a("v_max3_u32 v9, v52, v53, v54\nv_max_u32 v9, v9, v55\nv_cmp_eq_u32 vcc, -1, v9")
        a(f"s_cbranch_vccz {d}")
        if self.sleep: a("s_sleep 16")
        a(f"s_sub_u32 s48, s48, 1\ns_cmp_lg_u32 s48, 0\ns_cbranch_scc1 {l}")
        a(f"{d}:")
        self.stamp(6)
        a("v_max3_f32 v56, v52, v53, v54\nv_max_f32 v56, v56, v55")
        a(f"v_lshlrev_b32 v9, 4, v0\nv_add_u32 v9, {SC}, v9\nv_mov_b32 v57, 0\ns_mov_b32 s48, 4")
        lp = self.label("lsum")
        a(f"{lp}:")
        for i in range(4): a(f"ds_read_b128 v[{224+4*i}:{227+4*i}], v9 offset:{1024*i}")
        a("v_add_u32 v9, 4096, v9\ns_waitcnt lgkmcnt(0)")
        for i in range(16): a(f"v_sub_f32 v{224+i}, v{224+i}, v56")
        for i in range(16): a(f"v_mul_f32 v{224+i}, {LOG2E}, v{224+i}")
        for i in range(16): a(f"v_exp_f32 v{224+i}, v{224+i}")
        a("s_nop 0")
        for i in range(16): a(f"v_add_f32 v57, v57, v{224+i}")
        a(f"s_sub_u32 s48, s48, 1\ns_cmp_lg_u32 s48, 0\ns_cbranch_scc1 {lp}")
        a("s_nop 1")
        self.wave_reduce(57, "v_add_f32", 50)
        a("v_mov_b32 v57, s50")
        a(f"s_lshl_b32 s49, s47, 7\ns_add_u32 s49, s49, {ML_OFF}")
        a("v_mov_b32 v9, 0\ns_mov_b64 exec, 1")
        a(f"buffer_store_dwordx2 v[56:57], v9, s[20:23], s49 offen {self.mlfl}")
        a("s_mov_b64 exec, -1")
        if self.f2: self.ffn2()
        if self.clw == 'w4':
            l, d = self.spin_head("clr", 48)
            a("buffer_load_dword v58, off, s[24:27], 0 sc1\ns_waitcnt vmcnt(0)")
            a(f"v_cmp_gt_u32 vcc, {0 if self.xclr else 256}, v58")
            a(f"s_cbranch_vccz {d}")
            a(f"s_sub_u32 s48, s48, 1\ns_cmp_lg_u32 s48, 0\ns_cbranch_scc1 {l}")
            a(f"{d}:")
        a(f"s_xor_b32 s49, s47, 1\ns_lshl_b32 s49, s49, 7\ns_add_u32 s49, s49, {ML_OFF}\nv_mov_b32 v9, 0")
        l, d = self.spin_head("ml", 48)
        a(f"buffer_load_dwordx2 v[58:59], v9, s[20:23], s49 offen {'nt' if self.mlfl != 'sc1' else 'sc1'}\ns_waitcnt vmcnt(0)")
        a("v_max_u32 v60, v58, v59\nv_cmp_eq_u32 vcc, -1, v60")
        a(f"s_cbranch_vccz {d}")
        a(f"s_sub_u32 s48, s48, 1\ns_cmp_lg_u32 s48, 0\ns_cbranch_scc1 {l}")
        a(f"{d}:")
        a("v_max_f32 v60, v56, v58")
        a("v_sub_f32 v56, v56, v60\nv_sub_f32 v58, v58, v60")
        for i in range(4): a(f"v_sub_f32 v{52+i}, v{52+i}, v60")
        a(f"v_mul_f32 v56, {LOG2E}, v56\nv_mul_f32 v58, {LOG2E}, v58")
        for i in range(4): a(f"v_mul_f32 v{52+i}, {LOG2E}, v{52+i}")
        a("v_exp_f32 v56, v56\nv_exp_f32 v58, v58")
        for i in range(4): a(f"v_exp_f32 v{52+i}, v{52+i}")
        a("v_mul_f32 v57, v57, v56\nv_fmac_f32 v57, v59, v58\nv_rcp_f32 v57, v57\ns_nop 0")
        for i in range(4): a(f"v_mul_f32 v{52+i}, v{52+i}, v57")
        a(f"v_mov_b32 v9, {FW}\nds_write_b128 v9, v[52:55]\ns_waitcnt lgkmcnt(0)")
        l_nr = self.label("nored")
        a(f"s_cmp_lt_u32 s2, 80\ns_cbranch_scc0 {l_nr}")
        a("s_mul_i32 s62, s2, 205\ns_lshr_b32 s62, s62, 12\ns_mul_i32 s63, s62, 20\ns_sub_u32 s63, s2, s63")
        if self.f2:
            a("v_and_b32 v59, 7, v0\ns_mul_i32 s48, s62, 1280\ns_lshl_b32 s49, s63, 6\ns_add_u32 s48, s48, s49\nv_lshlrev_b32 v61, 3, v59")
            a("buffer_load_dwordx2 v[246:247], v61, s[8:11], s48 offen\ns_waitcnt vmcnt(0)")
            a("v_lshlrev_b32 v244, 16, v246\nv_and_b32 v245, 0xffff0000, v246\nv_lshlrev_b32 v246, 16, v247\nv_and_b32 v247, 0xffff0000, v247")
            a(f"{l_nr}:")
            return
        l, d = self.spin_head("zc", 48)
        a("buffer_load_dword v58, off, s[24:27], 0 offset:128 sc1\ns_waitcnt vmcnt(0)")
        a("v_cmp_gt_u32 vcc, 27, v58")
        a(f"s_cbranch_vccz {d}")
        a(f"s_sub_u32 s48, s48, 1\ns_cmp_lg_u32 s48, 0\ns_cbranch_scc1 {l}")
        a(f"{d}:")
        a("v_lshrrev_b32 v58, 3, v0\nv_and_b32 v59, 7, v0")
        a("v_mul_u32_u24 v60, 10240, v58\nv_lshlrev_b32 v61, 4, v59\nv_add_u32 v60, v60, v61")
        a(f"s_mul_i32 s48, s62, 2560\ns_lshl_b32 s49, s63, 7\ns_add_u32 s48, s48, s49\ns_add_u32 s48, s48, {Z_OFF}")
        for i in range(3):
            a(f"buffer_load_dwordx4 v[{224+4*i}:{227+4*i}], v60, s[20:23], s48 offen sc1")
            a(f"s_add_u32 s48, s48, {8*10240}")
        a("v_cmp_gt_u32 vcc, 3, v58\nv_mov_b32 v61, 0x7ffffff0\ns_nop 0\nv_cndmask_b32 v60, v61, v60, vcc")
        a("buffer_load_dwordx4 v[236:239], v60, s[20:23], s48 offen sc1")
        a("s_mul_i32 s48, s62, 1280\ns_lshl_b32 s49, s63, 6\ns_add_u32 s48, s48, s49\nv_lshlrev_b32 v61, 3, v59")
        a("buffer_load_dwordx2 v[246:247], v61, s[8:11], s48 offen")
        a("s_waitcnt vmcnt(0)")
        for j in range(4):
            a(f"v_add_f32 v{224+j}, v{224+j}, v{228+j}\nv_add_f32 v{232+j}, v{232+j}, v{236+j}\nv_add_f32 v{240+j}, v{224+j}, v{232+j}")
        self.reduce_hq(240, 4, 248)
        for j in range(4): self.rbf16(240 + j)
        a("v_lshlrev_b32 v244, 16, v246\nv_and_b32 v245, 0xffff0000, v246\nv_lshlrev_b32 v246, 16, v247\nv_and_b32 v247, 0xffff0000, v247")
        a(f"{l_nr}:")

    def final_reduce(self):
        a = self.a
        self.c("---- final sum over the 64 (head, half) rows for 32 output columns of one batch row ----")
        a("v_lshrrev_b32 v58, 3, v0\nv_and_b32 v59, 7, v0")
        a("v_mul_u32_u24 v60, 2560, v58\nv_lshlrev_b32 v61, 4, v59\nv_add_u32 v60, v60, v61")
        a(f"s_mul_i32 s48, s62, {64*2560}\ns_lshl_b32 s49, s63, 7\ns_add_u32 s48, s48, s49\ns_add_u32 s48, s48, {Y_OFF}")
        for i in range(1, 8): a(f"s_add_u32 s{48+i}, s{47+i}, {8*2560}")
        if self.yp > 1:
            S = self.yp
            def issue(st):
                for i in range(8): a(f"buffer_load_dwordx4 v[{64+32*st+4*i}:{67+32*st+4*i}], v60, s[20:23], s{48+i} offen sc1")
            l, fin = self.label("y"), self.label("yfin")
            dn = [self.label("ydone") for _ in range(S)]
            a(f"s_mov_b32 s56, {SPIN_MAX}")
            for st in range(S): issue(st)
            a(f"{l}:")
            for st in range(S):
                b0 = 64 + 32 * st
                a(f"s_waitcnt vmcnt({8*(S-1)})")
                for k in (16, 8, 4):
                    for i in range(0, k, 2):
                        a(f"v_pk_add_f32 v[{b0+i}:{b0+i+1}], v[{b0+i}:{b0+i+1}], v[{b0+k+i}:{b0+k+i+1}]")
                a(f"v_add_f32 v{b0+4}, v{b0}, v{b0+1}\nv_add_f32 v{b0+5}, v{b0+2}, v{b0+3}\nv_add_f32 v{b0+4}, v{b0+4}, v{b0+5}\nv_cmp_u_f32 vcc, v{b0+4}, v{b0+4}")
                a(f"s_cbranch_vccz {dn[st]}")
                issue(st)
            a(f"s_sub_u32 s56, s56, 1\ns_cmp_lg_u32 s56, 0\ns_cbranch_scc1 {l}")
            O = 64 + 32 * S
            for st in range(S):
                a(f"{dn[st]}:")
                for j in range(4): a(f"v_mov_b32 v{O+j}, v{64+32*st+j}")
                if st < S - 1: a(f"s_branch {fin}")
            a(f"{fin}:")
            self.reduce_hq(O, 4, O + 4)
            for j in range(4): a(f"v_add_f32 v{O+j}, v{244+j}, v{O+j}")
            a(f"v_cvt_pk_bf16_f32 v{O}, v{O}, v{O+1}\nv_cvt_pk_bf16_f32 v{O+1}, v{O+2}, v{O+3}")
            a("s_mul_i32 s48, s62, 1280\ns_lshl_b32 s49, s63, 6\ns_add_u32 s57, s48, s49\nv_lshlrev_b32 v61, 3, v59")
            a("s_mov_b64 exec, 0xff")
            a(f"buffer_store_dwordx2 v[{O}:{O+1}], v61, s[28:31], s57 offen {self.ofl}")
            a("s_mov_b64 exec, -1")
            return
        l, d = self.spin_head("y", 56)
        for i in range(8):
            a(f"buffer_load_dwordx4 v[{64+4*i}:{67+4*i}], v60, s[20:23], s{48+i} offen sc1")
        a("s_waitcnt vmcnt(0)")
        for st in (16, 8, 4):
            for i in range(0, st, 2):
                a(f"v_pk_add_f32 v[{64+i}:{65+i}], v[{64+i}:{65+i}], v[{64+st+i}:{65+st+i}]")
        a("v_add_f32 v68, v64, v65\nv_add_f32 v69, v66, v67\nv_add_f32 v68, v68, v69\nv_cmp_u_f32 vcc, v68, v68")
        a(f"s_cbranch_vccz {d}")
        a(f"s_sub_u32 s56, s56, 1\ns_cmp_lg_u32 s56, 0\ns_cbranch_scc1 {l}")
        a(f"{d}:")
        self.reduce_hq(64, 4, 68)
        if self.f2:
            for j in range(4): a(f"v_add_f32 v{64+j}, v{244+j}, v{64+j}")
        else:
            for j in range(4): self.rbf16(64 + j)
            for j in range(4): a(f"v_add_f32 v{64+j}, v{244+j}, v{64+j}")
            for j in range(4): self.rbf16(64 + j)
            for j in range(4): a(f"v_add_f32 v{64+j}, v{64+j}, v{240+j}")
        a("v_cvt_pk_bf16_f32 v64, v64, v65\nv_cvt_pk_bf16_f32 v65, v66, v67")
        a("s_mul_i32 s48, s62, 1280\ns_lshl_b32 s49, s63, 6\ns_add_u32 s48, s48, s49\nv_lshlrev_b32 v61, 3, v59")
        a("s_mov_b64 exec, 0xff")
        a("buffer_store_dwordx2 v[64:65], v61, s[28:31], s48 offen")
        a("s_mov_b64 exec, -1")

    def ffn1(self):
        a = self.a
        self.c("---- FFN stage 1: columns 64*(s2>>3).., rows 80*(s2&7).. ----")
        Wg, X, M2, A0, DG, DU, XA = 64, 144, 44, 20, 28, 32, 184
        self.srd(32, 76, 2211840); self.srd(36, 78, 2211840)
        a("v_mul_u32_u24 v11, 3456, v2\nv_lshlrev_b32 v12, 3, v1\nv_add_u32 v11, v11, v12")
        a("s_lshr_b32 s54, s2, 3\ns_and_b32 s55, s2, 7")
        if self.fe == 1: a(f"s_lshr_b32 s48, s{self.HW}, 1\ns_add_u32 s55, s55, s48")
        if self.fe == 2: a(f"s_lshr_b32 s55, s55, 1\ns_lshr_b32 s48, s{self.HW}, 1\ns_lshl_b32 s48, s48, 2\ns_add_u32 s55, s55, s48")
        if self.fe == 3: a(f"s_lshr_b32 s48, s{self.HW}, 1\ns_add_u32 s55, s55, s48\ns_sub_u32 s55, s55, 1")
        a(f"s_lshl_b32 s48, s54, 7\ns_mul_i32 s49, s55, {80*3456}\ns_add_u32 s48, s48, s49")
        for u in range(20):
            if self.f1win and 2 * u >= self.f1win: a(f"s_waitcnt vmcnt({self.f1win-2})")
            a(f"buffer_load_dwordx2 v[{Wg+4*u}:{Wg+1+4*u}], v11, s[32:35], s48 offen nt")
            a(f"buffer_load_dwordx2 v[{Wg+2+4*u}:{Wg+3+4*u}], v11, s[36:39], s48 offen nt")
            if u < 19: a(f"s_add_u32 s48, s48, {4*3456}")
        a("v_lshlrev_b32 v8, 2, v1\nv_add_u32 v8, v8, v2\nv_lshlrev_b32 v8, 1, v8")
        a("s_mov_b32 s48, 0\ns_mov_b32 s49, 1280\ns_mov_b32 s50, 2560\ns_mov_b32 s51, 3840")
        for b in range(4):
            for r in range(10):
                a(f"buffer_load_ushort v{X+10*b+r}, v8, s[8:11], s{48+b} offen offset:{128*r}")
        self.const64(60, 0xAAAAAAAAAAAAAAAA)
        a("v_mov_b32 v52, 0xffff\nv_mov_b32 v53, 0xffff0000\nv_cndmask_b32_e64 v52, v52, v53, s[60:61]")
        for jj in range(2):
            self.const64(60, 0x3333333333333333 << (2 * jj))
            a(f"v_cndmask_b32_e64 v{M2+jj}, 0, v52, s[60:61]")
        a(f"v_mul_u32_u24 v9, 640, v2\nv_lshlrev_b32 v52, 2, v1\nv_add_u32 v9, v9, v52")
        for b in range(4):
            a(f"s_waitcnt vmcnt({30-10*b})")
            self.layernorm(X + 10 * b, 10, 52, 52)
            for r in range(10):
                a(f"ds_write_b32 v9, v{X+10*b+r} offset:{XNL+2560*b+64*r}")
        a("v_lshrrev_b32 v9, 2, v1\nv_lshlrev_b32 v9, 2, v9\nv_add_u32 v9, v9, v2\nv_mul_u32_u24 v10, 640, v9")
        a(f"s_mul_i32 s48, s55, 80\ns_add_u32 s48, s48, {XNL}\nv_add_u32 v10, s48, v10")
        a("s_waitcnt lgkmcnt(0)")
        for i in range(5): a(f"ds_read_b128 v[{XA+4*i}:{XA+3+4*i}], v10 offset:{16*i}")
        a("s_waitcnt lgkmcnt(0)")
        for u in range(20):
            A = A0 + 2 * (u & 1)
            for jj in range(2): a(f"v_and_b32 v{A+jj}, v{XA+u}, v{M2+jj}")
            a("s_nop 1")
            cg = "0" if u == 0 else f"v[{DG}:{DG+3}]"
            cu = "0" if u == 0 else f"v[{DU}:{DU+3}]"
            a(f"v_mfma_f32_16x16x16_bf16 v[{DG}:{DG+3}], v[{A}:{A+1}], v[{Wg+4*u}:{Wg+1+4*u}], {cg}")
            a(f"v_mfma_f32_16x16x16_bf16 v[{DU}:{DU+3}], v[{A}:{A+1}], v[{Wg+2+4*u}:{Wg+3+4*u}], {cu}")
        a("v_mul_u32_u24 v12, 6912, v2\nv_lshlrev_b32 v13, 4, v1\nv_add_u32 v12, v12, v13")
        a(f"s_mul_i32 s48, s55, {2*27648}\ns_lshl_b32 s49, s54, 8\ns_add_u32 s48, s48, s49\ns_add_u32 s48, s48, {P_OFF}\ns_add_u32 s49, s48, 27648")
        a("s_nop 7")
        a(f"buffer_store_dwordx4 v[{DG}:{DG+3}], v12, s[20:23], s48 offen {self.psfl}")
        a(f"buffer_store_dwordx4 v[{DU}:{DU+3}], v12, s[20:23], s49 offen {self.psfl}")
        if self.clw == 's':
            a("s_waitcnt vmcnt(0)")
            if self.fe:
                l5, le = self.label("f5"), self.label("f7e")
                a(f"v_mov_b32 v9, {F7}\ns_cmp_eq_u32 s{self.HW}, 1\ns_cbranch_scc1 {l5}")
                a(f"v_mov_b32 v52, 1\nds_write_b32 v9, v52\ns_branch {le}")
                a(f"{l5}:")
                l, d = self.spin_head("f7", 48)
                a("ds_read_b32 v52, v9\ns_waitcnt lgkmcnt(0)\nv_cmp_eq_u32 vcc, -1, v52")
                a(f"s_cbranch_vccz {d}")
                a(f"s_sub_u32 s48, s48, 1\ns_cmp_lg_u32 s48, 0\ns_cbranch_scc1 {l}")
                a(f"{d}:")
                self.signal()
                a(f"{le}:")
                return
            self.signal()
            return
        a("s_waitcnt vmcnt(0)\nv_mov_b32 v52, 1\ns_mov_b64 exec, 1")
        if not self.xzc: a("buffer_atomic_add v52, off, s[24:27], 0 offset:128 sc1")
        a("s_mov_b64 exec, -1")

    def ffn2(self):
        a = self.a
        MK, A0, YA, T = 4, 20, 32, 224
        self.c("---- FFN stage 2: hidden columns 27*(2h+half).. of batch row b ----")
        self.srd(40, 80, 2211840)
        if self.clw == 's':
            if not self.xchk: self.signal_check("zc")
        else:
            l, d = self.spin_head("zc", 48)
            a("buffer_load_dword v58, off, s[24:27], 0 offset:128 sc1\ns_waitcnt vmcnt(0)")
            a(f"v_cmp_gt_u32 vcc, {0 if self.xzc else 216}, v58")
            a(f"s_cbranch_vccz {d}")
            a(f"s_sub_u32 s48, s48, 1\ns_cmp_lg_u32 s48, 0\ns_cbranch_scc1 {l}")
            a(f"{d}:")
        a("s_lshl_b32 s54, s45, 1\ns_add_u32 s54, s54, s46\ns_mul_i32 s54, s54, 27")
        a("v_lshrrev_b32 v58, 2, v0\nv_mul_u32_u24 v58, 27648, v58\nv_and_b32 v59, 3, v0\nv_lshlrev_b32 v60, 5, v59\nv_add_u32 v58, v58, v60")
        a(f"s_mul_i32 s48, s44, 6912\ns_lshl_b32 s49, s54, 2\ns_add_u32 s48, s48, s49\ns_add_u32 s48, s48, {P_OFF}")
        a(f"buffer_load_dwordx4 v[{T}:{T+3}], v58, s[20:23], s48 offen {self.pfl}")
        a(f"buffer_load_dwordx4 v[{T+4}:{T+7}], v58, s[20:23], s48 offen offset:16 {self.pfl}")
        a("s_waitcnt vmcnt(0)")
        self.reduce_hq(T, 8, T + 8)
        for j in range(8): self.rbf16(T + j)
        a("s_nop 1")
        for j in range(8): a(f"v_mov_b32_dpp v{T+8+j}, v{T+j} row_ror:12 row_mask:0xf bank_mask:0xf")
        for j in range(8):
            a(f"v_max_f32 v{T+j}, 0, v{T+j}\nv_mul_f32 v{T+j}, v{T+j}, v{T+8+j}\nv_cvt_pk_bf16_f32 v{T+j}, v{T+j}, v{T+j}")
        a("v_cmp_gt_u32 vcc, 3, v59\ns_nop 1")
        for j in range(3, 8): a(f"v_cndmask_b32 v{T+j}, 0, v{T+j}, vcc")
        a(f"v_add_u32 v60, {HL}, v60\ns_mov_b64 exec, 15")
        a(f"ds_write_b128 v60, v[{T}:{T+3}]\nds_write_b128 v60, v[{T+4}:{T+7}] offset:16")
        a("s_mov_b64 exec, -1\ns_waitcnt lgkmcnt(0)")
        a(f"v_and_b32 v60, 7, v1\nv_lshlrev_b32 v60, 2, v60\nv_add_u32 v60, v60, v2\nv_lshlrev_b32 v60, 2, v60\nv_add_u32 v60, {HL}, v60")
        a("ds_read_b32 v61, v60")
        a("v_mul_u32_u24 v58, 1280, v2\nv_lshlrev_b32 v59, 4, v1\nv_add_u32 v58, v58, v59")
        a("s_mul_i32 s48, s54, 1280")
        for i in range(7):
            for cb in range(5):
                a(f"buffer_load_dwordx4 v[{T+4*cb}:{T+3+4*cb}], v58, s[40:43], s48 offen offset:{256*cb} nt")
            if i < 6: a(f"s_add_u32 s48, s48, {4*1280}")
            if i == 0: a("s_waitcnt lgkmcnt(0)")
            for jj in range(4):
                a(f"v_and_b32_dpp v{A0+4*(i&1)+jj}, v61, v{MK+jj} row_newbcast:{i} row_mask:0xf bank_mask:0xf")
            A = A0 + 4 * (i & 1)
            a("s_nop 1")
            for cb in range(5):
                acc = YA + 4 * cb
                cin = "0" if i == 0 else f"v[{acc}:{acc+3}]"
                a(f"s_waitcnt vmcnt({4-cb})")
                a(f"v_mfma_f32_16x16x32_bf16 v[{acc}:{acc+3}], v[{A}:{A+3}], v[{T+4*cb}:{T+3+4*cb}], {cin}")
            a("s_nop 7")

    def ffn(self):
        a = self.a
        self.c("---- FFN unit s2: 64 hidden columns for all four rows ----")
        X, M2, A0, DG, DU = 64, 44, 20, 28, 32
        self.srd(32, 76, 2211840); self.srd(36, 78, 2211840); self.srd(40, 80, 2211840)
        a("v_lshlrev_b32 v8, 2, v1\nv_add_u32 v8, v8, v2\nv_lshlrev_b32 v8, 1, v8")
        a("s_mov_b32 s48, 0\ns_mov_b32 s49, 1280\ns_mov_b32 s50, 2560\ns_mov_b32 s51, 3840")
        for b in range(4):
            for r in range(10):
                a(f"buffer_load_ushort v{X+10*b+r}, v8, s[8:11], s{48+b} offen offset:{128*r}")
        self.const64(60, 0xAAAAAAAAAAAAAAAA)
        a("v_mov_b32 v52, 0xffff\nv_mov_b32 v53, 0xffff0000\nv_cndmask_b32_e64 v52, v52, v53, s[60:61]")
        for jj in range(2):
            self.const64(60, 0x3333333333333333 << (2 * jj))
            a(f"v_cndmask_b32_e64 v{M2+jj}, 0, v52, s[60:61]")
        a(f"v_mul_u32_u24 v9, 640, v2\nv_lshlrev_b32 v52, 2, v1\nv_add_u32 v9, v9, v52")
        for b in range(4):
            a(f"s_waitcnt vmcnt({30-10*b})")
            self.layernorm(X + 10 * b, 10, 52, 52)
            for r in range(10):
                a(f"ds_write_b32 v9, v{X+10*b+r} offset:{XNL+2560*b+64*r}")
        a("v_lshrrev_b32 v9, 2, v1\nv_lshlrev_b32 v9, 2, v9\nv_add_u32 v9, v9, v2\nv_mul_u32_u24 v10, 640, v9")
        a(f"v_add_u32 v10, {XNL}, v10")
        a("v_mul_u32_u24 v11, 3456, v2\nv_lshlrev_b32 v12, 3, v1\nv_add_u32 v11, v11, v12")
        a("s_lshl_b32 s48, s2, 7")
        GUSTEP = 4 * 3456
        if self.ffn_exp == 2:
            a("v_lshlrev_b32 v11, 3, v0\ns_mul_i32 s48, s2, 81920")
            GUSTEP = 512
        G = self.ffn_gu
        def issue(u):
            u %= G
            a(f"buffer_load_dwordx2 v[{64+4*u}:{65+4*u}], v11, s[32:35], s48 offen nt")
            a(f"buffer_load_dwordx2 v[{66+4*u}:{67+4*u}], v11, s[36:39], s48 offen nt")
            a(f"s_add_u32 s48, s48, {GUSTEP}")
        a("s_waitcnt lgkmcnt(0)")
        for u in range(G): issue(u)
        for j in range(8): a(f"v_mov_b32 v{DG+j}, 0")
        def rnd(last):
            for i in range(4): a(f"ds_read_b128 v[{128+4*i}:{131+4*i}], v10 offset:{16*i}")
            a("v_add_u32 v10, 64, v10\ns_waitcnt lgkmcnt(0)")
            for u in range(16):
                A = A0 + 2 * (u & 1)
                r = 64 + 4 * (u % G)
                for jj in range(2): a(f"v_and_b32 v{A+jj}, v{128+u}, v{M2+jj}")
                a(f"s_waitcnt vmcnt({2*(G-1) if not last else 2*min(G-1, 15-u)})\ns_nop 0")
                if self.ffn_exp != 1:
                    a(f"v_mfma_f32_16x16x16_bf16 v[{DG}:{DG+3}], v[{A}:{A+1}], v[{r}:{r+1}], v[{DG}:{DG+3}]")
                    a(f"v_mfma_f32_16x16x16_bf16 v[{DU}:{DU+3}], v[{A}:{A+1}], v[{r+2}:{r+3}], v[{DU}:{DU+3}]")
                if not last or u + G < 16: issue(u)
        a("s_mov_b32 s49, 9")
        lp = self.label("gu")
        a(f"{lp}:")
        rnd(False)
        a(f"s_sub_u32 s49, s49, 1\ns_cmp_lg_u32 s49, 0\ns_cbranch_scc1 {lp}")
        rnd(True)
        DN = self.ffn_dn
        a("v_mul_u32_u24 v11, 1280, v2\nv_lshlrev_b32 v12, 3, v1\nv_add_u32 v11, v11, v12")
        a(f"s_mul_i32 s48, s2, {64*1280}")
        def issue2(u2):
            for cb in range(10):
                r = 64 + 2 * (10 * (u2 % DN) + cb)
                a(f"buffer_load_dwordx2 v[{r}:{r+1}], v11, s[40:43], s48 offen offset:{128*cb} nt")
            a(f"s_add_u32 s48, s48, {4*1280}")
        a("s_nop 7")
        for j in range(8): self.rbf16(DG + j)
        for uu in range(DN): issue2(uu)
        for j in range(4):
            a(f"v_max_f32 v{DG+j}, 0, v{DG+j}\nv_mul_f32 v{DG+j}, v{DG+j}, v{DU+j}\nv_cvt_pk_bf16_f32 v{DG+j}, v{DG+j}, v{DG+j}")
        a("v_lshlrev_b32 v12, 8, v2\nv_lshlrev_b32 v13, 2, v1\nv_add_u32 v12, v12, v13")
        for j in range(4): a(f"ds_write_b32 v12, v{DG+j} offset:{HL+64*j}")
        a(f"s_waitcnt lgkmcnt(0)\nv_lshlrev_b32 v12, 6, v9\nv_add_u32 v12, {HL}, v12")
        for i in range(4): a(f"ds_read_b128 v[{208+4*i}:{211+4*i}], v12 offset:{16*i}")
        for j in range(40): a(f"v_mov_b32 v{144+j}, 0")
        a("s_waitcnt lgkmcnt(0)")
        for u2 in range(16):
            A = A0 + 2 * (u2 & 1)
            for jj in range(2): a(f"v_and_b32 v{A+jj}, v{208+u2}, v{M2+jj}")
            for cb in range(10):
                r = 64 + 2 * (10 * (u2 % DN) + cb)
                left = (9 - cb) + 10 * (min(u2 + DN - 1, 15) - u2)
                a(f"s_waitcnt vmcnt({left})")
                if cb == 0: a("s_nop 0")
                a(f"v_mfma_f32_16x16x16_bf16 v[{144+4*cb}:{147+4*cb}], v[{A}:{A+1}], v[{r}:{r+1}], v[{144+4*cb}:{147+4*cb}]")
            if u2 + DN < 16: issue2(u2)
        a("v_mul_u32_u24 v12, 2560, v2\nv_lshlrev_b32 v13, 4, v1\nv_add_u32 v12, v12, v13")
        a(f"s_mul_i32 s48, s2, 10240\ns_add_u32 s48, s48, {Z_OFF}\ns_nop 7")
        for cb in range(10):
            a(f"buffer_store_dwordx4 v[{144+4*cb}:{147+4*cb}], v12, s[20:23], s48 offen offset:{256*cb} sc1")
        a("s_waitcnt vmcnt(0)\nv_mov_b32 v52, 1\ns_mov_b64 exec, 1")
        a("buffer_atomic_add v52, off, s[24:27], 0 offset:128 sc1")
        a("s_mov_b64 exec, -1")

    def build(self):
        a = self.a
        a("s_cmp_ge_u32 s2, 256\ns_cbranch_scc1 L_exit")
        if self.stamps: a("s_memrealtime s[96:97]")
        a("s_load_dwordx16 s[64:79], s[0:1], 0\ns_load_dwordx8 s[80:87], s[0:1], 64")
        a("v_lshrrev_b32 v1, 6, v0\nv_and_b32 v0, 63, v0\nv_readfirstlane_b32 s3, v1")
        if self.stamps:
            for k in range(8): a(f"s_mov_b32 s{88+k}, 0")
        a("s_and_b32 s40, s2, 7\ns_lshr_b32 s41, s2, 3")
        if self.cpf:
            a(f"s_cmp_eq_u32 s3, {self.cpw}\ns_cbranch_scc0 L_nocpf\ns_getpc_b64 s[60:61]\nL_cpfpc:")
            a(f"s_sub_u32 s60, s60, L_cpfpc-{NAME}\ns_subb_u32 s61, s61, 0\ns_lshl_b32 s62, s41, 10")
            a(f"v_lshl_add_u32 v248, v0, 4, s62\nv_min_u32 v248, L_exit-{NAME}-12, v248")
            a("global_load_dwordx4 v[252:255], v248, s[60:61]\nL_nocpf:")
        if self.mapping == "m4":
            a("s_lshr_b32 s43, s41, 1\ns_and_b32 s43, s43, 3\ns_lshl_b32 s45, s43, 3\ns_add_u32 s45, s45, s40")
            a("s_lshr_b32 s44, s41, 3\ns_and_b32 s46, s41, 1")
        elif self.mapping == "m6":
            a("s_lshr_b32 s43, s41, 1\ns_and_b32 s43, s43, 3\ns_add_u32 s45, s40, s43\ns_and_b32 s45, s45, 7\ns_lshl_b32 s43, s43, 3\ns_add_u32 s45, s45, s43")
            a("s_lshr_b32 s44, s41, 3\ns_and_b32 s46, s41, 1")
        elif self.mapping == "m7":
            a("s_lshr_b32 s43, s41, 1\ns_and_b32 s43, s43, 3\ns_lshl_b32 s45, s43, 3\ns_xor_b32 s43, s40, 1\ns_add_u32 s45, s45, s43")
            a("s_lshr_b32 s44, s41, 3\ns_and_b32 s46, s41, 1")
        elif self.mapping == "m8":
            a("s_lshr_b32 s43, s41, 1\ns_and_b32 s43, s43, 3\ns_lshl_b32 s45, s40, 2\ns_add_u32 s45, s45, s43")
            a("s_lshr_b32 s44, s41, 3\ns_and_b32 s46, s41, 1")
        elif self.mapping == "m3":
            a("s_and_b32 s43, s41, 3\ns_lshl_b32 s45, s43, 3\ns_add_u32 s45, s45, s40")
            a("s_lshr_b32 s44, s41, 2\ns_and_b32 s44, s44, 3\ns_lshr_b32 s46, s41, 4")
        elif self.mapping == "n":
            a("s_and_b32 s46, s2, 1\ns_lshr_b32 s45, s2, 1\ns_and_b32 s45, s45, 31\ns_lshr_b32 s44, s2, 6")
        a("s_lshl_b32 s47, s44, 5\ns_add_u32 s47, s47, s45\ns_lshl_b32 s47, s47, 1\ns_add_u32 s47, s47, s46")
        if self.hfirst:
            a("s_cmp_lt_u32 s3, 4\ns_cbranch_scc1 L_stream\nL_helper:")
            self.helper()
            a("L_stream:")
            self.stream()
            a("L_exit:\ns_endpgm")
            return "\n".join(self.L)
        a("s_cmp_ge_u32 s3, 4\ns_cbranch_scc1 L_helper")
        if self.Rsplit:
            if self.splitx: a("s_and_b32 s18, s2, 1\ns_cmp_eq_u32 s18, 0\ns_cbranch_scc0 L_streamB")
            else: a("s_cmp_eq_u32 s46, 0\ns_cbranch_scc0 L_streamB")
            self.R = self.Rsplit[0]; self.stream()
            a("L_streamB:")
            self.R = self.Rsplit[1]; self.stream()
        else:
            self.stream()
        a("L_helper:")
        self.helper()
        a("L_exit:\ns_endpgm")
        return "\n".join(self.L)

HEADER = open("parallel_sum__gqa_block_cached__glu_gated_reglu__decode.s.ref").read().split("; Override launch")[0]

def full_source(g, nfv=256):
    body = g.build()
    s = HEADER
    s += "; Override launch geometry by editing the next line (default: block=256,\n"
    s += f"; @launch grid=(256,1,1) block=(512,1,1) lds={LDS_SIZE}\n"
    s += f""".amdgcn_target "amdgcn-amd-amdhsa--gfx950"
.text
.globl {NAME}
.p2align 8
.type {NAME},@function
{NAME}:
{body}
.section .rodata,"a"
.p2align 6
.amdhsa_kernel {NAME}
  .amdhsa_next_free_vgpr {nfv}
  .amdhsa_next_free_sgpr 102
  .amdhsa_accum_offset 256
  .amdhsa_group_segment_fixed_size 0
  .amdhsa_kernarg_size 96
  .amdhsa_user_sgpr_count 2
  .amdhsa_user_sgpr_kernarg_segment_ptr 1
  .amdhsa_system_sgpr_workgroup_id_x 1
.end_amdhsa_kernel
"""
    return s

if __name__ == "__main__":
    import argparse
    p = argparse.ArgumentParser()
    p.add_argument("-R", type=int, default=5); p.add_argument("--PG", type=int, default=1)
    p.add_argument("--stamps", action="store_true"); p.add_argument("--map", default="m4")
    p.add_argument("-o", default="/dev/stdout")
    x = p.parse_args()
    g = Gen(R=x.R, PG=x.PG, stamps=x.stamps, mapping=x.map)
    open(x.o, "w").write(full_source(g))
```

```python
import struct, sys
NAME = "parallel_sum__gqa_block_cached__glu_gated_reglu__decode_kernel"

def f2h(x):
    return "0x%08x" % struct.unpack("<I", struct.pack("<f", x))[0]

LOG2E = f2h(1.4426950408889634)
SCALE = f2h(128 ** -0.5)
INV640 = f2h(1.0 / 640.0)
EPS = f2h(1e-5)

QP, MW, FW, OP, YP, SC, XNL, HL, LDS_SIZE = 0, 2048, 2064, 4096, 6144, 16384, 32768, 43008, 45056
Y_OFF, ML_OFF, Z_OFF, PS_OFF = 0x100000, 0x1A0000, 0x1B0000, 0x280000
GL_OFF = 0x40000
P_OFF = Z_OFF
PRG, MODE = 3072, 2304
F7 = 2096
SPIN_MAX = 200000

class Gen:
    def __init__(self, ackb1=False, owarm=0, hfirst=False, cpf=0, cpw=0, R=5, PG=1, stamps=False, mapping="m4", sleep=True, b0=True, rot=True, pre=0, wo_win=2, ffn_gu=8, ffn_dn=2, skip_wo=False, skip_ffn=False, wo_flags='nt', wo_rot=False, wq_flags='', early=False, ffn_exp=0, Rsplit=None, ctl=False, Rlo=5, Rhi=8, csh=11, cbias=1024, pstep=4, cthr=896, cloc=True, mld='nt', mst='', f2=False, dbgst=False, kst=None, vst=None, splitx=False, gx=0, gsh=0, xclr=0, xzc=0, clw='w4', psp=0, flag='at', qo=0, b0at=39, fe=0, yp=1, schk=0, ofl='', tl=0, vwarm=0, spf=0, spst=128, spx=1, gM=1, gbias=0, f1win=0, sigk=0, xsig=0, xchk=0, pfl='sc1', mlfl='sc1', psfl='sc1'):
        self.cpf, self.cpw, self.hfirst, self.owarm, self.ackb1 = cpf, cpw, hfirst, owarm, ackb1
        self.xclr, self.xzc = xclr, xzc
        self.clw, self.psp, self.flag = clw, psp, flag
        self.qo, self.b0at, self.fe, self.yp = qo, b0at, fe, yp
        self.schk, self.xsig, self.sigk, self.f1win = schk, xsig, sigk, f1win
        self.gM, self.gbias, self.ofl = gM, gbias, ofl
        self.spf, self.spst, self.spx, self.vwarm, self.tl = spf, spst, spx, vwarm, tl
        self.xchk, self.pfl, self.mlfl, self.psfl = xchk, pfl, mlfl, psfl
        self.gx, self.gsh = gx, gsh
        self.splitx = splitx
        self.kst, self.vst = kst, vst
        self.f2 = f2
        self.dbgst = dbgst
        if dbgst: stamps = True
        self.cloc, self.mld, self.mst = cloc, mld, mst
        self.Rsplit = Rsplit
        self.ctl, self.Rlo, self.Rhi, self.csh, self.cbias, self.pstep, self.cthr = ctl, Rlo, Rhi, csh, cbias, pstep, cthr
        self.R, self.PG, self.stamps, self.mapping, self.sleep = R, PG, stamps, mapping, sleep
        self.skip_wo, self.skip_ffn, self.wo_flags, self.wo_rot = skip_wo, skip_ffn, wo_flags, wo_rot
        self.wq_flags, self.early, self.ffn_exp = wq_flags, early, ffn_exp
        self.b0, self.rot, self.pre, self.wo_win, self.ffn_gu, self.ffn_dn = b0, rot, pre, wo_win, ffn_gu, ffn_dn
        self.L = []
        self.uid = 0
        self.block = 512
        self.lds = LDS_SIZE
    def a(self, s):
        for line in s.split("\n"):
            line = line.strip()
            if line: self.L.append("    " + line if not line.endswith(":") else line)
    def c(self, s):
        self.L.append("    ; " + s)
    def label(self, p):
        self.uid += 1
        return f"L_{p}_{self.uid}"
    def stamp(self, k):
        if self.stamps:
            self.a(f"s_memrealtime s[98:99]\ns_waitcnt lgkmcnt(0)\ns_mov_b32 s{88+k}, s98")
    def stamp_flush(self, role="s"):
        if not self.stamps: return
        a = self.a
        if self.dbgst:
            skip = self.label("nodbg")
            a(f"s_and_b32 s56, s3, 3\ns_cmp_eq_u32 s56, 0\ns_cbranch_scc0 {skip}")
            if role == "s": a(f"s_lshr_b32 s56, s2, 3\ns_and_b32 s56, s56, 3\ns_cmp_eq_u32 s56, 0\ns_cbranch_scc0 {skip}")
            else: a(f"s_cmp_lt_u32 s2, 80\ns_cbranch_scc0 {skip}")
            a("s_mov_b32 s56, s84\ns_mov_b32 s57, s85\ns_mov_b32 s58, 256\ns_mov_b32 s59, 0x20000")
            a("s_mov_b64 exec, 1")
            def at(op, word, sreg, inv=False, low=False):
                a(f"v_mov_b32 v251, s{sreg}")
                if inv: a("v_not_b32 v251, v251")
                if low: a("v_and_b32 v251, 0xfffff, v251")
                a(f"buffer_atomic_{op} v251, off, s[56:59], 0 offset:{4*word} sc1\ns_nop 1")
            at("umax", 1, 96, inv=True); at("umax", 2, 96)
            if role == "s":
                at("umax", 3, 89, inv=True); at("umax", 4, 89); at("umax", 5, 90, inv=True); at("umax", 6, 90)
                at("umax", 7, 91, inv=True); at("umax", 8, 91); at("add", 11, 91, low=True); at("add", 12, 90, low=True)
            else:
                at("umax", 9, 93); at("umax", 10, 92); at("umax", 13, 88, inv=True); at("umax", 14, 88)
            a("s_mov_b64 exec, -1")
            a(f"{skip}:")
            return
        a("s_mov_b32 s56, s86\ns_mov_b32 s57, s87\ns_mov_b32 s58, 0x100000\ns_mov_b32 s59, 0x20000")
        a("s_lshl_b32 s60, s2, 3\ns_add_u32 s60, s60, s3\ns_lshl_b32 s60, s60, 6")
        a("s_mov_b64 exec, 1")
        a("v_mov_b32 v250, 0\ns_mov_b32 s95, s96")
        for k in range(8):
            a(f"v_mov_b32 v251, s{88+k}")
            a(f"buffer_store_dword v251, v250, s[56:59], s60 offen offset:{4*k} {'sc1' if self.ofl or not self.ctl else ''}")
            a("s_nop 1")
        a("s_mov_b64 exec, -1")

    def srd(self, base, ptr, nrec):
        self.a(f"s_mov_b32 s{base}, s{ptr}\ns_mov_b32 s{base+1}, s{ptr+1}\ns_mov_b32 s{base+2}, {hex(nrec)}\ns_mov_b32 s{base+3}, 0x20000")
    def const64(self, sreg, val):
        self.a(f"s_mov_b32 s{sreg}, {hex(val & 0xffffffff)}\ns_mov_b32 s{sreg+1}, {hex(val >> 32)}")
    def masks16x32(self, m0, tmp):
        a = self.a
        self.const64(60, 0xAAAAAAAAAAAAAAAA)
        a(f"v_mov_b32 v{tmp}, 0xffff\nv_mov_b32 v{tmp+1}, 0xffff0000")
        a(f"v_cndmask_b32_e64 v{tmp}, v{tmp}, v{tmp+1}, s[60:61]")
        for jj in range(4):
            self.const64(60, 0x0303030303030303 << (2 * jj))
            a(f"v_cndmask_b32_e64 v{m0+jj}, 0, v{tmp}, s[60:61]")
    def wave_reduce(self, v, op, sdst):
        a = self.a
        for r in (8, 4, 2, 1):
            a(f"{op}_dpp v{v}, v{v}, v{v} row_ror:{r} row_mask:0xf bank_mask:0xf\ns_nop 1")
        a(f"{op}_dpp v{v}, v{v}, v{v} row_bcast:15 row_mask:0xa bank_mask:0xf\ns_nop 1")
        a(f"{op}_dpp v{v}, v{v}, v{v} row_bcast:31 row_mask:0xc bank_mask:0xf\ns_nop 1")
        a(f"v_readlane_b32 s{sdst}, v{v}, 63\ns_nop 1")
    def rbf16(self, v):
        self.a(f"v_cvt_pk_bf16_f32 v{v}, v{v}, v{v}\nv_and_b32 v{v}, 0xffff0000, v{v}")
    def layernorm(self, xr, n_out, t0, s0):
        a = self.a
        for r in range(10): a(f"v_lshlrev_b32 v{xr+r}, 16, v{xr+r}")
        a(f"v_add_f32 v{t0}, v{xr}, v{xr+1}\nv_add_f32 v{t0+1}, v{xr+2}, v{xr+3}")
        for r in range(4, 10, 2):
            a(f"v_add_f32 v{t0}, v{t0}, v{xr+r}\nv_add_f32 v{t0+1}, v{t0+1}, v{xr+r+1}")
        a(f"v_add_f32 v{t0}, v{t0}, v{t0+1}\ns_nop 1")
        self.wave_reduce(t0, "v_add_f32", s0)
        a(f"v_mov_b32 v{t0}, {INV640}\nv_mul_f32 v{t0}, s{s0}, v{t0}")
        a(f"v_sub_f32 v{t0+1}, v{xr}, v{t0}\nv_mul_f32 v{t0+2}, v{t0+1}, v{t0+1}")
        for r in range(1, 10):
            a(f"v_sub_f32 v{t0+1}, v{xr+r}, v{t0}\nv_fmac_f32 v{t0+2}, v{t0+1}, v{t0+1}")
        a("s_nop 1")
        self.wave_reduce(t0 + 2, "v_add_f32", s0 + 1)
        a(f"v_mov_b32 v{t0+2}, {INV640}\nv_mul_f32 v{t0+2}, s{s0+1}, v{t0+2}")
        self.rbf16(t0); self.rbf16(t0 + 2)
        a(f"v_add_f32 v{t0+2}, {EPS}, v{t0+2}")
        self.rbf16(t0 + 2)
        a(f"v_sqrt_f32 v{t0+2}, v{t0+2}\ns_nop 0")
        self.rbf16(t0 + 2)
        a(f"v_rcp_f32 v{t0+2}, v{t0+2}\ns_nop 0")
        for r in range(n_out):
            a(f"v_sub_f32 v{xr+r}, v{xr+r}, v{t0}")
            self.rbf16(xr + r)
            a(f"v_mul_f32 v{xr+r}, v{xr+r}, v{t0+2}")
            a(f"v_cvt_pk_bf16_f32 v{xr+r}, v{xr+r}, v{xr+r}")
    def spin_head(self, name, scnt):
        l = self.label(name); d = self.label(name + "_done")
        self.a(f"s_mov_b32 s{scnt}, {SPIN_MAX}\n{l}:")
        return l, d
    def reduce_hq(self, v0, n, t):
        a = self.a
        a("s_nop 1")
        for i in range(n): a(f"v_add_f32_dpp v{v0+i}, v{v0+i}, v{v0+i} row_ror:8 row_mask:0xf bank_mask:0xf")
        for sw in ("v_permlane16_swap_b32", "v_permlane32_swap_b32"):
            for i in range(n): a(f"v_mov_b32 v{t+i}, v{v0+i}")
            a("s_nop 1")
            for i in range(n): a(f"{sw} v{t+i}, v{v0+i}")
            a("s_nop 1")
            for i in range(n): a(f"v_add_f32 v{v0+i}, v{v0+i}, v{t+i}")

    def stream(self):
        a, R, PG = self.a, self.R, self.PG
        vK, vV, vSW, vSR, vMax, vS, vT0, vT1, vP, vSn, vE = 1, 2, 3, 4, 5, 6, 7, 8, 9, 10, 11
        MK, AQ, D, ACC, PA = 12, 16, 32, 40, 44
        RING = 64
        TQ = 192
        self.c("==== streaming waves (0..3): K then V of this workgroup's 4096 keys ====")
        a(f"v_and_b32 v7, 15, v0\nv_lshrrev_b32 v8, 4, v0")
        a(f"v_lshrrev_b32 v9, 2, v7\nv_lshlrev_b32 v{vK}, 8, v9")
        a(f"v_lshlrev_b32 v10, 6, v8\nv_or_b32 v{vK}, v{vK}, v10")
        a(f"v_and_b32 v10, 3, v7\nv_lshlrev_b32 v10, 4, v10\nv_or_b32 v{vK}, v{vK}, v10")
        a(f"v_lshlrev_b32 v{vV}, 4, v0")
        a("s_lshl_b32 s16, s47, 20\ns_lshl_b32 s17, s3, 12\ns_add_u32 s16, s16, s17\ns_mov_b32 s17, s16")
        a("s_waitcnt lgkmcnt(0)")
        self.stamp(6)
        self.srd(8, 66, 0x10000000)
        self.srd(12, 68, 0x10000000)
        if self.ctl: a("s_add_u32 s14, s47, 1\ns_lshl_b32 s14, s14, 20")
        if self.clw == 's':
            self.srd(24, 86, 0x40000000)
            l3, ld = self.label("clr3"), self.label("clrd")
            a("v_mov_b32 v56, -1\nv_mov_b32 v57, -1\nv_mov_b32 v58, -1\nv_mov_b32 v59, -1\nv_lshlrev_b32 v60, 4, v0")
            a(f"s_cmp_eq_u32 s3, 3\ns_cbranch_scc1 {l3}")
            a(f"s_mul_i32 s48, s47, 2560\ns_add_u32 s48, s48, {Y_OFF}\ns_lshl_b32 s49, s3, 10\ns_add_u32 s48, s48, s49")
            a("s_cmp_eq_u32 s3, 2\ns_cselect_b32 exec_hi, 0, -1")
            a("buffer_store_dwordx4 v[56:59], v60, s[24:27], s48 offen sc1")
            a(f"s_mov_b64 exec, -1\ns_branch {ld}")
            a(f"{l3}:")
            a(f"s_lshl_b32 s48, s47, 7\ns_add_u32 s48, s48, {ML_OFF}\ns_mov_b64 exec, 1")
            a("buffer_store_dwordx2 v[56:57], v60, s[24:27], s48 offen sc1")
            if self.ctl:
                self.slot_addr(49, 50)
                a(f"v_mov_b32 v58, 0\nbuffer_store_dword v58, v60, s[24:27], s49 offen {'' if self.psp == 1 else 'sc1'}")
                if self.gx:
                    nl = self.label("nolead")
                    a(f"s_cmp_ge_u32 s2, 248\ns_cbranch_scc0 {nl}")
                    a(f"buffer_store_dword v58, v60, s[24:27], s50 offen offset:128 {'' if self.psp == 1 else 'sc1'}")
                    a(f"s_and_b32 s49, s2, 7\ns_lshl_b32 s49, s49, {8 if self.gx == 3 else 2}\ns_add_u32 s49, s49, {GL_OFF}")
                    a("buffer_store_dword v58, v60, s[24:27], s49 offen sc1")
                    a(f"{nl}:")
            a("s_mov_b64 exec, -1")
            a(f"{ld}:")
            if not self.spf and self.pre == 0 and self.b0 and self.b0at == 39: a("s_waitcnt vmcnt(0)")
        if self.spf:
            for i in range(self.spf):
                off = i * self.spst
                off = (off >> 12) * 0x4000 + (off & 4095)
                if i and i % (15 if self.spx == 1 else 7) == 0: a("s_waitcnt lgkmcnt(0)")
                if self.spx == 1: a(f"s_load_dword s100, s[66:67], s16 offset:{hex(off)}")
                else: a(f"s_load_dwordx2 s[100:101], s[66:67], s16 offset:{hex(off)}")
            if self.clw == 's' and self.pre == 0 and self.b0 and self.b0at == 39: a("s_waitcnt vmcnt(0)")
        st = {"issued": 0}
        def slot(n):
            if n < 16 * PG: return RING + 4 * n
            return RING + 4 * (n % 16)
        def issue(n):
            t = n & 3
            if n < 256:
                a(f"buffer_load_dwordx4 v[{slot(n)}:{slot(n)+3}], v{vK}, s[8:11], s16 offen offset:{t*1024} nt")
                if t == 3: a("s_add_u32 s16, s16, 0x4000")
            else:
                a(f"buffer_load_dwordx4 v[{slot(n)}:{slot(n)+3}], v{vV}, s[12:15], s17 offen offset:{t*1024} nt")
                if t == 3: a("s_add_u32 s17, s17, 0x4000")
        for n in range(16 * PG):
            if self.b0 and n == self.pre:
                if self.clw == 's' and self.pre and self.b0at == 39 and not self.ackb1: a(f"s_waitcnt vmcnt({self.pre})")
                a("s_barrier")
            issue(n)
        self.stamp(0)
        self.masks16x32(MK, 7)
        self.const64(48, 0x2222222222222222); self.const64(50, 0x4444444444444444); self.const64(52, 0x8888888888888888)
        a("v_and_b32 v7, 15, v0\nv_lshrrev_b32 v8, 4, v0\nv_lshrrev_b32 v9, 2, v7\nv_and_b32 v10, 3, v7")
        a(f"v_lshlrev_b32 v9, 4, v9\nv_lshlrev_b32 v{vSW}, 2, v8\nv_add_u32 v{vSW}, v{vSW}, v9\nv_add_u32 v{vSW}, v{vSW}, v10")
        a(f"v_lshlrev_b32 v{vSW}, 2, v{vSW}")
        a(f"s_lshl_b32 s18, s3, 12\ns_add_u32 s18, s18, {SC}")
        a(f"v_add_u32 v{vSW}, s18, v{vSW}")
        a(f"v_lshlrev_b32 v{vSR}, 2, v0\nv_add_u32 v{vSR}, s18, v{vSR}")
        a(f"v_mov_b32 v{vMax}, 0xff800000")
        a(f"v_lshlrev_b32 v9, 2, v8\nv_add_u32 v9, v9, v10\nv_lshlrev_b32 v9, 5, v9")
        vProg, vPA, vMode, vMA = 52, 53, 54, 55
        if self.ctl:
            a(f"s_lshl_b32 s21, s3, 8\ns_add_u32 s21, s21, {PRG}\nv_lshlrev_b32 v{vPA}, 2, v0\nv_add_u32 v{vPA}, s21, v{vPA}")
            a(f"s_lshl_b32 s21, s3, 2\ns_add_u32 s21, s21, {MODE}\nv_mov_b32 v{vMA}, s21")
            a(f"v_mov_b32 v{vProg}, 0\nv_mov_b32 v{vMode}, {R}")
            a(f"ds_write_b32 v{vPA}, v{vProg}\nds_write_b32 v{vMA}, v{vMode}\ns_waitcnt lgkmcnt(0)")
        if self.clw == 's' and (not self.b0 or self.b0at != 39 or self.ackb1): a(f"s_waitcnt vmcnt({16*PG})")
        a("s_barrier")
        for hw in range(4):
            a(f"ds_read_b128 v[{TQ+8*hw}:{TQ+8*hw+3}], v9 offset:{QP+512*hw}")
            a(f"ds_read_b128 v[{TQ+8*hw+4}:{TQ+8*hw+7}], v9 offset:{QP+512*hw+16}")
        a("s_waitcnt lgkmcnt(0)")
        for j in range(8): a(f"v_add_f32 v{TQ+j}, v{TQ+j}, v{TQ+8+j}\nv_add_f32 v{TQ+16+j}, v{TQ+16+j}, v{TQ+24+j}")
        for j in range(8): a(f"v_add_f32 v{TQ+j}, v{TQ+j}, v{TQ+16+j}")
        for jj in range(4): a(f"v_cvt_pk_bf16_f32 v{TQ+8+jj}, v{TQ+2*jj}, v{TQ+2*jj+1}")
        for t in range(4):
            self.const64(60, 0x000F000F000F000F << (4 * t))
            for jj in range(4): a(f"v_cndmask_b32_e64 v{AQ+4*t+jj}, 0, v{TQ+8+jj}, s[60:61]")
        a("s_nop 1")
        self.stamp(1)

        issued = [16 * PG]
        def kgroup(G, mode):
            for s in range(16):
                n = 16 * G + s
                tau, t = s >> 2, s & 3
                a(f"s_waitcnt vmcnt({issued[0]-1-n})")
                cin = "0" if t == 0 else f"v[{D}:{D+3}]"
                mf = f"v_mfma_f32_16x16x32_bf16 v[{D}:{D+3}], v[{AQ+4*t}:{AQ+4*t+3}], v[{slot(n)}:{slot(n)+3}], {cin}"
                nxt = None
                if n < 16 * PG:
                    if n < R: nxt = 16 * PG + n
                else:
                    nxt = n + R
                early = self.early and nxt is not None and slot(nxt) != slot(n)
                if not early: a(mf)
                if nxt is not None:
                    assert nxt == issued[0], (n, nxt, issued)
                    issue(nxt); issued[0] += 1
                if early: a(mf)
                if t == 3:
                    a("s_nop 7")
                    a(f"v_mov_b32_dpp v{vT0}, v{D} quad_perm:[0,0,0,0] row_mask:0xf bank_mask:0xf")
                    a(f"v_mov_b32_dpp v{vT1}, v{D+2} quad_perm:[2,2,2,2] row_mask:0xf bank_mask:0xf")
                    a("s_nop 0")
                    a(f"v_add_f32_dpp v{vT0}, v{D+1}, v{vT0} quad_perm:[1,1,1,1] row_mask:0xf bank_mask:0xf")
                    a(f"v_add_f32_dpp v{vT1}, v{D+3}, v{vT1} quad_perm:[3,3,3,3] row_mask:0xf bank_mask:0xf")
                    if tau == 0:
                        a(f"v_add_f32 v{vS}, v{vT0}, v{vT1}")
                    else:
                        a(f"v_add_f32 v{vT0}, v{vT0}, v{vT1}")
                        a(f"v_cndmask_b32_e64 v{vS}, v{vS}, v{vT0}, s[{46+2*tau}:{47+2*tau}]")
            self.rbf16(vS)
            a(f"v_mul_f32 v{vS}, {SCALE}, v{vS}")
            self.rbf16(vS)
            a(f"v_max_f32 v{vMax}, v{vMax}, v{vS}")
            a(f"ds_write_b32 v{vSW}, v{vS}")
            a(f"v_add_u32 v{vSW}, 0x100, v{vSW}")
        for G in range(PG): kgroup(G, "first")
        a(f"s_mov_b32 s19, {15-PG}")
        lk = self.label("K")
        a(f"{lk}:")
        save = issued[0]
        kgroup(PG, "steady")
        if self.kst and self.stamps:
            a("s_memrealtime s[98:99]\ns_waitcnt lgkmcnt(0)")
            for slot_, G_ in zip((4, 5), self.kst):
                a(f"s_cmp_eq_u32 s19, {15-G_}\ns_cselect_b32 s{88+slot_}, s98, s{88+slot_}")
        a(f"s_sub_u32 s19, s19, 1\ns_cmp_lg_u32 s19, 0\ns_cbranch_scc1 {lk}")
        issued[0] = save + 16 * (15 - PG)
        kgroup(15, "last")
        a("s_nop 1")
        self.wave_reduce(vMax, "v_max_f32", 20)
        a(f"v_mov_b32 v{vMax}, s20")
        a(f"s_lshl_b32 s18, s3, 2\ns_add_u32 s18, s18, {MW}\nv_mov_b32 v7, s18")
        a(f"ds_write_b32 v7, v{vMax}")
        a(f"ds_read_b32 v{vSn}, v{vSR}\nv_add_u32 v{vSR}, 0x100, v{vSR}")
        for j in range(4): a(f"v_mov_b32 v{ACC+j}, 0")
        self.stamp(2)
        def abuild(s):
            tau, t = s >> 2, s & 3
            for jj in range(4):
                a(f"v_and_b32_dpp v{PA+4*(s&1)+jj}, v{vP}, v{MK+jj} row_newbcast:{4*t+tau} row_mask:0xf bank_mask:0xf")
        def vgroup(G, last):
            a("s_waitcnt lgkmcnt(0)")
            a(f"v_sub_f32 v{vE}, v{vSn}, v{vMax}\nv_mul_f32 v{vE}, {LOG2E}, v{vE}\nv_exp_f32 v{vE}, v{vE}")
            if not last:
                a(f"ds_read_b32 v{vSn}, v{vSR}\nv_add_u32 v{vSR}, 0x100, v{vSR}")
            else:
                a("s_nop 0")
            a(f"v_cvt_pk_bf16_f32 v{vP}, v{vE}, v{vE}\ns_nop 1")
            abuild(0)
            for s in range(16):
                n = 256 + 16 * G + s
                A = PA + 4 * (s & 1)
                mf = f"v_mfma_f32_16x16x32_bf16 v[{ACC}:{ACC+3}], v[{A}:{A+3}], v[{slot(n)}:{slot(n)+3}], v[{ACC}:{ACC+3}]"
                nxt = n + R
                early = self.early and nxt < 512
                a(f"s_waitcnt vmcnt({issued[0]-1-n})")
                if not early: a("s_nop 0\n" + mf)
                if nxt < 512:
                    assert nxt == issued[0]
                    issue(nxt); issued[0] += 1
                if early: a(mf)
                if s < 15: abuild(s + 1)
        if not self.ctl:
            a("s_mov_b32 s19, 15")
            lv = self.label("V")
            a(f"{lv}:")
            save = issued[0]
            vgroup(0, False)
            a(f"s_sub_u32 s19, s19, 1\ns_cmp_lg_u32 s19, 0\ns_cbranch_scc1 {lv}")
            issued[0] = save + 16 * 15
            vgroup(15, True)
        else:
            def vissue(n):
                t = n & 3
                a(f"buffer_load_dwordx4 v[{RING+4*(n%16)}:{RING+4*(n%16)+3}], v{vV}, s[12:15], s17 offen offset:{t*1024} nt")
                if t == 3: a("s_add_u32 s17, s17, 0x4000")
            def vhead():
                a("s_waitcnt lgkmcnt(0)")
                a(f"v_sub_f32 v{vE}, v{vSn}, v{vMax}\nv_mul_f32 v{vE}, {LOG2E}, v{vE}\nv_exp_f32 v{vE}, v{vE}")
                a(f"ds_read_b32 v{vSn}, v{vSR}\nv_add_u32 v{vSR}, 0x100, v{vSR}")
                a(f"v_cvt_pk_bf16_f32 v{vP}, v{vE}, v{vE}\ns_nop 1")
                abuild(0)
            def vstep(s, Rw, Ri):
                A = PA + 4 * (s & 1)
                a(f"s_waitcnt vmcnt({Rw-1})\ns_nop 0")
                a(f"v_mfma_f32_16x16x32_bf16 v[{ACC}:{ACC+3}], v[{A}:{A+3}], v[{RING+4*s}:{RING+4*s+3}], v[{ACC}:{ACC+3}]")
                if Ri is not None: vissue(s + Ri)
                if s < 15: abuild(s + 1)
                if (s + 1) % self.pstep == 0:
                    a(f"v_add_u32 v{vProg}, {self.pstep}, v{vProg}\nds_write_b32 v{vPA}, v{vProg}")
                if s == 13: a(f"ds_read_b32 v{vMode}, v{vMA}")
            uid = self.label("vc")
            if self.tl:
                a("v_and_b32 v7, 15, v0\nv_lshrrev_b32 v8, 4, v0\nv_and_b32 v8, 1, v8\nv_lshlrev_b32 v7, 5, v7\nv_lshlrev_b32 v8, 4, v8\nv_add_u32 v7, v7, v8")
                a(f"s_lshl_b32 s18, s3, 9\ns_add_u32 s18, s18, {OP}\nv_add_u32 v7, s18, v7")
            modes = list(range(self.Rlo, self.Rhi + 1))
            assert R in modes
            a(f"s_mov_b32 s19, 16\ns_branch {uid}_top{R}")
            for m in modes:
                a(f"{uid}_top{m}:")
                vhead(); vstep(0, m, m)
                a(f"{uid}_s1_{m}:")
                for s in range(1, 16): vstep(s, m, m)
                a(f"s_sub_u32 s19, s19, 1\ns_cmp_eq_u32 s19, 0\ns_cbranch_scc1 {uid}_done")
                a(f"s_waitcnt lgkmcnt(0)\nv_readfirstlane_b32 s21, v{vMode}")
                if m < self.Rhi: a(f"s_cmp_gt_u32 s21, {m}\ns_cbranch_scc1 {uid}_up{m}")
                if m > self.Rlo: a(f"s_cmp_lt_u32 s21, {m}\ns_cbranch_scc1 {uid}_dn{m}")
                a(f"s_branch {uid}_top{m}")
                if m < self.Rhi:
                    a(f"{uid}_up{m}:")
                    vissue(m)
                    a(f"s_branch {uid}_top{m+1}")
                if m > self.Rlo:
                    a(f"{uid}_dn{m}:")
                    vhead(); vstep(0, m, None)
                    a(f"s_branch {uid}_s1_{m-1}")
            a(f"{uid}_done:")
            if not self.tl: a("s_waitcnt vmcnt(0)")
        if self.tl and self.ctl:
            a(f"s_nop 7\nds_write_b128 v7, v[{ACC}:{ACC+3}]\ns_waitcnt lgkmcnt(0)")
        else:
            a("v_and_b32 v7, 15, v0\nv_lshrrev_b32 v8, 4, v0\nv_and_b32 v8, 1, v8\nv_lshlrev_b32 v7, 5, v7\nv_lshlrev_b32 v8, 4, v8\nv_add_u32 v7, v7, v8")
            a(f"s_lshl_b32 s18, s3, 9\ns_add_u32 s18, s18, {OP}\nv_add_u32 v7, s18, v7")
            a(f"s_nop 1\nds_write_b128 v7, v[{ACC}:{ACC+3}]\ns_waitcnt lgkmcnt(0)")
        self.stamp(3)
        a("s_barrier")
        self.stamp_flush()
        a("s_endpgm")

    def helper(self):
        a = self.a
        MK, A0, D, YA, W = 4, 20, 28, 32, 64
        self.c("==== helper waves (4..7): q projection, FFN, softmax denominators, output projection, final sum ====")
        a("s_sub_u32 s5, s3, 4")
        HW = 5
        self.HW = HW
        a("v_and_b32 v1, 15, v0\nv_lshrrev_b32 v2, 4, v0")
        a(f"s_mul_i32 s48, s{HW}, 40")
        a("s_lshl_b32 s52, s44, 1\ns_add_u32 s52, s52, s46\ns_mul_i32 s52, s52, 5" if self.rot else "s_mov_b32 s52, 0")
        a("s_mul_i32 s49, s44, 1280")
        a("v_lshlrev_b32 v3, 13, v2\nv_lshlrev_b32 v9, 4, v1\nv_add_u32 v3, v3, v9")
        a(f"s_mul_i32 s53, s{HW}, {160*8192}\ns_lshl_b32 s51, s45, 8\ns_add_u32 s53, s53, s51")
        a(f"s_lshl_b32 s50, s52, 15\ns_add_u32 s50, s50, s53\ns_add_u32 s51, s53, {40*32768}")
        a("s_waitcnt lgkmcnt(0)")
        self.stamp(6)
        self.srd(8, 64, 5120)
        self.srd(12, 70, 5242880)
        for r in range(10):
            t = 52 + (r & 3)
            a(f"v_add_u32 v{t}, {16*r}, v1")
            if r <= 2:
                a(f"v_add_u32 v8, s52, v{t}\nv_subrev_u32 v9, 40, v8\nv_min_u32 v8, v8, v9\nv_add_u32 v8, s48, v8")
            if r >= 2:
                a(f"v_add_u32 v{t}, s48, v{t}\nv_subrev_u32 v9, 160, v{t}\nv_min_u32 v{t}, v{t}, v9")
            if r < 2:
                a(f"v_mov_b32 v{t}, v8")
            elif r == 2:
                a(f"v_cmp_gt_u32 vcc, 8, v1\ns_nop 1\nv_cndmask_b32 v{t}, v{t}, v8, vcc")
            a(f"v_lshlrev_b32 v{t}, 2, v{t}\nv_add_u32 v{t}, v{t}, v2\nv_lshlrev_b32 v{t}, 1, v{t}")
            a(f"buffer_load_ushort v{10+r}, v{t}, s[8:11], s49 offen")
        def wq_issue(u):
            a(f"buffer_load_dwordx4 v[{W+4*u}:{W+4*u+3}], v3, s[12:15], s50 offen {self.wq_flags}")
            if u < 39: a("s_add_u32 s50, s50, 0x8000\ns_cmp_eq_u32 s50, s51\ns_cselect_b32 s50, s53, s50")
        N1 = self.qo if self.qo else 40
        for u in range(N1):
            wq_issue(u)
            if self.qo and u == self.b0at:
                if self.b0: a("s_barrier")
                self.stamp(0)
        if not self.qo:
            if self.b0: a("s_barrier")
            self.stamp(0)
        self.masks16x32(MK, 8)
        a(f"v_mov_b32 v52, -1\nv_mov_b32 v53, -1\nv_mov_b32 v54, -1\nv_mov_b32 v55, -1\nv_mov_b32 v9, {MW}\nds_write_b128 v9, v[52:55]")
        if self.fe: a(f"ds_write_b32 v9, v52 offset:{F7-MW}")
        self.srd(16, 72, 5242880)
        self.srd(20, 86, 0x40000000)
        self.srd(24, 84, 256)
        self.srd(28, 82, 5120)
        a(f"s_waitcnt vmcnt({N1})")
        self.layernorm(10, 3, 54 if self.qo else 52, 54 if self.qo else 52)
        def abuild(src, u, buf, MKr=MK):
            for jj in range(4):
                a(f"v_and_b32_dpp v{A0+4*buf+jj}, v{src}, v{MKr+jj} row_newbcast:{u} row_mask:0xf bank_mask:0xf")
        a("s_nop 1")
        abuild(10, 0, 0)
        for u in range(40):
            if u + N1 < 40:
                wq_issue(u + N1)
                if u + N1 == self.b0at:
                    if self.b0: a("s_barrier")
                    self.stamp(0)
            if u < 39: abuild(10 + ((u + 1) >> 4), (u + 1) & 15, (u + 1) & 1)
            else: a("s_nop 1")
            a(f"s_waitcnt vmcnt({min(N1, 39-u)})")
            A = A0 + 4 * (u & 1)
            cin = "0" if u == 0 else f"v[{D}:{D+3}]"
            a(f"v_mfma_f32_16x16x32_bf16 v[{D}:{D+3}], v[{A}:{A+3}], v[{W+4*u}:{W+4*u+3}], {cin}")
        a("v_lshlrev_b32 v8, 5, v1\nv_and_b32 v9, 1, v2\nv_lshlrev_b32 v9, 4, v9\nv_add_u32 v8, v8, v9")
        a(f"s_lshl_b32 s48, s{HW}, 9\nv_add_u32 v9, s48, v8")
        a(f"s_nop 3\nds_write_b128 v9, v[{D}:{D+3}] offset:{QP}\ns_waitcnt lgkmcnt(0)")
        a("s_barrier")
        self.stamp(1)
        if self.owarm:
            a("s_mov_b64 exec, 1\nbuffer_load_dword v249, off, s[28:31], 0\nbuffer_load_dword v250, off, s[28:31], 0 offset:4092\ns_mov_b64 exec, -1")
        l_wo = self.label("wo")
        l_w5 = self.label("w5") if self.clw == 's' else l_wo
        if self.fe:
            a(f"s_and_b32 s48, s{HW}, 1\ns_cmp_eq_u32 s48, 1\ns_cbranch_scc0 {l_wo}")
            a(f"s_and_b32 s48, s2, 1\ns_cmp_eq_u32 s48, {1 if self.fe == 3 else 0}\ns_cbranch_scc0 {l_w5}\ns_cmp_lt_u32 s2, 216\ns_cbranch_scc0 {l_w5}")
        else:
            a(f"s_cmp_eq_u32 s{HW}, 1\ns_cbranch_scc0 {l_wo}\ns_cmp_lt_u32 s2, {216 if self.f2 else 27}\ns_cbranch_scc0 {l_w5}")
        if self.skip_ffn:
            a("v_mov_b32 v52, 1\ns_mov_b64 exec, 1\nbuffer_atomic_add v52, off, s[24:27], 0 offset:128 sc1\ns_mov_b64 exec, -1")
        elif self.f2:
            self.ffn1()
        else:
            self.ffn()
        if self.clw == 's':
            l_sg = self.label("sig")
            a(f"s_branch {l_wo}")
            a(f"{l_w5}:")
            a(f"s_cmp_eq_u32 s{HW}, 1\ns_cbranch_scc0 {l_wo}")
            self.signal()
        a(f"{l_wo}:")
        l_nc = self.label("noclear")
        if self.clw == 'w4': self.wave4_clear(l_nc)
        self.wo_prefetch_and_rest(MK, A0, D, YA, W, HW, abuild)

    def signal(self, sr=48, now=False):
        a = self.a
        if self.xsig: return
        if self.sigk and not now: return
        a("v_mov_b32 v52, 1\ns_mov_b64 exec, 1")
        if self.flag == 'at': a("buffer_atomic_add v52, off, s[24:27], 0 sc1")
        elif self.flag.startswith('at'):
            N = int(self.flag[2:]); sh = {2: 7, 4: 6, 8: 5, 16: 4, 32: 3, 64: 2}[N]
            a(f"s_and_b32 s{sr}, s2, {N-1}\ns_lshl_b32 s{sr}, s{sr}, {sh}\nbuffer_atomic_add v52, off, s[24:27], s{sr} sc1")
        elif self.flag == 'byte': a("v_mov_b32 v53, s2\nbuffer_store_byte v52, v53, s[24:27], 0 offen sc1")
        a("s_mov_b64 exec, -1")
    def signal_check(self, name):
        a = self.a
        if self.schk:
            assert self.flag == 'at4'
            fast = self.label("chkfast")
            g = " glc" if self.schk == 1 else ""
            for i in range(4): a(f"s_load_dword s{48+i}, s[84:85], {hex(64*i)}{g}")
            a("s_waitcnt lgkmcnt(0)\ns_min_u32 s48, s48, s49\ns_min_u32 s50, s50, s51\ns_min_u32 s48, s48, s50")
            a(f"s_cmp_ge_u32 s48, 64\ns_cbranch_scc1 {fast}")
            self.schk, keep = 0, self.schk
            self.signal_check(name)
            self.schk = keep
            a(f"{fast}:")
            return
        N = int(self.flag[2:]) if self.flag.startswith('at') and self.flag != 'at' else 0
        if N: a(f"v_and_b32 v59, {N-1}, v0\nv_lshlrev_b32 v59, {({2: 7, 4: 6, 8: 5, 16: 4, 32: 3, 64: 2}[N])}, v59")
        elif self.flag == 'byte': a("v_lshlrev_b32 v59, 2, v0")
        l, d = self.spin_head(name, 48)
        if self.flag == 'at':
            a("buffer_load_dword v58, off, s[24:27], 0 sc1\ns_waitcnt vmcnt(0)\nv_cmp_gt_u32 vcc, 256, v58")
        else:
            a("buffer_load_dword v58, v59, s[24:27], 0 offen sc1\ns_waitcnt vmcnt(0)")
            if self.flag == 'byte': a("v_cmp_ne_u32 vcc, 0x01010101, v58")
            else: a(f"v_cmp_gt_u32 vcc, {256 // N}, v58")
        a(f"s_cbranch_vccz {d}")
        a(f"s_sub_u32 s48, s48, 1\ns_cmp_lg_u32 s48, 0\ns_cbranch_scc1 {l}")
        a(f"{d}:")

    def wave4_clear(self, l_nc):
        a = self.a
        HW = self.HW
        a(f"s_cmp_eq_u32 s{HW}, {7 if self.xclr == 2 else 0}\ns_cbranch_scc0 {l_nc}")
        a("v_mov_b32 v52, -1\nv_mov_b32 v53, -1\nv_mov_b32 v54, -1\nv_mov_b32 v55, -1")
        a(f"s_mul_i32 s48, s47, 2560\ns_add_u32 s48, s48, {Y_OFF}\nv_lshlrev_b32 v9, 4, v0")
        a("buffer_store_dwordx4 v[52:55], v9, s[20:23], s48 offen sc1")
        a("buffer_store_dwordx4 v[52:55], v9, s[20:23], s48 offen offset:1024 sc1")
        a("s_mov_b32 exec_hi, 0")
        a("buffer_store_dwordx4 v[52:55], v9, s[20:23], s48 offen offset:2048 sc1")
        a("s_mov_b64 exec, 1")
        a(f"s_lshl_b32 s49, s47, 7\ns_add_u32 s49, s49, {ML_OFF}")
        a("buffer_store_dwordx2 v[52:53], v9, s[20:23], s49 offen sc1")
        if self.ctl:
            self.slot_addr(49, 50)
            a(f"v_mov_b32 v56, 0\nbuffer_store_dword v56, v9, s[20:23], s49 offen {'' if self.psp else 'sc1'}")
            if self.gx:
                nl = self.label("nolead")
                a(f"s_cmp_ge_u32 s2, 248\ns_cbranch_scc0 {nl}")
                a("buffer_store_dword v56, v9, s[20:23], s50 offen offset:128 sc1")
                a(f"s_and_b32 s49, s2, 7\ns_lshl_b32 s49, s49, 2\ns_add_u32 s49, s49, {GL_OFF}")
                a("buffer_store_dword v56, v9, s[20:23], s49 offen sc1")
                a(f"{nl}:")
        a("s_waitcnt vmcnt(0)")
        a("v_mov_b32 v52, 1")
        if not self.xclr: a("buffer_atomic_add v52, off, s[24:27], 0 sc1")
        a("s_mov_b64 exec, -1")
        a(f"{l_nc}:")

    def wo_prefetch_and_rest(self, MK, A0, D, YA, W, HW, abuild):
        a = self.a
        a("v_mul_u32_u24 v3, 1280, v2\nv_lshlrev_b32 v9, 4, v1\nv_add_u32 v3, v3, v9")
        a(f"s_lshl_b32 s48, s45, 7\ns_lshl_b32 s49, s{HW}, 5\ns_add_u32 s48, s48, s49\ns_mul_i32 s48, s48, 1280")
        if self.sigk:
            a(f"s_lshr_b32 s58, s2, {3 + self.sigk - 1}\ns_cmp_eq_u32 s{HW}, 1\ns_cselect_b32 s58, s58, -1")
        for u in range(8):
            if self.skip_wo: break
            for cb in range(5):
                r = W + 4 * (5 * u + cb)
                if self.wo_win and 5 * u + cb >= self.wo_win: a(f"s_waitcnt vmcnt({self.wo_win-1})")
                a(f"buffer_load_dwordx4 v[{r}:{r+3}], v3, s[16:19], s48 offen offset:{256*cb} {self.wo_flags}")
                if self.sigk and 5 * u + cb < (32 >> (self.sigk - 1)):
                    sk = self.label("sk")
                    a(f"s_cmp_eq_u32 s58, {5*u+cb}\ns_cbranch_scc0 {sk}")
                    self.signal(59, True)
                    a(f"{sk}:")
            if u < 7: a(f"s_add_u32 s48, s48, {4*1280}")
        if self.vwarm:
            lw = self.label("novw")
            a(f"s_cmp_eq_u32 s{HW}, 3\ns_cbranch_scc0 {lw}\ns_lshl_b32 s49, s47, 20")
            if self.vwarm == 1:
                self.srd(32, 68, 0x10000000)
                a("s_mov_b64 exec, 1\nbuffer_load_dword v60, off, s[32:35], s49\ns_mov_b64 exec, -1")
            else:
                a("s_load_dword s100, s[68:69], s49")
            a(f"{lw}:")
        l_b2 = self.label("toB2")
        a(f"s_cmp_eq_u32 s{HW}, 0\ns_cbranch_scc0 {l_b2}")
        self.wave4_mid()
        l_b3 = self.label("toB2b")
        if self.ctl or self.f2: a(f"s_branch {l_b3}")
        a(f"{l_b2}:")
        if self.f2:
            for j in range(20): a(f"v_mov_b32 v{YA+j}, 0")
        if self.ctl:
            a(f"s_cmp_eq_u32 s{HW}, 2\ns_cbranch_scc0 {l_b3}")
            self.monitor()
        if self.ctl or self.f2: a(f"{l_b3}:")
        a("s_waitcnt vmcnt(0)")
        a(f"v_and_b32 v8, 7, v1\nv_lshlrev_b32 v8, 2, v8\nv_add_u32 v8, v8, v2\nv_lshlrev_b32 v8, 2, v8\ns_lshl_b32 s48, s{HW}, 7\nv_add_u32 v8, s48, v8")
        a(f"v_mov_b32 v9, {FW}")
        a("v_lshlrev_b32 v10, 5, v1\nv_and_b32 v11, 1, v2\nv_lshlrev_b32 v11, 4, v11\nv_add_u32 v10, v10, v11")
        a(f"s_mul_i32 s48, s{HW}, 2560\nv_add_u32 v10, s48, v10")
        a(f"s_mul_i32 s48, s{HW}, 640\nv_lshlrev_b32 v11, 4, v0\nv_add_u32 v11, s48, v11")
        a(f"s_mul_i32 s49, s47, 2560\ns_add_u32 s49, s49, {Y_OFF}")
        self.stamp(2)
        a("s_barrier")
        self.stamp(3)
        a("ds_read_b128 v[52:55], v9")
        for w in range(4): a(f"ds_read_b32 v{56+w}, v8 offset:{OP+512*w}")
        a("s_waitcnt lgkmcnt(0)")
        a("v_mul_f32 v56, v52, v56\nv_mul_f32 v58, v54, v58\nv_fmac_f32 v56, v53, v57\nv_fmac_f32 v58, v55, v59\nv_add_f32 v56, v56, v58")
        a("v_cvt_pk_bf16_f32 v56, v56, v56\ns_nop 1")
        abuild(56, 0, 0)
        for u in range(8):
            if u < 7: abuild(56, u + 1, (u + 1) & 1)
            else: a("s_nop 1")
            A = A0 + 4 * (u & 1)
            for cb in range(5):
                r = W + 4 * (5 * u + cb)
                acc = YA + 4 * cb
                cin = "0" if (u == 0 and not self.f2) else f"v[{acc}:{acc+3}]"
                a(f"v_mfma_f32_16x16x32_bf16 v[{acc}:{acc+3}], v[{A}:{A+3}], v[{r}:{r+3}], {cin}")
        a("s_nop 3")
        for cb in range(5):
            if cb == 4: a("s_nop 3")
            a(f"ds_write_b128 v10, v[{YA+4*cb}:{YA+4*cb+3}] offset:{YP+512*cb}")
        a("s_waitcnt lgkmcnt(0)")
        a("s_barrier")
        a("s_mov_b32 exec_hi, 0xff")
        for w in range(4): a(f"ds_read_b128 v[{64+4*w}:{64+4*w+3}], v11 offset:{YP+2560*w}")
        a("s_waitcnt lgkmcnt(0)")
        a("v_pk_add_f32 v[64:65], v[64:65], v[68:69]\nv_pk_add_f32 v[66:67], v[66:67], v[70:71]")
        a("v_pk_add_f32 v[72:73], v[72:73], v[76:77]\nv_pk_add_f32 v[74:75], v[74:75], v[78:79]")
        a("v_pk_add_f32 v[64:65], v[64:65], v[72:73]\nv_pk_add_f32 v[66:67], v[66:67], v[74:75]")
        a("buffer_store_dwordx4 v[64:67], v11, s[20:23], s49 offen sc1")
        a("s_mov_b64 exec, -1")
        self.stamp(4)
        l_fin = self.label("fin")
        a(f"s_cmp_eq_u32 s{HW}, 0\ns_cbranch_scc0 {l_fin}\ns_cmp_lt_u32 s2, 80\ns_cbranch_scc0 {l_fin}")
        self.final_reduce()
        a(f"{l_fin}:")
        self.stamp(5)
        self.stamp_flush("h")
        a("s_endpgm")

    def slot_addr(self, sa, sb):
        a = self.a
        if self.cloc:
            a(f"s_lshr_b32 s{sa}, s2, 3\ns_and_b32 s{sb}, s2, 7\ns_lshl_b32 s{sb}, s{sb}, 8\ns_add_u32 s{sb}, s{sb}, {PS_OFF}")
        else:
            a(f"s_lshr_b32 s{sa}, s2, 3\ns_add_u32 s{sb}, s{sa}, s2\ns_and_b32 s{sb}, s{sb}, 7\ns_lshl_b32 s{sb}, s{sb}, 7\ns_add_u32 s{sb}, s{sb}, {PS_OFF}")
        a(f"s_lshl_b32 s{sa}, s{sa}, 2\ns_add_u32 s{sa}, s{sa}, s{sb}")
    def monitor(self):
        a = self.a
        self.c("---- wave 6: balances the V phase by steering each streaming wave's lookahead depth ----")
        l, d = self.spin_head("mw6", 48)
        a(f"v_mov_b32 v9, {MW}\nds_read_b128 v[52:55], v9\ns_waitcnt lgkmcnt(0)")
        a("v_max3_u32 v9, v52, v53, v54\nv_max_u32 v9, v9, v55\nv_cmp_eq_u32 vcc, -1, v9")
        a(f"s_cbranch_vccz {d}")
        a(f"s_sub_u32 s48, s48, 1\ns_cmp_lg_u32 s48, 0\ns_cbranch_scc1 {l}")
        a(f"{d}:")
        if self.psp == 2: self.signal_check("clr6")
        if not self.psp:
            l, d = self.spin_head("clr6", 48)
            a("buffer_load_dword v58, off, s[24:27], 0 sc1\ns_waitcnt vmcnt(0)")
            a(f"v_cmp_gt_u32 vcc, {0 if self.xclr else 256}, v58")
            a(f"s_cbranch_vccz {d}")
            a(f"s_sub_u32 s48, s48, 1\ns_cmp_lg_u32 s48, 0\ns_cbranch_scc1 {l}")
            a(f"{d}:")
        self.slot_addr(49, 50)
        a(f"v_and_b32 v52, 3, v0\nv_lshlrev_b32 v53, 2, v52\nv_add_u32 v53, {MODE}, v53")
        a(f"v_lshlrev_b32 v52, 8, v52\nv_add_u32 v52, {PRG}, v52")
        if not self.gx:
            a("v_and_b32 v54, 31, v0\nv_lshlrev_b32 v54, 2, v54\nv_mov_b32 v9, 0\ns_mov_b32 s51, 0")
        else:
            a("v_lshlrev_b32 v54, 2, v0\nv_min_u32 v54, 128, v54\nv_mov_b32 v9, 0\ns_mov_b32 s51, 0")
            a(f"s_mov_b32 s58, 0\ns_mov_b32 s59, 0\ns_and_b32 s57, s2, 7\ns_lshl_b32 s57, s57, {8 if self.gx == 3 else 2}\ns_add_u32 s57, s57, {GL_OFF}")
        l, d = self.spin_head("mon", 48)
        a("ds_read_b32 v55, v52\ns_waitcnt lgkmcnt(0)")
        a("v_add_u32_dpp v56, v55, v55 quad_perm:[1,0,3,2] row_mask:0xf bank_mask:0xf\ns_nop 1")
        a("v_add_u32_dpp v56, v56, v56 quad_perm:[2,3,0,1] row_mask:0xf bank_mask:0xf\ns_nop 1")
        a("v_readfirstlane_b32 s52, v56")
        a(f"s_nop 1\ns_cmp_ge_u32 s52, {self.cthr}\ns_cbranch_scc1 {d}")
        a(f"s_mov_b64 exec, 1\nbuffer_store_dword v56, v9, s[20:23], s49 offen {self.mst}\ns_mov_b64 exec, -1")
        a(f"buffer_load_dword v57, v54, s[20:23], s50 offen {self.mld}\ns_waitcnt vmcnt(0)")
        if self.gx:
            a("v_readlane_b32 s55, v57, 32\ns_mov_b32 exec_lo, 0\nv_mov_b32 v57, 0\ns_mov_b32 exec_lo, -1\ns_nop 1")
        self.wave_reduce(57, "v_add_u32", 53)
        if self.gx:
            a("s_lshl_b32 s53, s53, 1")
            nl = self.label("nolead")
            a(f"s_cmp_ge_u32 s2, 248\ns_cbranch_scc0 {nl}")
            if self.gM > 1: a(f"s_and_b32 s32, s48, {self.gM-1}\ns_cmp_eq_u32 s32, 0\ns_cbranch_scc0 {nl}")
            a("v_mov_b32 v58, s53\ns_mov_b64 exec, 1\nbuffer_store_dword v58, v9, s[20:23], s57 offen sc1\ns_mov_b64 exec, -1")
            if self.gx == 1:
                a(f"s_waitcnt vmcnt(0)\ns_load_dwordx8 s[32:39], s[86:87], {hex(GL_OFF)} glc\ns_waitcnt lgkmcnt(0)")
                a("s_add_u32 s32, s32, s33\ns_add_u32 s34, s34, s35\ns_add_u32 s36, s36, s37\ns_add_u32 s38, s38, s39")
                a("s_add_u32 s32, s32, s34\ns_add_u32 s36, s36, s38\ns_add_u32 s32, s32, s36")
            else:
                a(f"v_and_b32 v58, 7, v0\nv_lshlrev_b32 v58, {8 if self.gx == 3 else 2}, v58\ns_mov_b32 s32, {GL_OFF}\nbuffer_load_dword v59, v58, s[20:23], s32 offen sc1\ns_waitcnt vmcnt(0)")
                a("v_add_u32_dpp v59, v59, v59 row_ror:4 row_mask:0xf bank_mask:0xf\ns_nop 1")
                a("v_add_u32_dpp v59, v59, v59 row_ror:2 row_mask:0xf bank_mask:0xf\ns_nop 1")
                a("v_add_u32_dpp v59, v59, v59 row_ror:1 row_mask:0xf bank_mask:0xf\ns_nop 1")
                a("v_readfirstlane_b32 s32, v59\ns_nop 1")
            a("s_lshr_b32 s32, s32, 3\ns_sub_u32 s55, s32, s53")
            if self.gbias: a(f"s_add_u32 s55, s55, {self.gbias}")
            if self.gsh: a(f"s_ashr_i32 s55, s55, {self.gsh}")
            a("v_mov_b32 v58, s55\ns_mov_b64 exec, 1")
            a(f"buffer_store_dword v58, v9, s[20:23], s50 offen offset:128 {self.mst}\ns_mov_b64 exec, -1")
            if self.stamps: a("s_mov_b32 s58, s32\ns_mov_b32 s59, s53")
            a(f"{nl}:")
        a("s_sub_u32 s54, s52, s51\ns_lshl_b32 s54, s54, 6\ns_add_u32 s54, s54, s53")
        if self.gx: a("s_add_u32 s54, s54, s55")
        a(f"s_add_u32 s54, s54, {self.cbias}\ns_mov_b32 s51, s52")
        a("v_lshlrev_b32 v55, 8, v55\nv_sub_u32 v55, s54, v55")
        a(f"v_ashrrev_i32 v55, {self.csh}, v55\nv_add_u32 v55, {self.R}, v55")
        a(f"v_max_i32 v55, {self.Rlo}, v55\nv_min_i32 v55, {self.Rhi}, v55")
        a("ds_write_b32 v53, v55")
        a(f"s_sub_u32 s48, s48, 1\ns_cmp_lg_u32 s48, 0\ns_cbranch_scc1 {l}")
        a(f"{d}:")
        a(f"v_mov_b32 v56, 0x400\ns_mov_b64 exec, 1\nbuffer_store_dword v56, v9, s[20:23], s49 offen {self.mst}\ns_mov_b64 exec, -1")
        if self.gx:
            nl = self.label("nolead")
            a(f"s_cmp_ge_u32 s2, 248\ns_cbranch_scc0 {nl}")
            a("v_mov_b32 v58, 0x10000\ns_mov_b64 exec, 1\nbuffer_store_dword v58, v9, s[20:23], s57 offen sc1\ns_mov_b64 exec, -1")
            if self.stamps and self.clw == 'w4':
                a("s_and_b32 s32, s2, 7\ns_lshl_b32 s32, s32, 2\nv_mov_b32 v58, s58\nv_mov_b32 v59, s59\ns_mov_b64 exec, 1")
                a("buffer_store_dword v58, v9, s[24:27], s32 offen offset:64\nbuffer_store_dword v59, v9, s[24:27], s32 offen offset:96\ns_mov_b64 exec, -1")
            a(f"{nl}:")

    def wave4_mid(self):
        a = self.a
        self.c("---- wave 4: softmax statistics of this half, exchange with the other half ----")
        l, d = self.spin_head("mw", 48)
        a(f"v_mov_b32 v9, {MW}\nds_read_b128 v[52:55], v9\ns_waitcnt lgkmcnt(0)")
        a("v_max3_u32 v9, v52, v53, v54\nv_max_u32 v9, v9, v55\nv_cmp_eq_u32 vcc, -1, v9")
        a(f"s_cbranch_vccz {d}")
        if self.sleep: a("s_sleep 16")
        a(f"s_sub_u32 s48, s48, 1\ns_cmp_lg_u32 s48, 0\ns_cbranch_scc1 {l}")
        a(f"{d}:")
        self.stamp(6)
        a("v_max3_f32 v56, v52, v53, v54\nv_max_f32 v56, v56, v55")
        a(f"v_lshlrev_b32 v9, 4, v0\nv_add_u32 v9, {SC}, v9\nv_mov_b32 v57, 0\ns_mov_b32 s48, 4")
        lp = self.label("lsum")
        a(f"{lp}:")
        for i in range(4): a(f"ds_read_b128 v[{224+4*i}:{227+4*i}], v9 offset:{1024*i}")
        a("v_add_u32 v9, 4096, v9\ns_waitcnt lgkmcnt(0)")
        for i in range(16): a(f"v_sub_f32 v{224+i}, v{224+i}, v56")
        for i in range(16): a(f"v_mul_f32 v{224+i}, {LOG2E}, v{224+i}")
        for i in range(16): a(f"v_exp_f32 v{224+i}, v{224+i}")
        a("s_nop 0")
        for i in range(16): a(f"v_add_f32 v57, v57, v{224+i}")
        a(f"s_sub_u32 s48, s48, 1\ns_cmp_lg_u32 s48, 0\ns_cbranch_scc1 {lp}")
        a("s_nop 1")
        self.wave_reduce(57, "v_add_f32", 50)
        a("v_mov_b32 v57, s50")
        a(f"s_lshl_b32 s49, s47, 7\ns_add_u32 s49, s49, {ML_OFF}")
        a("v_mov_b32 v9, 0\ns_mov_b64 exec, 1")
        a(f"buffer_store_dwordx2 v[56:57], v9, s[20:23], s49 offen {self.mlfl}")
        a("s_mov_b64 exec, -1")
        if self.f2: self.ffn2()
        if self.clw == 'w4':
            l, d = self.spin_head("clr", 48)
            a("buffer_load_dword v58, off, s[24:27], 0 sc1\ns_waitcnt vmcnt(0)")
            a(f"v_cmp_gt_u32 vcc, {0 if self.xclr else 256}, v58")
            a(f"s_cbranch_vccz {d}")
            a(f"s_sub_u32 s48, s48, 1\ns_cmp_lg_u32 s48, 0\ns_cbranch_scc1 {l}")
            a(f"{d}:")
        a(f"s_xor_b32 s49, s47, 1\ns_lshl_b32 s49, s49, 7\ns_add_u32 s49, s49, {ML_OFF}\nv_mov_b32 v9, 0")
        l, d = self.spin_head("ml", 48)
        a(f"buffer_load_dwordx2 v[58:59], v9, s[20:23], s49 offen {'nt' if self.mlfl != 'sc1' else 'sc1'}\ns_waitcnt vmcnt(0)")
        a("v_max_u32 v60, v58, v59\nv_cmp_eq_u32 vcc, -1, v60")
        a(f"s_cbranch_vccz {d}")
        a(f"s_sub_u32 s48, s48, 1\ns_cmp_lg_u32 s48, 0\ns_cbranch_scc1 {l}")
        a(f"{d}:")
        a("v_max_f32 v60, v56, v58")
        a("v_sub_f32 v56, v56, v60\nv_sub_f32 v58, v58, v60")
        for i in range(4): a(f"v_sub_f32 v{52+i}, v{52+i}, v60")
        a(f"v_mul_f32 v56, {LOG2E}, v56\nv_mul_f32 v58, {LOG2E}, v58")
        for i in range(4): a(f"v_mul_f32 v{52+i}, {LOG2E}, v{52+i}")
        a("v_exp_f32 v56, v56\nv_exp_f32 v58, v58")
        for i in range(4): a(f"v_exp_f32 v{52+i}, v{52+i}")
        a("v_mul_f32 v57, v57, v56\nv_fmac_f32 v57, v59, v58\nv_rcp_f32 v57, v57\ns_nop 0")
        for i in range(4): a(f"v_mul_f32 v{52+i}, v{52+i}, v57")
        a(f"v_mov_b32 v9, {FW}\nds_write_b128 v9, v[52:55]\ns_waitcnt lgkmcnt(0)")
        l_nr = self.label("nored")
        a(f"s_cmp_lt_u32 s2, 80\ns_cbranch_scc0 {l_nr}")
        a("s_mul_i32 s62, s2, 205\ns_lshr_b32 s62, s62, 12\ns_mul_i32 s63, s62, 20\ns_sub_u32 s63, s2, s63")
        if self.f2:
            a("v_and_b32 v59, 7, v0\ns_mul_i32 s48, s62, 1280\ns_lshl_b32 s49, s63, 6\ns_add_u32 s48, s48, s49\nv_lshlrev_b32 v61, 3, v59")
            a("buffer_load_dwordx2 v[246:247], v61, s[8:11], s48 offen\ns_waitcnt vmcnt(0)")
            a("v_lshlrev_b32 v244, 16, v246\nv_and_b32 v245, 0xffff0000, v246\nv_lshlrev_b32 v246, 16, v247\nv_and_b32 v247, 0xffff0000, v247")
            a(f"{l_nr}:")
            return
        l, d = self.spin_head("zc", 48)
        a("buffer_load_dword v58, off, s[24:27], 0 offset:128 sc1\ns_waitcnt vmcnt(0)")
        a("v_cmp_gt_u32 vcc, 27, v58")
        a(f"s_cbranch_vccz {d}")
        a(f"s_sub_u32 s48, s48, 1\ns_cmp_lg_u32 s48, 0\ns_cbranch_scc1 {l}")
        a(f"{d}:")
        a("v_lshrrev_b32 v58, 3, v0\nv_and_b32 v59, 7, v0")
        a("v_mul_u32_u24 v60, 10240, v58\nv_lshlrev_b32 v61, 4, v59\nv_add_u32 v60, v60, v61")
        a(f"s_mul_i32 s48, s62, 2560\ns_lshl_b32 s49, s63, 7\ns_add_u32 s48, s48, s49\ns_add_u32 s48, s48, {Z_OFF}")
        for i in range(3):
            a(f"buffer_load_dwordx4 v[{224+4*i}:{227+4*i}], v60, s[20:23], s48 offen sc1")
            a(f"s_add_u32 s48, s48, {8*10240}")
        a("v_cmp_gt_u32 vcc, 3, v58\nv_mov_b32 v61, 0x7ffffff0\ns_nop 0\nv_cndmask_b32 v60, v61, v60, vcc")
        a("buffer_load_dwordx4 v[236:239], v60, s[20:23], s48 offen sc1")
        a("s_mul_i32 s48, s62, 1280\ns_lshl_b32 s49, s63, 6\ns_add_u32 s48, s48, s49\nv_lshlrev_b32 v61, 3, v59")
        a("buffer_load_dwordx2 v[246:247], v61, s[8:11], s48 offen")
        a("s_waitcnt vmcnt(0)")
        for j in range(4):
            a(f"v_add_f32 v{224+j}, v{224+j}, v{228+j}\nv_add_f32 v{232+j}, v{232+j}, v{236+j}\nv_add_f32 v{240+j}, v{224+j}, v{232+j}")
        self.reduce_hq(240, 4, 248)
        for j in range(4): self.rbf16(240 + j)
        a("v_lshlrev_b32 v244, 16, v246\nv_and_b32 v245, 0xffff0000, v246\nv_lshlrev_b32 v246, 16, v247\nv_and_b32 v247, 0xffff0000, v247")
        a(f"{l_nr}:")

    def final_reduce(self):
        a = self.a
        self.c("---- final sum over the 64 (head, half) rows for 32 output columns of one batch row ----")
        a("v_lshrrev_b32 v58, 3, v0\nv_and_b32 v59, 7, v0")
        a("v_mul_u32_u24 v60, 2560, v58\nv_lshlrev_b32 v61, 4, v59\nv_add_u32 v60, v60, v61")
        a(f"s_mul_i32 s48, s62, {64*2560}\ns_lshl_b32 s49, s63, 7\ns_add_u32 s48, s48, s49\ns_add_u32 s48, s48, {Y_OFF}")
        for i in range(1, 8): a(f"s_add_u32 s{48+i}, s{47+i}, {8*2560}")
        if self.yp > 1:
            S = self.yp
            def issue(st):
                for i in range(8): a(f"buffer_load_dwordx4 v[{64+32*st+4*i}:{67+32*st+4*i}], v60, s[20:23], s{48+i} offen sc1")
            l, fin = self.label("y"), self.label("yfin")
            dn = [self.label("ydone") for _ in range(S)]
            a(f"s_mov_b32 s56, {SPIN_MAX}")
            for st in range(S): issue(st)
            a(f"{l}:")
            for st in range(S):
                b0 = 64 + 32 * st
                a(f"s_waitcnt vmcnt({8*(S-1)})")
                for k in (16, 8, 4):
                    for i in range(0, k, 2):
                        a(f"v_pk_add_f32 v[{b0+i}:{b0+i+1}], v[{b0+i}:{b0+i+1}], v[{b0+k+i}:{b0+k+i+1}]")
                a(f"v_add_f32 v{b0+4}, v{b0}, v{b0+1}\nv_add_f32 v{b0+5}, v{b0+2}, v{b0+3}\nv_add_f32 v{b0+4}, v{b0+4}, v{b0+5}\nv_cmp_u_f32 vcc, v{b0+4}, v{b0+4}")
                a(f"s_cbranch_vccz {dn[st]}")
                issue(st)
            a(f"s_sub_u32 s56, s56, 1\ns_cmp_lg_u32 s56, 0\ns_cbranch_scc1 {l}")
            O = 64 + 32 * S
            for st in range(S):
                a(f"{dn[st]}:")
                for j in range(4): a(f"v_mov_b32 v{O+j}, v{64+32*st+j}")
                if st < S - 1: a(f"s_branch {fin}")
            a(f"{fin}:")
            self.reduce_hq(O, 4, O + 4)
            for j in range(4): a(f"v_add_f32 v{O+j}, v{244+j}, v{O+j}")
            a(f"v_cvt_pk_bf16_f32 v{O}, v{O}, v{O+1}\nv_cvt_pk_bf16_f32 v{O+1}, v{O+2}, v{O+3}")
            a("s_mul_i32 s48, s62, 1280\ns_lshl_b32 s49, s63, 6\ns_add_u32 s57, s48, s49\nv_lshlrev_b32 v61, 3, v59")
            a("s_mov_b64 exec, 0xff")
            a(f"buffer_store_dwordx2 v[{O}:{O+1}], v61, s[28:31], s57 offen {self.ofl}")
            a("s_mov_b64 exec, -1")
            return
        l, d = self.spin_head("y", 56)
        for i in range(8):
            a(f"buffer_load_dwordx4 v[{64+4*i}:{67+4*i}], v60, s[20:23], s{48+i} offen sc1")
        a("s_waitcnt vmcnt(0)")
        for st in (16, 8, 4):
            for i in range(0, st, 2):
                a(f"v_pk_add_f32 v[{64+i}:{65+i}], v[{64+i}:{65+i}], v[{64+st+i}:{65+st+i}]")
        a("v_add_f32 v68, v64, v65\nv_add_f32 v69, v66, v67\nv_add_f32 v68, v68, v69\nv_cmp_u_f32 vcc, v68, v68")
        a(f"s_cbranch_vccz {d}")
        a(f"s_sub_u32 s56, s56, 1\ns_cmp_lg_u32 s56, 0\ns_cbranch_scc1 {l}")
        a(f"{d}:")
        self.reduce_hq(64, 4, 68)
        if self.f2:
            for j in range(4): a(f"v_add_f32 v{64+j}, v{244+j}, v{64+j}")
        else:
            for j in range(4): self.rbf16(64 + j)
            for j in range(4): a(f"v_add_f32 v{64+j}, v{244+j}, v{64+j}")
            for j in range(4): self.rbf16(64 + j)
            for j in range(4): a(f"v_add_f32 v{64+j}, v{64+j}, v{240+j}")
        a("v_cvt_pk_bf16_f32 v64, v64, v65\nv_cvt_pk_bf16_f32 v65, v66, v67")
        a("s_mul_i32 s48, s62, 1280\ns_lshl_b32 s49, s63, 6\ns_add_u32 s48, s48, s49\nv_lshlrev_b32 v61, 3, v59")
        a("s_mov_b64 exec, 0xff")
        a("buffer_store_dwordx2 v[64:65], v61, s[28:31], s48 offen")
        a("s_mov_b64 exec, -1")

    def ffn1(self):
        a = self.a
        self.c("---- FFN stage 1: columns 64*(s2>>3).., rows 80*(s2&7).. ----")
        Wg, X, M2, A0, DG, DU, XA = 64, 144, 44, 20, 28, 32, 184
        self.srd(32, 76, 2211840); self.srd(36, 78, 2211840)
        a("v_mul_u32_u24 v11, 3456, v2\nv_lshlrev_b32 v12, 3, v1\nv_add_u32 v11, v11, v12")
        a("s_lshr_b32 s54, s2, 3\ns_and_b32 s55, s2, 7")
        if self.fe == 1: a(f"s_lshr_b32 s48, s{self.HW}, 1\ns_add_u32 s55, s55, s48")
        if self.fe == 2: a(f"s_lshr_b32 s55, s55, 1\ns_lshr_b32 s48, s{self.HW}, 1\ns_lshl_b32 s48, s48, 2\ns_add_u32 s55, s55, s48")
        if self.fe == 3: a(f"s_lshr_b32 s48, s{self.HW}, 1\ns_add_u32 s55, s55, s48\ns_sub_u32 s55, s55, 1")
        a(f"s_lshl_b32 s48, s54, 7\ns_mul_i32 s49, s55, {80*3456}\ns_add_u32 s48, s48, s49")
        for u in range(20):
            if self.f1win and 2 * u >= self.f1win: a(f"s_waitcnt vmcnt({self.f1win-2})")
            a(f"buffer_load_dwordx2 v[{Wg+4*u}:{Wg+1+4*u}], v11, s[32:35], s48 offen nt")
            a(f"buffer_load_dwordx2 v[{Wg+2+4*u}:{Wg+3+4*u}], v11, s[36:39], s48 offen nt")
            if u < 19: a(f"s_add_u32 s48, s48, {4*3456}")
        a("v_lshlrev_b32 v8, 2, v1\nv_add_u32 v8, v8, v2\nv_lshlrev_b32 v8, 1, v8")
        a("s_mov_b32 s48, 0\ns_mov_b32 s49, 1280\ns_mov_b32 s50, 2560\ns_mov_b32 s51, 3840")
        for b in range(4):
            for r in range(10):
                a(f"buffer_load_ushort v{X+10*b+r}, v8, s[8:11], s{48+b} offen offset:{128*r}")
        self.const64(60, 0xAAAAAAAAAAAAAAAA)
        a("v_mov_b32 v52, 0xffff\nv_mov_b32 v53, 0xffff0000\nv_cndmask_b32_e64 v52, v52, v53, s[60:61]")
        for jj in range(2):
            self.const64(60, 0x3333333333333333 << (2 * jj))
            a(f"v_cndmask_b32_e64 v{M2+jj}, 0, v52, s[60:61]")
        a(f"v_mul_u32_u24 v9, 640, v2\nv_lshlrev_b32 v52, 2, v1\nv_add_u32 v9, v9, v52")
        for b in range(4):
            a(f"s_waitcnt vmcnt({30-10*b})")
            self.layernorm(X + 10 * b, 10, 52, 52)
            for r in range(10):
                a(f"ds_write_b32 v9, v{X+10*b+r} offset:{XNL+2560*b+64*r}")
        a("v_lshrrev_b32 v9, 2, v1\nv_lshlrev_b32 v9, 2, v9\nv_add_u32 v9, v9, v2\nv_mul_u32_u24 v10, 640, v9")
        a(f"s_mul_i32 s48, s55, 80\ns_add_u32 s48, s48, {XNL}\nv_add_u32 v10, s48, v10")
        a("s_waitcnt lgkmcnt(0)")
        for i in range(5): a(f"ds_read_b128 v[{XA+4*i}:{XA+3+4*i}], v10 offset:{16*i}")
        a("s_waitcnt lgkmcnt(0)")
        for u in range(20):
            A = A0 + 2 * (u & 1)
            for jj in range(2): a(f"v_and_b32 v{A+jj}, v{XA+u}, v{M2+jj}")
            a("s_nop 1")
            cg = "0" if u == 0 else f"v[{DG}:{DG+3}]"
            cu = "0" if u == 0 else f"v[{DU}:{DU+3}]"
            a(f"v_mfma_f32_16x16x16_bf16 v[{DG}:{DG+3}], v[{A}:{A+1}], v[{Wg+4*u}:{Wg+1+4*u}], {cg}")
            a(f"v_mfma_f32_16x16x16_bf16 v[{DU}:{DU+3}], v[{A}:{A+1}], v[{Wg+2+4*u}:{Wg+3+4*u}], {cu}")
        a("v_mul_u32_u24 v12, 6912, v2\nv_lshlrev_b32 v13, 4, v1\nv_add_u32 v12, v12, v13")
        a(f"s_mul_i32 s48, s55, {2*27648}\ns_lshl_b32 s49, s54, 8\ns_add_u32 s48, s48, s49\ns_add_u32 s48, s48, {P_OFF}\ns_add_u32 s49, s48, 27648")
        a("s_nop 7")
        a(f"buffer_store_dwordx4 v[{DG}:{DG+3}], v12, s[20:23], s48 offen {self.psfl}")
        a(f"buffer_store_dwordx4 v[{DU}:{DU+3}], v12, s[20:23], s49 offen {self.psfl}")
        if self.clw == 's':
            a("s_waitcnt vmcnt(0)")
            if self.fe:
                l5, le = self.label("f5"), self.label("f7e")
                a(f"v_mov_b32 v9, {F7}\ns_cmp_eq_u32 s{self.HW}, 1\ns_cbranch_scc1 {l5}")
                a(f"v_mov_b32 v52, 1\nds_write_b32 v9, v52\ns_branch {le}")
                a(f"{l5}:")
                l, d = self.spin_head("f7", 48)
                a("ds_read_b32 v52, v9\ns_waitcnt lgkmcnt(0)\nv_cmp_eq_u32 vcc, -1, v52")
                a(f"s_cbranch_vccz {d}")
                a(f"s_sub_u32 s48, s48, 1\ns_cmp_lg_u32 s48, 0\ns_cbranch_scc1 {l}")
                a(f"{d}:")
                self.signal()
                a(f"{le}:")
                return
            self.signal()
            return
        a("s_waitcnt vmcnt(0)\nv_mov_b32 v52, 1\ns_mov_b64 exec, 1")
        if not self.xzc: a("buffer_atomic_add v52, off, s[24:27], 0 offset:128 sc1")
        a("s_mov_b64 exec, -1")

    def ffn2(self):
        a = self.a
        MK, A0, YA, T = 4, 20, 32, 224
        self.c("---- FFN stage 2: hidden columns 27*(2h+half).. of batch row b ----")
        self.srd(40, 80, 2211840)
        if self.clw == 's':
            if not self.xchk: self.signal_check("zc")
        else:
            l, d = self.spin_head("zc", 48)
            a("buffer_load_dword v58, off, s[24:27], 0 offset:128 sc1\ns_waitcnt vmcnt(0)")
            a(f"v_cmp_gt_u32 vcc, {0 if self.xzc else 216}, v58")
            a(f"s_cbranch_vccz {d}")
            a(f"s_sub_u32 s48, s48, 1\ns_cmp_lg_u32 s48, 0\ns_cbranch_scc1 {l}")
            a(f"{d}:")
        a("s_lshl_b32 s54, s45, 1\ns_add_u32 s54, s54, s46\ns_mul_i32 s54, s54, 27")
        a("v_lshrrev_b32 v58, 2, v0\nv_mul_u32_u24 v58, 27648, v58\nv_and_b32 v59, 3, v0\nv_lshlrev_b32 v60, 5, v59\nv_add_u32 v58, v58, v60")
        a(f"s_mul_i32 s48, s44, 6912\ns_lshl_b32 s49, s54, 2\ns_add_u32 s48, s48, s49\ns_add_u32 s48, s48, {P_OFF}")
        a(f"buffer_load_dwordx4 v[{T}:{T+3}], v58, s[20:23], s48 offen {self.pfl}")
        a(f"buffer_load_dwordx4 v[{T+4}:{T+7}], v58, s[20:23], s48 offen offset:16 {self.pfl}")
        a("s_waitcnt vmcnt(0)")
        self.reduce_hq(T, 8, T + 8)
        for j in range(8): self.rbf16(T + j)
        a("s_nop 1")
        for j in range(8): a(f"v_mov_b32_dpp v{T+8+j}, v{T+j} row_ror:12 row_mask:0xf bank_mask:0xf")
        for j in range(8):
            a(f"v_max_f32 v{T+j}, 0, v{T+j}\nv_mul_f32 v{T+j}, v{T+j}, v{T+8+j}\nv_cvt_pk_bf16_f32 v{T+j}, v{T+j}, v{T+j}")
        a("v_cmp_gt_u32 vcc, 3, v59\ns_nop 1")
        for j in range(3, 8): a(f"v_cndmask_b32 v{T+j}, 0, v{T+j}, vcc")
        a(f"v_add_u32 v60, {HL}, v60\ns_mov_b64 exec, 15")
        a(f"ds_write_b128 v60, v[{T}:{T+3}]\nds_write_b128 v60, v[{T+4}:{T+7}] offset:16")
        a("s_mov_b64 exec, -1\ns_waitcnt lgkmcnt(0)")
        a(f"v_and_b32 v60, 7, v1\nv_lshlrev_b32 v60, 2, v60\nv_add_u32 v60, v60, v2\nv_lshlrev_b32 v60, 2, v60\nv_add_u32 v60, {HL}, v60")
        a("ds_read_b32 v61, v60")
        a("v_mul_u32_u24 v58, 1280, v2\nv_lshlrev_b32 v59, 4, v1\nv_add_u32 v58, v58, v59")
        a("s_mul_i32 s48, s54, 1280")
        for i in range(7):
            for cb in range(5):
                a(f"buffer_load_dwordx4 v[{T+4*cb}:{T+3+4*cb}], v58, s[40:43], s48 offen offset:{256*cb} nt")
            if i < 6: a(f"s_add_u32 s48, s48, {4*1280}")
            if i == 0: a("s_waitcnt lgkmcnt(0)")
            for jj in range(4):
                a(f"v_and_b32_dpp v{A0+4*(i&1)+jj}, v61, v{MK+jj} row_newbcast:{i} row_mask:0xf bank_mask:0xf")
            A = A0 + 4 * (i & 1)
            a("s_nop 1")
            for cb in range(5):
                acc = YA + 4 * cb
                cin = "0" if i == 0 else f"v[{acc}:{acc+3}]"
                a(f"s_waitcnt vmcnt({4-cb})")
                a(f"v_mfma_f32_16x16x32_bf16 v[{acc}:{acc+3}], v[{A}:{A+3}], v[{T+4*cb}:{T+3+4*cb}], {cin}")
            a("s_nop 7")

    def ffn(self):
        a = self.a
        self.c("---- FFN unit s2: 64 hidden columns for all four rows ----")
        X, M2, A0, DG, DU = 64, 44, 20, 28, 32
        self.srd(32, 76, 2211840); self.srd(36, 78, 2211840); self.srd(40, 80, 2211840)
        a("v_lshlrev_b32 v8, 2, v1\nv_add_u32 v8, v8, v2\nv_lshlrev_b32 v8, 1, v8")
        a("s_mov_b32 s48, 0\ns_mov_b32 s49, 1280\ns_mov_b32 s50, 2560\ns_mov_b32 s51, 3840")
        for b in range(4):
            for r in range(10):
                a(f"buffer_load_ushort v{X+10*b+r}, v8, s[8:11], s{48+b} offen offset:{128*r}")
        self.const64(60, 0xAAAAAAAAAAAAAAAA)
        a("v_mov_b32 v52, 0xffff\nv_mov_b32 v53, 0xffff0000\nv_cndmask_b32_e64 v52, v52, v53, s[60:61]")
        for jj in range(2):
            self.const64(60, 0x3333333333333333 << (2 * jj))
            a(f"v_cndmask_b32_e64 v{M2+jj}, 0, v52, s[60:61]")
        a(f"v_mul_u32_u24 v9, 640, v2\nv_lshlrev_b32 v52, 2, v1\nv_add_u32 v9, v9, v52")
        for b in range(4):
            a(f"s_waitcnt vmcnt({30-10*b})")
            self.layernorm(X + 10 * b, 10, 52, 52)
            for r in range(10):
                a(f"ds_write_b32 v9, v{X+10*b+r} offset:{XNL+2560*b+64*r}")
        a("v_lshrrev_b32 v9, 2, v1\nv_lshlrev_b32 v9, 2, v9\nv_add_u32 v9, v9, v2\nv_mul_u32_u24 v10, 640, v9")
        a(f"v_add_u32 v10, {XNL}, v10")
        a("v_mul_u32_u24 v11, 3456, v2\nv_lshlrev_b32 v12, 3, v1\nv_add_u32 v11, v11, v12")
        a("s_lshl_b32 s48, s2, 7")
        GUSTEP = 4 * 3456
        if self.ffn_exp == 2:
            a("v_lshlrev_b32 v11, 3, v0\ns_mul_i32 s48, s2, 81920")
            GUSTEP = 512
        G = self.ffn_gu
        def issue(u):
            u %= G
            a(f"buffer_load_dwordx2 v[{64+4*u}:{65+4*u}], v11, s[32:35], s48 offen nt")
            a(f"buffer_load_dwordx2 v[{66+4*u}:{67+4*u}], v11, s[36:39], s48 offen nt")
            a(f"s_add_u32 s48, s48, {GUSTEP}")
        a("s_waitcnt lgkmcnt(0)")
        for u in range(G): issue(u)
        for j in range(8): a(f"v_mov_b32 v{DG+j}, 0")
        def rnd(last):
            for i in range(4): a(f"ds_read_b128 v[{128+4*i}:{131+4*i}], v10 offset:{16*i}")
            a("v_add_u32 v10, 64, v10\ns_waitcnt lgkmcnt(0)")
            for u in range(16):
                A = A0 + 2 * (u & 1)
                r = 64 + 4 * (u % G)
                for jj in range(2): a(f"v_and_b32 v{A+jj}, v{128+u}, v{M2+jj}")
                a(f"s_waitcnt vmcnt({2*(G-1) if not last else 2*min(G-1, 15-u)})\ns_nop 0")
                if self.ffn_exp != 1:
                    a(f"v_mfma_f32_16x16x16_bf16 v[{DG}:{DG+3}], v[{A}:{A+1}], v[{r}:{r+1}], v[{DG}:{DG+3}]")
                    a(f"v_mfma_f32_16x16x16_bf16 v[{DU}:{DU+3}], v[{A}:{A+1}], v[{r+2}:{r+3}], v[{DU}:{DU+3}]")
                if not last or u + G < 16: issue(u)
        a("s_mov_b32 s49, 9")
        lp = self.label("gu")
        a(f"{lp}:")
        rnd(False)
        a(f"s_sub_u32 s49, s49, 1\ns_cmp_lg_u32 s49, 0\ns_cbranch_scc1 {lp}")
        rnd(True)
        DN = self.ffn_dn
        a("v_mul_u32_u24 v11, 1280, v2\nv_lshlrev_b32 v12, 3, v1\nv_add_u32 v11, v11, v12")
        a(f"s_mul_i32 s48, s2, {64*1280}")
        def issue2(u2):
            for cb in range(10):
                r = 64 + 2 * (10 * (u2 % DN) + cb)
                a(f"buffer_load_dwordx2 v[{r}:{r+1}], v11, s[40:43], s48 offen offset:{128*cb} nt")
            a(f"s_add_u32 s48, s48, {4*1280}")
        a("s_nop 7")
        for j in range(8): self.rbf16(DG + j)
        for uu in range(DN): issue2(uu)
        for j in range(4):
            a(f"v_max_f32 v{DG+j}, 0, v{DG+j}\nv_mul_f32 v{DG+j}, v{DG+j}, v{DU+j}\nv_cvt_pk_bf16_f32 v{DG+j}, v{DG+j}, v{DG+j}")
        a("v_lshlrev_b32 v12, 8, v2\nv_lshlrev_b32 v13, 2, v1\nv_add_u32 v12, v12, v13")
        for j in range(4): a(f"ds_write_b32 v12, v{DG+j} offset:{HL+64*j}")
        a(f"s_waitcnt lgkmcnt(0)\nv_lshlrev_b32 v12, 6, v9\nv_add_u32 v12, {HL}, v12")
        for i in range(4): a(f"ds_read_b128 v[{208+4*i}:{211+4*i}], v12 offset:{16*i}")
        for j in range(40): a(f"v_mov_b32 v{144+j}, 0")
        a("s_waitcnt lgkmcnt(0)")
        for u2 in range(16):
            A = A0 + 2 * (u2 & 1)
            for jj in range(2): a(f"v_and_b32 v{A+jj}, v{208+u2}, v{M2+jj}")
            for cb in range(10):
                r = 64 + 2 * (10 * (u2 % DN) + cb)
                left = (9 - cb) + 10 * (min(u2 + DN - 1, 15) - u2)
                a(f"s_waitcnt vmcnt({left})")
                if cb == 0: a("s_nop 0")
                a(f"v_mfma_f32_16x16x16_bf16 v[{144+4*cb}:{147+4*cb}], v[{A}:{A+1}], v[{r}:{r+1}], v[{144+4*cb}:{147+4*cb}]")
            if u2 + DN < 16: issue2(u2)
        a("v_mul_u32_u24 v12, 2560, v2\nv_lshlrev_b32 v13, 4, v1\nv_add_u32 v12, v12, v13")
        a(f"s_mul_i32 s48, s2, 10240\ns_add_u32 s48, s48, {Z_OFF}\ns_nop 7")
        for cb in range(10):
            a(f"buffer_store_dwordx4 v[{144+4*cb}:{147+4*cb}], v12, s[20:23], s48 offen offset:{256*cb} sc1")
        a("s_waitcnt vmcnt(0)\nv_mov_b32 v52, 1\ns_mov_b64 exec, 1")
        a("buffer_atomic_add v52, off, s[24:27], 0 offset:128 sc1")
        a("s_mov_b64 exec, -1")

    def build(self):
        a = self.a
        a("s_cmp_ge_u32 s2, 256\ns_cbranch_scc1 L_exit")
        if self.stamps: a("s_memrealtime s[96:97]")
        a("s_load_dwordx16 s[64:79], s[0:1], 0\ns_load_dwordx8 s[80:87], s[0:1], 64")
        a("v_lshrrev_b32 v1, 6, v0\nv_and_b32 v0, 63, v0\nv_readfirstlane_b32 s3, v1")
        if self.stamps:
            for k in range(8): a(f"s_mov_b32 s{88+k}, 0")
        a("s_and_b32 s40, s2, 7\ns_lshr_b32 s41, s2, 3")
        if self.cpf:
            a(f"s_cmp_eq_u32 s3, {self.cpw}\ns_cbranch_scc0 L_nocpf\ns_getpc_b64 s[60:61]\nL_cpfpc:")
            a(f"s_sub_u32 s60, s60, L_cpfpc-{NAME}\ns_subb_u32 s61, s61, 0\ns_lshl_b32 s62, s41, 10")
            a(f"v_lshl_add_u32 v248, v0, 4, s62\nv_min_u32 v248, L_exit-{NAME}-12, v248")
            a("global_load_dwordx4 v[252:255], v248, s[60:61]\nL_nocpf:")
        if self.mapping == "m4":
            a("s_lshr_b32 s43, s41, 1\ns_and_b32 s43, s43, 3\ns_lshl_b32 s45, s43, 3\ns_add_u32 s45, s45, s40")
            a("s_lshr_b32 s44, s41, 3\ns_and_b32 s46, s41, 1")
        elif self.mapping == "m6":
            a("s_lshr_b32 s43, s41, 1\ns_and_b32 s43, s43, 3\ns_add_u32 s45, s40, s43\ns_and_b32 s45, s45, 7\ns_lshl_b32 s43, s43, 3\ns_add_u32 s45, s45, s43")
            a("s_lshr_b32 s44, s41, 3\ns_and_b32 s46, s41, 1")
        elif self.mapping == "m7":
            a("s_lshr_b32 s43, s41, 1\ns_and_b32 s43, s43, 3\ns_lshl_b32 s45, s43, 3\ns_xor_b32 s43, s40, 1\ns_add_u32 s45, s45, s43")
            a("s_lshr_b32 s44, s41, 3\ns_and_b32 s46, s41, 1")
        elif self.mapping == "m8":
            a("s_lshr_b32 s43, s41, 1\ns_and_b32 s43, s43, 3\ns_lshl_b32 s45, s40, 2\ns_add_u32 s45, s45, s43")
            a("s_lshr_b32 s44, s41, 3\ns_and_b32 s46, s41, 1")
        elif self.mapping == "m3":
            a("s_and_b32 s43, s41, 3\ns_lshl_b32 s45, s43, 3\ns_add_u32 s45, s45, s40")
            a("s_lshr_b32 s44, s41, 2\ns_and_b32 s44, s44, 3\ns_lshr_b32 s46, s41, 4")
        elif self.mapping == "n":
            a("s_and_b32 s46, s2, 1\ns_lshr_b32 s45, s2, 1\ns_and_b32 s45, s45, 31\ns_lshr_b32 s44, s2, 6")
        a("s_lshl_b32 s47, s44, 5\ns_add_u32 s47, s47, s45\ns_lshl_b32 s47, s47, 1\ns_add_u32 s47, s47, s46")
        if self.hfirst:
            a("s_cmp_lt_u32 s3, 4\ns_cbranch_scc1 L_stream\nL_helper:")
            self.helper()
            a("L_stream:")
            self.stream()
            a("L_exit:\ns_endpgm")
            return "\n".join(self.L)
        a("s_cmp_ge_u32 s3, 4\ns_cbranch_scc1 L_helper")
        if self.Rsplit:
            if self.splitx: a("s_and_b32 s18, s2, 1\ns_cmp_eq_u32 s18, 0\ns_cbranch_scc0 L_streamB")
            else: a("s_cmp_eq_u32 s46, 0\ns_cbranch_scc0 L_streamB")
            self.R = self.Rsplit[0]; self.stream()
            a("L_streamB:")
            self.R = self.Rsplit[1]; self.stream()
        else:
            self.stream()
        a("L_helper:")
        self.helper()
        a("L_exit:\ns_endpgm")
        return "\n".join(self.L)

HEADER = open("parallel_sum__gqa_block_cached__glu_gated_reglu__decode.s.ref").read().split("; Override launch")[0]

def full_source(g, nfv=256):
    body = g.build()
    s = HEADER
    s += "; Override launch geometry by editing the next line (default: block=256,\n"
    s += f"; @launch grid=(256,1,1) block=(512,1,1) lds={LDS_SIZE}\n"
    s += f""".amdgcn_target "amdgcn-amd-amdhsa--gfx950"
.text
.globl {NAME}
.p2align 8
.type {NAME},@function
{NAME}:
{body}
.section .rodata,"a"
.p2align 6
.amdhsa_kernel {NAME}
  .amdhsa_next_free_vgpr {nfv}
  .amdhsa_next_free_sgpr 102
  .amdhsa_accum_offset 256
  .amdhsa_group_segment_fixed_size 0
  .amdhsa_kernarg_size 96
  .amdhsa_user_sgpr_count 2
  .amdhsa_user_sgpr_kernarg_segment_ptr 1
  .amdhsa_system_sgpr_workgroup_id_x 1
.end_amdhsa_kernel
"""
    return s

if __name__ == "__main__":
    import argparse
    p = argparse.ArgumentParser()
    p.add_argument("-R", type=int, default=5); p.add_argument("--PG", type=int, default=1)
    p.add_argument("--stamps", action="store_true"); p.add_argument("--map", default="m4")
    p.add_argument("-o", default="/dev/stdout")
    x = p.parse_args()
    g = Gen(R=x.R, PG=x.PG, stamps=x.stamps, mapping=x.map)
    open(x.o, "w").write(full_source(g))
```

```python
import struct, sys
NAME = "parallel_sum__gqa_block_cached__glu_gated_reglu__decode_kernel"

def f2h(x):
    return "0x%08x" % struct.unpack("<I", struct.pack("<f", x))[0]

LOG2E = f2h(1.4426950408889634)
SCALE = f2h(128 ** -0.5)
INV640 = f2h(1.0 / 640.0)
EPS = f2h(1e-5)

QP, MW, FW, OP, YP, SC, XNL, HL, LDS_SIZE = 0, 2048, 2064, 4096, 6144, 16384, 32768, 43008, 45056
Y_OFF, ML_OFF, Z_OFF, PS_OFF = 0x100000, 0x1A0000, 0x1B0000, 0x280000
GL_OFF = 0x40000
P_OFF = Z_OFF
PRG, MODE = 3072, 2304
F7 = 2096
SPIN_MAX = 200000

class Gen:
    def __init__(self, lb=0, gg=0, eb=0, ebn=16, ackb1=False, owarm=0, hfirst=False, cpf=0, cpw=0, R=5, PG=1, stamps=False, mapping="m4", sleep=True, b0=True, rot=True, pre=0, wo_win=2, ffn_gu=8, ffn_dn=2, skip_wo=False, skip_ffn=False, wo_flags='nt', wo_rot=False, wq_flags='', early=False, ffn_exp=0, Rsplit=None, ctl=False, Rlo=5, Rhi=8, csh=11, cbias=1024, pstep=4, cthr=896, cloc=True, mld='nt', mst='', f2=False, dbgst=False, kst=None, vst=None, splitx=False, gx=0, gsh=0, xclr=0, xzc=0, clw='w4', psp=0, flag='at', qo=0, b0at=39, fe=0, yp=1, schk=0, ofl='', tl=0, vwarm=0, spf=0, spst=128, spx=1, gM=1, gbias=0, f1win=0, sigk=0, xsig=0, xchk=0, pfl='sc1', mlfl='sc1', psfl='sc1'):
        self.eb, self.ebn, self.lb, self.gg = eb, ebn, lb, gg
        self.cpf, self.cpw, self.hfirst, self.owarm, self.ackb1 = cpf, cpw, hfirst, owarm, ackb1
        self.xclr, self.xzc = xclr, xzc
        self.clw, self.psp, self.flag = clw, psp, flag
        self.qo, self.b0at, self.fe, self.yp = qo, b0at, fe, yp
        self.schk, self.xsig, self.sigk, self.f1win = schk, xsig, sigk, f1win
        self.gM, self.gbias, self.ofl = gM, gbias, ofl
        self.spf, self.spst, self.spx, self.vwarm, self.tl = spf, spst, spx, vwarm, tl
        self.xchk, self.pfl, self.mlfl, self.psfl = xchk, pfl, mlfl, psfl
        self.gx, self.gsh = gx, gsh
        self.splitx = splitx
        self.kst, self.vst = kst, vst
        self.f2 = f2
        self.dbgst = dbgst
        if dbgst: stamps = True
        self.cloc, self.mld, self.mst = cloc, mld, mst
        self.Rsplit = Rsplit
        self.ctl, self.Rlo, self.Rhi, self.csh, self.cbias, self.pstep, self.cthr = ctl, Rlo, Rhi, csh, cbias, pstep, cthr
        self.R, self.PG, self.stamps, self.mapping, self.sleep = R, PG, stamps, mapping, sleep
        self.skip_wo, self.skip_ffn, self.wo_flags, self.wo_rot = skip_wo, skip_ffn, wo_flags, wo_rot
        self.wq_flags, self.early, self.ffn_exp = wq_flags, early, ffn_exp
        self.b0, self.rot, self.pre, self.wo_win, self.ffn_gu, self.ffn_dn = b0, rot, pre, wo_win, ffn_gu, ffn_dn
        self.L = []
        self.uid = 0
        self.block = 512
        self.lds = LDS_SIZE
    def a(self, s):
        for line in s.split("\n"):
            line = line.strip()
            if line: self.L.append("    " + line if not line.endswith(":") else line)
    def c(self, s):
        self.L.append("    ; " + s)
    def label(self, p):
        self.uid += 1
        return f"L_{p}_{self.uid}"
    def stamp(self, k):
        if self.stamps:
            self.a(f"s_memrealtime s[98:99]\ns_waitcnt lgkmcnt(0)\ns_mov_b32 s{88+k}, s98")
    def stamp_flush(self, role="s"):
        if not self.stamps: return
        a = self.a
        if self.dbgst:
            skip = self.label("nodbg")
            a(f"s_and_b32 s56, s3, 3\ns_cmp_eq_u32 s56, 0\ns_cbranch_scc0 {skip}")
            if role == "s": a(f"s_lshr_b32 s56, s2, 3\ns_and_b32 s56, s56, 3\ns_cmp_eq_u32 s56, 0\ns_cbranch_scc0 {skip}")
            else: a(f"s_cmp_lt_u32 s2, 80\ns_cbranch_scc0 {skip}")
            a("s_mov_b32 s56, s84\ns_mov_b32 s57, s85\ns_mov_b32 s58, 256\ns_mov_b32 s59, 0x20000")
            a("s_mov_b64 exec, 1")
            def at(op, word, sreg, inv=False, low=False):
                a(f"v_mov_b32 v251, s{sreg}")
                if inv: a("v_not_b32 v251, v251")
                if low: a("v_and_b32 v251, 0xfffff, v251")
                a(f"buffer_atomic_{op} v251, off, s[56:59], 0 offset:{4*word} sc1\ns_nop 1")
            at("umax", 1, 96, inv=True); at("umax", 2, 96)
            if role == "s":
                at("umax", 3, 89, inv=True); at("umax", 4, 89); at("umax", 5, 90, inv=True); at("umax", 6, 90)
                at("umax", 7, 91, inv=True); at("umax", 8, 91); at("add", 11, 91, low=True); at("add", 12, 90, low=True)
            else:
                at("umax", 9, 93); at("umax", 10, 92); at("umax", 13, 88, inv=True); at("umax", 14, 88)
            a("s_mov_b64 exec, -1")
            a(f"{skip}:")
            return
        a("s_mov_b32 s56, s86\ns_mov_b32 s57, s87\ns_mov_b32 s58, 0x100000\ns_mov_b32 s59, 0x20000")
        a("s_lshl_b32 s60, s2, 3\ns_add_u32 s60, s60, s3\ns_lshl_b32 s60, s60, 6")
        a("s_mov_b64 exec, 1")
        a("v_mov_b32 v250, 0\ns_mov_b32 s95, s96")
        for k in range(8):
            a(f"v_mov_b32 v251, s{88+k}")
            a(f"buffer_store_dword v251, v250, s[56:59], s60 offen offset:{4*k} {'sc1' if self.ofl or not self.ctl else ''}")
            a("s_nop 1")
        a("s_mov_b64 exec, -1")

    def srd(self, base, ptr, nrec):
        self.a(f"s_mov_b32 s{base}, s{ptr}\ns_mov_b32 s{base+1}, s{ptr+1}\ns_mov_b32 s{base+2}, {hex(nrec)}\ns_mov_b32 s{base+3}, 0x20000")
    def const64(self, sreg, val):
        self.a(f"s_mov_b32 s{sreg}, {hex(val & 0xffffffff)}\ns_mov_b32 s{sreg+1}, {hex(val >> 32)}")
    def masks16x32(self, m0, tmp):
        a = self.a
        self.const64(60, 0xAAAAAAAAAAAAAAAA)
        a(f"v_mov_b32 v{tmp}, 0xffff\nv_mov_b32 v{tmp+1}, 0xffff0000")
        a(f"v_cndmask_b32_e64 v{tmp}, v{tmp}, v{tmp+1}, s[60:61]")
        for jj in range(4):
            self.const64(60, 0x0303030303030303 << (2 * jj))
            a(f"v_cndmask_b32_e64 v{m0+jj}, 0, v{tmp}, s[60:61]")
    def wave_reduce(self, v, op, sdst):
        a = self.a
        for r in (8, 4, 2, 1):
            a(f"{op}_dpp v{v}, v{v}, v{v} row_ror:{r} row_mask:0xf bank_mask:0xf\ns_nop 1")
        a(f"{op}_dpp v{v}, v{v}, v{v} row_bcast:15 row_mask:0xa bank_mask:0xf\ns_nop 1")
        a(f"{op}_dpp v{v}, v{v}, v{v} row_bcast:31 row_mask:0xc bank_mask:0xf\ns_nop 1")
        a(f"v_readlane_b32 s{sdst}, v{v}, 63\ns_nop 1")
    def rbf16(self, v):
        self.a(f"v_cvt_pk_bf16_f32 v{v}, v{v}, v{v}\nv_and_b32 v{v}, 0xffff0000, v{v}")
    def layernorm(self, xr, n_out, t0, s0):
        a = self.a
        for r in range(10): a(f"v_lshlrev_b32 v{xr+r}, 16, v{xr+r}")
        a(f"v_add_f32 v{t0}, v{xr}, v{xr+1}\nv_add_f32 v{t0+1}, v{xr+2}, v{xr+3}")
        for r in range(4, 10, 2):
            a(f"v_add_f32 v{t0}, v{t0}, v{xr+r}\nv_add_f32 v{t0+1}, v{t0+1}, v{xr+r+1}")
        a(f"v_add_f32 v{t0}, v{t0}, v{t0+1}\ns_nop 1")
        self.wave_reduce(t0, "v_add_f32", s0)
        a(f"v_mov_b32 v{t0}, {INV640}\nv_mul_f32 v{t0}, s{s0}, v{t0}")
        a(f"v_sub_f32 v{t0+1}, v{xr}, v{t0}\nv_mul_f32 v{t0+2}, v{t0+1}, v{t0+1}")
        for r in range(1, 10):
            a(f"v_sub_f32 v{t0+1}, v{xr+r}, v{t0}\nv_fmac_f32 v{t0+2}, v{t0+1}, v{t0+1}")
        a("s_nop 1")
        self.wave_reduce(t0 + 2, "v_add_f32", s0 + 1)
        a(f"v_mov_b32 v{t0+2}, {INV640}\nv_mul_f32 v{t0+2}, s{s0+1}, v{t0+2}")
        self.rbf16(t0); self.rbf16(t0 + 2)
        a(f"v_add_f32 v{t0+2}, {EPS}, v{t0+2}")
        self.rbf16(t0 + 2)
        a(f"v_sqrt_f32 v{t0+2}, v{t0+2}\ns_nop 0")
        self.rbf16(t0 + 2)
        a(f"v_rcp_f32 v{t0+2}, v{t0+2}\ns_nop 0")
        for r in range(n_out):
            a(f"v_sub_f32 v{xr+r}, v{xr+r}, v{t0}")
            self.rbf16(xr + r)
            a(f"v_mul_f32 v{xr+r}, v{xr+r}, v{t0+2}")
            a(f"v_cvt_pk_bf16_f32 v{xr+r}, v{xr+r}, v{xr+r}")
    def spin_head(self, name, scnt):
        l = self.label(name); d = self.label(name + "_done")
        self.a(f"s_mov_b32 s{scnt}, {SPIN_MAX}\n{l}:")
        return l, d
    def reduce_hq(self, v0, n, t):
        a = self.a
        a("s_nop 1")
        for i in range(n): a(f"v_add_f32_dpp v{v0+i}, v{v0+i}, v{v0+i} row_ror:8 row_mask:0xf bank_mask:0xf")
        for sw in ("v_permlane16_swap_b32", "v_permlane32_swap_b32"):
            for i in range(n): a(f"v_mov_b32 v{t+i}, v{v0+i}")
            a("s_nop 1")
            for i in range(n): a(f"{sw} v{t+i}, v{v0+i}")
            a("s_nop 1")
            for i in range(n): a(f"v_add_f32 v{v0+i}, v{v0+i}, v{t+i}")

    def stream(self):
        a, R, PG = self.a, self.R, self.PG
        vK, vV, vSW, vSR, vMax, vS, vT0, vT1, vP, vSn, vE = 1, 2, 3, 4, 5, 6, 7, 8, 9, 10, 11
        MK, AQ, D, ACC, PA = 12, 16, 32, 40, 44
        RING = 64
        TQ = 192
        self.c("==== streaming waves (0..3): K then V of this workgroup's 4096 keys ====")
        a(f"v_and_b32 v7, 15, v0\nv_lshrrev_b32 v8, 4, v0")
        a(f"v_lshrrev_b32 v9, 2, v7\nv_lshlrev_b32 v{vK}, 8, v9")
        a(f"v_lshlrev_b32 v10, 6, v8\nv_or_b32 v{vK}, v{vK}, v10")
        a(f"v_and_b32 v10, 3, v7\nv_lshlrev_b32 v10, 4, v10\nv_or_b32 v{vK}, v{vK}, v10")
        a(f"v_lshlrev_b32 v{vV}, 4, v0")
        a("s_lshl_b32 s16, s47, 20\ns_lshl_b32 s17, s3, 12\ns_add_u32 s16, s16, s17\ns_mov_b32 s17, s16")
        a("s_waitcnt lgkmcnt(0)")
        self.stamp(6)
        self.srd(8, 66, 0x10000000)
        self.srd(12, 68, 0x10000000)
        if self.ctl: a("s_add_u32 s14, s47, 1\ns_lshl_b32 s14, s14, 20")
        if self.clw == 's':
            self.srd(24, 86, 0x40000000)
            l3, ld = self.label("clr3"), self.label("clrd")
            a("v_mov_b32 v56, -1\nv_mov_b32 v57, -1\nv_mov_b32 v58, -1\nv_mov_b32 v59, -1\nv_lshlrev_b32 v60, 4, v0")
            a(f"s_cmp_eq_u32 s3, 3\ns_cbranch_scc1 {l3}")
            a(f"s_mul_i32 s48, s47, 2560\ns_add_u32 s48, s48, {Y_OFF}\ns_lshl_b32 s49, s3, 10\ns_add_u32 s48, s48, s49")
            a("s_cmp_eq_u32 s3, 2\ns_cselect_b32 exec_hi, 0, -1")
            a("buffer_store_dwordx4 v[56:59], v60, s[24:27], s48 offen sc1")
            a(f"s_mov_b64 exec, -1\ns_branch {ld}")
            a(f"{l3}:")
            a(f"s_lshl_b32 s48, s47, 7\ns_add_u32 s48, s48, {ML_OFF}\ns_mov_b64 exec, 1")
            a("buffer_store_dwordx2 v[56:57], v60, s[24:27], s48 offen sc1")
            if self.ctl:
                self.slot_addr(49, 50)
                a(f"v_mov_b32 v58, 0\nbuffer_store_dword v58, v60, s[24:27], s49 offen {'' if self.psp == 1 else 'sc1'}")
                if self.gx:
                    nl = self.label("nolead")
                    a(f"s_cmp_ge_u32 s2, 248\ns_cbranch_scc0 {nl}")
                    a(f"buffer_store_dword v58, v60, s[24:27], s50 offen offset:128 {'' if self.psp == 1 else 'sc1'}")
                    a(f"s_and_b32 s49, s2, 7\ns_lshl_b32 s49, s49, {8 if self.gx == 3 else 2}\ns_add_u32 s49, s49, {GL_OFF}")
                    a("buffer_store_dword v58, v60, s[24:27], s49 offen sc1")
                    a(f"{nl}:")
            a("s_mov_b64 exec, -1")
            a(f"{ld}:")
            if not self.spf and self.pre == 0 and self.b0 and self.b0at == 39: a("s_waitcnt vmcnt(0)")
        if self.spf:
            for i in range(self.spf):
                off = i * self.spst
                off = (off >> 12) * 0x4000 + (off & 4095)
                if i and i % (15 if self.spx == 1 else 7) == 0: a("s_waitcnt lgkmcnt(0)")
                if self.spx == 1: a(f"s_load_dword s100, s[66:67], s16 offset:{hex(off)}")
                else: a(f"s_load_dwordx2 s[100:101], s[66:67], s16 offset:{hex(off)}")
            if self.clw == 's' and self.pre == 0 and self.b0 and self.b0at == 39: a("s_waitcnt vmcnt(0)")
        st = {"issued": 0}
        def slot(n):
            if n < 16 * PG: return RING + 4 * n
            return RING + 4 * (n % 16)
        def issue(n):
            t = n & 3
            if n < 256:
                a(f"buffer_load_dwordx4 v[{slot(n)}:{slot(n)+3}], v{vK}, s[8:11], s16 offen offset:{t*1024} nt")
                if t == 3: a("s_add_u32 s16, s16, 0x4000")
            else:
                a(f"buffer_load_dwordx4 v[{slot(n)}:{slot(n)+3}], v{vV}, s[12:15], s17 offen offset:{t*1024} nt")
                if t == 3: a("s_add_u32 s17, s17, 0x4000")
        for n in range(16 * PG):
            if self.b0 and n == self.pre:
                if self.clw == 's' and self.pre and self.b0at == 39 and not self.ackb1: a(f"s_waitcnt vmcnt({self.pre})")
                a("s_barrier")
            issue(n)
        self.stamp(0)
        self.masks16x32(MK, 7)
        self.const64(48, 0x2222222222222222); self.const64(50, 0x4444444444444444); self.const64(52, 0x8888888888888888)
        a("v_and_b32 v7, 15, v0\nv_lshrrev_b32 v8, 4, v0\nv_lshrrev_b32 v9, 2, v7\nv_and_b32 v10, 3, v7")
        a(f"v_lshlrev_b32 v9, 4, v9\nv_lshlrev_b32 v{vSW}, 2, v8\nv_add_u32 v{vSW}, v{vSW}, v9\nv_add_u32 v{vSW}, v{vSW}, v10")
        a(f"v_lshlrev_b32 v{vSW}, 2, v{vSW}")
        a(f"s_lshl_b32 s18, s3, 12\ns_add_u32 s18, s18, {SC}")
        a(f"v_add_u32 v{vSW}, s18, v{vSW}")
        a(f"v_lshlrev_b32 v{vSR}, 2, v0\nv_add_u32 v{vSR}, s18, v{vSR}")
        a(f"v_mov_b32 v{vMax}, 0xff800000")
        a(f"v_lshlrev_b32 v9, 2, v8\nv_add_u32 v9, v9, v10\nv_lshlrev_b32 v9, 5, v9")
        vProg, vPA, vMode, vMA = 52, 53, 54, 55
        if self.ctl:
            a(f"s_lshl_b32 s21, s3, 8\ns_add_u32 s21, s21, {PRG}\nv_lshlrev_b32 v{vPA}, 2, v0\nv_add_u32 v{vPA}, s21, v{vPA}")
            a(f"s_lshl_b32 s21, s3, 2\ns_add_u32 s21, s21, {MODE}\nv_mov_b32 v{vMA}, s21")
            a(f"v_mov_b32 v{vProg}, 0\nv_mov_b32 v{vMode}, {R}")
            a(f"ds_write_b32 v{vPA}, v{vProg}\nds_write_b32 v{vMA}, v{vMode}\ns_waitcnt lgkmcnt(0)")
        if self.clw == 's' and (not self.b0 or self.b0at != 39 or self.ackb1): a(f"s_waitcnt vmcnt({16*PG})")
        a("s_barrier")
        for hw in range(4):
            a(f"ds_read_b128 v[{TQ+8*hw}:{TQ+8*hw+3}], v9 offset:{QP+512*hw}")
            a(f"ds_read_b128 v[{TQ+8*hw+4}:{TQ+8*hw+7}], v9 offset:{QP+512*hw+16}")
        a("s_waitcnt lgkmcnt(0)")
        for j in range(8): a(f"v_add_f32 v{TQ+j}, v{TQ+j}, v{TQ+8+j}\nv_add_f32 v{TQ+16+j}, v{TQ+16+j}, v{TQ+24+j}")
        for j in range(8): a(f"v_add_f32 v{TQ+j}, v{TQ+j}, v{TQ+16+j}")
        for jj in range(4): a(f"v_cvt_pk_bf16_f32 v{TQ+8+jj}, v{TQ+2*jj}, v{TQ+2*jj+1}")
        for t in range(4):
            self.const64(60, 0x000F000F000F000F << (4 * t))
            for jj in range(4): a(f"v_cndmask_b32_e64 v{AQ+4*t+jj}, 0, v{TQ+8+jj}, s[60:61]")
        a("s_nop 1")
        self.stamp(1)

        issued = [16 * PG]
        def kgroup(G, mode):
            for s in range(16):
                n = 16 * G + s
                tau, t = s >> 2, s & 3
                a(f"s_waitcnt vmcnt({issued[0]-1-n})")
                cin = "0" if t == 0 else f"v[{D}:{D+3}]"
                mf = f"v_mfma_f32_16x16x32_bf16 v[{D}:{D+3}], v[{AQ+4*t}:{AQ+4*t+3}], v[{slot(n)}:{slot(n)+3}], {cin}"
                nxt = None
                if n < 16 * PG:
                    if n < R: nxt = 16 * PG + n
                else:
                    nxt = n + R
                early = self.early and nxt is not None and slot(nxt) != slot(n)
                if not early: a(mf)
                if nxt is not None:
                    assert nxt == issued[0], (n, nxt, issued)
                    issue(nxt); issued[0] += 1
                if early: a(mf)
                if t == 3:
                    a("s_nop 7")
                    a(f"v_mov_b32_dpp v{vT0}, v{D} quad_perm:[0,0,0,0] row_mask:0xf bank_mask:0xf")
                    a(f"v_mov_b32_dpp v{vT1}, v{D+2} quad_perm:[2,2,2,2] row_mask:0xf bank_mask:0xf")
                    a("s_nop 0")
                    a(f"v_add_f32_dpp v{vT0}, v{D+1}, v{vT0} quad_perm:[1,1,1,1] row_mask:0xf bank_mask:0xf")
                    a(f"v_add_f32_dpp v{vT1}, v{D+3}, v{vT1} quad_perm:[3,3,3,3] row_mask:0xf bank_mask:0xf")
                    if tau == 0:
                        a(f"v_add_f32 v{vS}, v{vT0}, v{vT1}")
                    else:
                        a(f"v_add_f32 v{vT0}, v{vT0}, v{vT1}")
                        a(f"v_cndmask_b32_e64 v{vS}, v{vS}, v{vT0}, s[{46+2*tau}:{47+2*tau}]")
            self.rbf16(vS)
            a(f"v_mul_f32 v{vS}, {SCALE}, v{vS}")
            self.rbf16(vS)
            a(f"v_max_f32 v{vMax}, v{vMax}, v{vS}")
            a(f"ds_write_b32 v{vSW}, v{vS}")
            a(f"v_add_u32 v{vSW}, 0x100, v{vSW}")
        for G in range(PG): kgroup(G, "first")
        a(f"s_mov_b32 s19, {15-PG}")
        lk = self.label("K")
        a(f"{lk}:")
        save = issued[0]
        kgroup(PG, "steady")
        if self.kst and self.stamps:
            a("s_memrealtime s[98:99]\ns_waitcnt lgkmcnt(0)")
            for slot_, G_ in zip((4, 5), self.kst):
                a(f"s_cmp_eq_u32 s19, {15-G_}\ns_cselect_b32 s{88+slot_}, s98, s{88+slot_}")
        a(f"s_sub_u32 s19, s19, 1\ns_cmp_lg_u32 s19, 0\ns_cbranch_scc1 {lk}")
        issued[0] = save + 16 * (15 - PG)
        kgroup(15, "last")
        a("s_nop 1")
        self.wave_reduce(vMax, "v_max_f32", 20)
        a(f"v_mov_b32 v{vMax}, s20")
        a(f"s_lshl_b32 s18, s3, 2\ns_add_u32 s18, s18, {MW}\nv_mov_b32 v7, s18")
        a(f"ds_write_b32 v7, v{vMax}")
        a(f"ds_read_b32 v{vSn}, v{vSR}\nv_add_u32 v{vSR}, 0x100, v{vSR}")
        for j in range(4): a(f"v_mov_b32 v{ACC+j}, 0")
        self.stamp(2)
        def abuild(s):
            tau, t = s >> 2, s & 3
            for jj in range(4):
                a(f"v_and_b32_dpp v{PA+4*(s&1)+jj}, v{vP}, v{MK+jj} row_newbcast:{4*t+tau} row_mask:0xf bank_mask:0xf")
        def vgroup(G, last):
            a("s_waitcnt lgkmcnt(0)")
            a(f"v_sub_f32 v{vE}, v{vSn}, v{vMax}\nv_mul_f32 v{vE}, {LOG2E}, v{vE}\nv_exp_f32 v{vE}, v{vE}")
            if not last:
                a(f"ds_read_b32 v{vSn}, v{vSR}\nv_add_u32 v{vSR}, 0x100, v{vSR}")
            else:
                a("s_nop 0")
            a(f"v_cvt_pk_bf16_f32 v{vP}, v{vE}, v{vE}\ns_nop 1")
            abuild(0)
            for s in range(16):
                n = 256 + 16 * G + s
                A = PA + 4 * (s & 1)
                mf = f"v_mfma_f32_16x16x32_bf16 v[{ACC}:{ACC+3}], v[{A}:{A+3}], v[{slot(n)}:{slot(n)+3}], v[{ACC}:{ACC+3}]"
                nxt = n + R
                early = self.early and nxt < 512
                a(f"s_waitcnt vmcnt({issued[0]-1-n})")
                if not early: a("s_nop 0\n" + mf)
                if nxt < 512:
                    assert nxt == issued[0]
                    issue(nxt); issued[0] += 1
                if early: a(mf)
                if s < 15: abuild(s + 1)
        if not self.ctl:
            a("s_mov_b32 s19, 15")
            lv = self.label("V")
            a(f"{lv}:")
            save = issued[0]
            vgroup(0, False)
            a(f"s_sub_u32 s19, s19, 1\ns_cmp_lg_u32 s19, 0\ns_cbranch_scc1 {lv}")
            issued[0] = save + 16 * 15
            vgroup(15, True)
        else:
            def vissue(n):
                t = n & 3
                a(f"buffer_load_dwordx4 v[{RING+4*(n%16)}:{RING+4*(n%16)+3}], v{vV}, s[12:15], s17 offen offset:{t*1024} nt")
                if t == 3: a("s_add_u32 s17, s17, 0x4000")
            def vhead():
                a("s_waitcnt lgkmcnt(0)")
                a(f"v_sub_f32 v{vE}, v{vSn}, v{vMax}\nv_mul_f32 v{vE}, {LOG2E}, v{vE}\nv_exp_f32 v{vE}, v{vE}")
                a(f"ds_read_b32 v{vSn}, v{vSR}\nv_add_u32 v{vSR}, 0x100, v{vSR}")
                a(f"v_cvt_pk_bf16_f32 v{vP}, v{vE}, v{vE}\ns_nop 1")
                abuild(0)
            def vstep(s, Rw, Ri):
                A = PA + 4 * (s & 1)
                a(f"s_waitcnt vmcnt({Rw-1})\ns_nop 0")
                a(f"v_mfma_f32_16x16x32_bf16 v[{ACC}:{ACC+3}], v[{A}:{A+3}], v[{RING+4*s}:{RING+4*s+3}], v[{ACC}:{ACC+3}]")
                if Ri is not None: vissue(s + Ri)
                if s < 15: abuild(s + 1)
                if (s + 1) % self.pstep == 0:
                    a(f"v_add_u32 v{vProg}, {self.pstep}, v{vProg}\nds_write_b32 v{vPA}, v{vProg}")
                if s == 13: a(f"ds_read_b32 v{vMode}, v{vMA}")
            uid = self.label("vc")
            if self.tl:
                a("v_and_b32 v7, 15, v0\nv_lshrrev_b32 v8, 4, v0\nv_and_b32 v8, 1, v8\nv_lshlrev_b32 v7, 5, v7\nv_lshlrev_b32 v8, 4, v8\nv_add_u32 v7, v7, v8")
                a(f"s_lshl_b32 s18, s3, 9\ns_add_u32 s18, s18, {OP}\nv_add_u32 v7, s18, v7")
            modes = list(range(self.Rlo, self.Rhi + 1))
            assert R in modes
            a(f"s_mov_b32 s19, 16\ns_branch {uid}_top{R}")
            for m in modes:
                a(f"{uid}_top{m}:")
                vhead(); vstep(0, m, m)
                a(f"{uid}_s1_{m}:")
                for s in range(1, 16): vstep(s, m, m)
                a(f"s_sub_u32 s19, s19, 1\ns_cmp_eq_u32 s19, 0\ns_cbranch_scc1 {uid}_done")
                if self.eb and m >= self.eb: a(f"s_cmp_eq_u32 s19, 1\ns_cbranch_scc1 {uid}_eb{m}")
                a(f"s_waitcnt lgkmcnt(0)\nv_readfirstlane_b32 s21, v{vMode}")
                if m < self.Rhi: a(f"s_cmp_gt_u32 s21, {m}\ns_cbranch_scc1 {uid}_up{m}")
                if m > self.Rlo: a(f"s_cmp_lt_u32 s21, {m}\ns_cbranch_scc1 {uid}_dn{m}")
                a(f"s_branch {uid}_top{m}")
                if m < self.Rhi:
                    a(f"{uid}_up{m}:")
                    vissue(m)
                    a(f"s_branch {uid}_top{m+1}")
                if m > self.Rlo:
                    a(f"{uid}_dn{m}:")
                    vhead(); vstep(0, m, None)
                    a(f"s_branch {uid}_s1_{m-1}")
            if self.eb:
                E = self.ebn
                for m in modes:
                    if m < self.eb: continue
                    a(f"{uid}_eb{m}:")
                    for i in range(m, E): vissue(i)
                    if m != modes[-1]: a(f"s_branch {uid}_last")
                a(f"{uid}_last:")
                vhead()
                for s in range(16):
                    vstep(s, min(E, 16 - s), s + E if s + E < 16 else None)
            a(f"{uid}_done:")
            if not self.tl: a("s_waitcnt vmcnt(0)")
        if self.tl and self.ctl:
            a(f"s_nop 7\nds_write_b128 v7, v[{ACC}:{ACC+3}]\ns_waitcnt lgkmcnt(0)")
        else:
            a("v_and_b32 v7, 15, v0\nv_lshrrev_b32 v8, 4, v0\nv_and_b32 v8, 1, v8\nv_lshlrev_b32 v7, 5, v7\nv_lshlrev_b32 v8, 4, v8\nv_add_u32 v7, v7, v8")
            a(f"s_lshl_b32 s18, s3, 9\ns_add_u32 s18, s18, {OP}\nv_add_u32 v7, s18, v7")
            a(f"s_nop 1\nds_write_b128 v7, v[{ACC}:{ACC+3}]\ns_waitcnt lgkmcnt(0)")
        self.stamp(3)
        a("s_barrier")
        self.stamp_flush()
        a("s_endpgm")

    def helper(self):
        a = self.a
        MK, A0, D, YA, W = 4, 20, 28, 32, 64
        self.c("==== helper waves (4..7): q projection, FFN, softmax denominators, output projection, final sum ====")
        a("s_sub_u32 s5, s3, 4")
        HW = 5
        self.HW = HW
        a("v_and_b32 v1, 15, v0\nv_lshrrev_b32 v2, 4, v0")
        a(f"s_mul_i32 s48, s{HW}, 40")
        a("s_lshl_b32 s52, s44, 1\ns_add_u32 s52, s52, s46\ns_mul_i32 s52, s52, 5" if self.rot else "s_mov_b32 s52, 0")
        a("s_mul_i32 s49, s44, 1280")
        a("v_lshlrev_b32 v3, 13, v2\nv_lshlrev_b32 v9, 4, v1\nv_add_u32 v3, v3, v9")
        a(f"s_mul_i32 s53, s{HW}, {160*8192}\ns_lshl_b32 s51, s45, 8\ns_add_u32 s53, s53, s51")
        a(f"s_lshl_b32 s50, s52, 15\ns_add_u32 s50, s50, s53\ns_add_u32 s51, s53, {40*32768}")
        a("s_waitcnt lgkmcnt(0)")
        self.stamp(6)
        self.srd(8, 64, 5120)
        self.srd(12, 70, 5242880)
        for r in range(10):
            t = 52 + (r & 3)
            a(f"v_add_u32 v{t}, {16*r}, v1")
            if r <= 2:
                a(f"v_add_u32 v8, s52, v{t}\nv_subrev_u32 v9, 40, v8\nv_min_u32 v8, v8, v9\nv_add_u32 v8, s48, v8")
            if r >= 2:
                a(f"v_add_u32 v{t}, s48, v{t}\nv_subrev_u32 v9, 160, v{t}\nv_min_u32 v{t}, v{t}, v9")
            if r < 2:
                a(f"v_mov_b32 v{t}, v8")
            elif r == 2:
                a(f"v_cmp_gt_u32 vcc, 8, v1\ns_nop 1\nv_cndmask_b32 v{t}, v{t}, v8, vcc")
            a(f"v_lshlrev_b32 v{t}, 2, v{t}\nv_add_u32 v{t}, v{t}, v2\nv_lshlrev_b32 v{t}, 1, v{t}")
            a(f"buffer_load_ushort v{10+r}, v{t}, s[8:11], s49 offen")
        def wq_issue(u):
            a(f"buffer_load_dwordx4 v[{W+4*u}:{W+4*u+3}], v3, s[12:15], s50 offen {self.wq_flags}")
            if u < 39: a("s_add_u32 s50, s50, 0x8000\ns_cmp_eq_u32 s50, s51\ns_cselect_b32 s50, s53, s50")
        N1 = self.qo if self.qo else 40
        for u in range(N1):
            wq_issue(u)
            if self.qo and u == self.b0at:
                if self.b0: a("s_barrier")
                self.stamp(0)
        if not self.qo:
            if self.b0: a("s_barrier")
            self.stamp(0)
        self.masks16x32(MK, 8)
        a(f"v_mov_b32 v52, -1\nv_mov_b32 v53, -1\nv_mov_b32 v54, -1\nv_mov_b32 v55, -1\nv_mov_b32 v9, {MW}\nds_write_b128 v9, v[52:55]")
        if self.fe: a(f"ds_write_b32 v9, v52 offset:{F7-MW}")
        self.srd(16, 72, 5242880)
        self.srd(20, 86, 0x40000000)
        self.srd(24, 84, 256)
        self.srd(28, 82, 5120)
        a(f"s_waitcnt vmcnt({N1})")
        self.layernorm(10, 3, 54 if self.qo else 52, 54 if self.qo else 52)
        def abuild(src, u, buf, MKr=MK):
            for jj in range(4):
                a(f"v_and_b32_dpp v{A0+4*buf+jj}, v{src}, v{MKr+jj} row_newbcast:{u} row_mask:0xf bank_mask:0xf")
        a("s_nop 1")
        abuild(10, 0, 0)
        for u in range(40):
            if u + N1 < 40:
                wq_issue(u + N1)
                if u + N1 == self.b0at:
                    if self.b0: a("s_barrier")
                    self.stamp(0)
            if u < 39: abuild(10 + ((u + 1) >> 4), (u + 1) & 15, (u + 1) & 1)
            else: a("s_nop 1")
            a(f"s_waitcnt vmcnt({min(N1, 39-u)})")
            A = A0 + 4 * (u & 1)
            cin = "0" if u == 0 else f"v[{D}:{D+3}]"
            a(f"v_mfma_f32_16x16x32_bf16 v[{D}:{D+3}], v[{A}:{A+3}], v[{W+4*u}:{W+4*u+3}], {cin}")
        a("v_lshlrev_b32 v8, 5, v1\nv_and_b32 v9, 1, v2\nv_lshlrev_b32 v9, 4, v9\nv_add_u32 v8, v8, v9")
        a(f"s_lshl_b32 s48, s{HW}, 9\nv_add_u32 v9, s48, v8")
        a(f"s_nop 3\nds_write_b128 v9, v[{D}:{D+3}] offset:{QP}\ns_waitcnt lgkmcnt(0)")
        a("s_barrier")
        self.stamp(1)
        if self.owarm:
            a("s_mov_b64 exec, 1\nbuffer_load_dword v249, off, s[28:31], 0\nbuffer_load_dword v250, off, s[28:31], 0 offset:4092\ns_mov_b64 exec, -1")
        l_wo = self.label("wo")
        l_w5 = self.label("w5") if self.clw == 's' else l_wo
        if self.fe:
            a(f"s_and_b32 s48, s{HW}, 1\ns_cmp_eq_u32 s48, 1\ns_cbranch_scc0 {l_wo}")
            a(f"s_and_b32 s48, s2, 1\ns_cmp_eq_u32 s48, {1 if self.fe == 3 else 0}\ns_cbranch_scc0 {l_w5}\ns_cmp_lt_u32 s2, 216\ns_cbranch_scc0 {l_w5}")
        else:
            a(f"s_cmp_eq_u32 s{HW}, 1\ns_cbranch_scc0 {l_wo}\ns_cmp_lt_u32 s2, {216 if self.f2 else 27}\ns_cbranch_scc0 {l_w5}")
        if self.skip_ffn:
            a("v_mov_b32 v52, 1\ns_mov_b64 exec, 1\nbuffer_atomic_add v52, off, s[24:27], 0 offset:128 sc1\ns_mov_b64 exec, -1")
        elif self.f2:
            self.ffn1()
        else:
            self.ffn()
        if self.clw == 's':
            l_sg = self.label("sig")
            a(f"s_branch {l_wo}")
            a(f"{l_w5}:")
            a(f"s_cmp_eq_u32 s{HW}, 1\ns_cbranch_scc0 {l_wo}")
            self.signal()
        a(f"{l_wo}:")
        l_nc = self.label("noclear")
        if self.clw == 'w4': self.wave4_clear(l_nc)
        self.wo_prefetch_and_rest(MK, A0, D, YA, W, HW, abuild)

    def signal(self, sr=48, now=False):
        a = self.a
        if self.xsig: return
        if self.sigk and not now: return
        a("v_mov_b32 v52, 1\ns_mov_b64 exec, 1")
        if self.flag == 'at': a("buffer_atomic_add v52, off, s[24:27], 0 sc1")
        elif self.flag.startswith('at'):
            N = int(self.flag[2:]); sh = {2: 7, 4: 6, 8: 5, 16: 4, 32: 3, 64: 2}[N]
            a(f"s_and_b32 s{sr}, s2, {N-1}\ns_lshl_b32 s{sr}, s{sr}, {sh}\nbuffer_atomic_add v52, off, s[24:27], s{sr} sc1")
        elif self.flag == 'byte': a("v_mov_b32 v53, s2\nbuffer_store_byte v52, v53, s[24:27], 0 offen sc1")
        a("s_mov_b64 exec, -1")
    def signal_check(self, name):
        a = self.a
        if self.schk:
            assert self.flag == 'at4'
            fast = self.label("chkfast")
            g = " glc" if self.schk == 1 else ""
            for i in range(4): a(f"s_load_dword s{48+i}, s[84:85], {hex(64*i)}{g}")
            a("s_waitcnt lgkmcnt(0)\ns_min_u32 s48, s48, s49\ns_min_u32 s50, s50, s51\ns_min_u32 s48, s48, s50")
            a(f"s_cmp_ge_u32 s48, 64\ns_cbranch_scc1 {fast}")
            self.schk, keep = 0, self.schk
            self.signal_check(name)
            self.schk = keep
            a(f"{fast}:")
            return
        N = int(self.flag[2:]) if self.flag.startswith('at') and self.flag != 'at' else 0
        if N: a(f"v_and_b32 v59, {N-1}, v0\nv_lshlrev_b32 v59, {({2: 7, 4: 6, 8: 5, 16: 4, 32: 3, 64: 2}[N])}, v59")
        elif self.flag == 'byte': a("v_lshlrev_b32 v59, 2, v0")
        l, d = self.spin_head(name, 48)
        if self.flag == 'at':
            a("buffer_load_dword v58, off, s[24:27], 0 sc1\ns_waitcnt vmcnt(0)\nv_cmp_gt_u32 vcc, 256, v58")
        else:
            a("buffer_load_dword v58, v59, s[24:27], 0 offen sc1\ns_waitcnt vmcnt(0)")
            if self.flag == 'byte': a("v_cmp_ne_u32 vcc, 0x01010101, v58")
            else: a(f"v_cmp_gt_u32 vcc, {256 // N}, v58")
        a(f"s_cbranch_vccz {d}")
        a(f"s_sub_u32 s48, s48, 1\ns_cmp_lg_u32 s48, 0\ns_cbranch_scc1 {l}")
        a(f"{d}:")

    def wave4_clear(self, l_nc):
        a = self.a
        HW = self.HW
        a(f"s_cmp_eq_u32 s{HW}, {7 if self.xclr == 2 else 0}\ns_cbranch_scc0 {l_nc}")
        a("v_mov_b32 v52, -1\nv_mov_b32 v53, -1\nv_mov_b32 v54, -1\nv_mov_b32 v55, -1")
        a(f"s_mul_i32 s48, s47, 2560\ns_add_u32 s48, s48, {Y_OFF}\nv_lshlrev_b32 v9, 4, v0")
        a("buffer_store_dwordx4 v[52:55], v9, s[20:23], s48 offen sc1")
        a("buffer_store_dwordx4 v[52:55], v9, s[20:23], s48 offen offset:1024 sc1")
        a("s_mov_b32 exec_hi, 0")
        a("buffer_store_dwordx4 v[52:55], v9, s[20:23], s48 offen offset:2048 sc1")
        a("s_mov_b64 exec, 1")
        a(f"s_lshl_b32 s49, s47, 7\ns_add_u32 s49, s49, {ML_OFF}")
        a("buffer_store_dwordx2 v[52:53], v9, s[20:23], s49 offen sc1")
        if self.ctl:
            self.slot_addr(49, 50)
            a(f"v_mov_b32 v56, 0\nbuffer_store_dword v56, v9, s[20:23], s49 offen {'' if self.psp else 'sc1'}")
            if self.gx:
                nl = self.label("nolead")
                a(f"s_cmp_ge_u32 s2, 248\ns_cbranch_scc0 {nl}")
                a("buffer_store_dword v56, v9, s[20:23], s50 offen offset:128 sc1")
                a(f"s_and_b32 s49, s2, 7\ns_lshl_b32 s49, s49, 2\ns_add_u32 s49, s49, {GL_OFF}")
                a("buffer_store_dword v56, v9, s[20:23], s49 offen sc1")
                a(f"{nl}:")
        a("s_waitcnt vmcnt(0)")
        a("v_mov_b32 v52, 1")
        if not self.xclr: a("buffer_atomic_add v52, off, s[24:27], 0 sc1")
        a("s_mov_b64 exec, -1")
        a(f"{l_nc}:")

    def wo_prefetch_and_rest(self, MK, A0, D, YA, W, HW, abuild):
        a = self.a
        a("v_mul_u32_u24 v3, 1280, v2\nv_lshlrev_b32 v9, 4, v1\nv_add_u32 v3, v3, v9")
        a(f"s_lshl_b32 s48, s45, 7\ns_lshl_b32 s49, s{HW}, 5\ns_add_u32 s48, s48, s49\ns_mul_i32 s48, s48, 1280")
        if self.sigk:
            a(f"s_lshr_b32 s58, s2, {3 + self.sigk - 1}\ns_cmp_eq_u32 s{HW}, 1\ns_cselect_b32 s58, s58, -1")
        for u in range(8):
            if self.skip_wo: break
            for cb in range(5):
                r = W + 4 * (5 * u + cb)
                if self.wo_win and 5 * u + cb >= self.wo_win: a(f"s_waitcnt vmcnt({self.wo_win-1})")
                a(f"buffer_load_dwordx4 v[{r}:{r+3}], v3, s[16:19], s48 offen offset:{256*cb} {self.wo_flags}")
                if self.sigk and 5 * u + cb < (32 >> (self.sigk - 1)):
                    sk = self.label("sk")
                    a(f"s_cmp_eq_u32 s58, {5*u+cb}\ns_cbranch_scc0 {sk}")
                    self.signal(59, True)
                    a(f"{sk}:")
            if u < 7: a(f"s_add_u32 s48, s48, {4*1280}")
        if self.vwarm:
            lw = self.label("novw")
            a(f"s_cmp_eq_u32 s{HW}, 3\ns_cbranch_scc0 {lw}\ns_lshl_b32 s49, s47, 20")
            if self.vwarm == 1:
                self.srd(32, 68, 0x10000000)
                a("s_mov_b64 exec, 1\nbuffer_load_dword v60, off, s[32:35], s49\ns_mov_b64 exec, -1")
            else:
                a("s_load_dword s100, s[68:69], s49")
            a(f"{lw}:")
        l_b2 = self.label("toB2")
        a(f"s_cmp_eq_u32 s{HW}, 0\ns_cbranch_scc0 {l_b2}")
        self.wave4_mid()
        l_b3 = self.label("toB2b")
        if self.ctl or self.f2: a(f"s_branch {l_b3}")
        a(f"{l_b2}:")
        if self.f2:
            for j in range(20): a(f"v_mov_b32 v{YA+j}, 0")
        if self.ctl:
            a(f"s_cmp_eq_u32 s{HW}, 2\ns_cbranch_scc0 {l_b3}")
            self.monitor()
        if self.ctl or self.f2: a(f"{l_b3}:")
        a("s_waitcnt vmcnt(0)")
        a(f"v_and_b32 v8, 7, v1\nv_lshlrev_b32 v8, 2, v8\nv_add_u32 v8, v8, v2\nv_lshlrev_b32 v8, 2, v8\ns_lshl_b32 s48, s{HW}, 7\nv_add_u32 v8, s48, v8")
        a(f"v_mov_b32 v9, {FW}")
        a("v_lshlrev_b32 v10, 5, v1\nv_and_b32 v11, 1, v2\nv_lshlrev_b32 v11, 4, v11\nv_add_u32 v10, v10, v11")
        a(f"s_mul_i32 s48, s{HW}, 2560\nv_add_u32 v10, s48, v10")
        a(f"s_mul_i32 s48, s{HW}, 640\nv_lshlrev_b32 v11, 4, v0\nv_add_u32 v11, s48, v11")
        a(f"s_mul_i32 s49, s47, 2560\ns_add_u32 s49, s49, {Y_OFF}")
        self.stamp(2)
        a("s_barrier")
        self.stamp(3)
        a("ds_read_b128 v[52:55], v9")
        for w in range(4): a(f"ds_read_b32 v{56+w}, v8 offset:{OP+512*w}")
        a("s_waitcnt lgkmcnt(0)")
        a("v_mul_f32 v56, v52, v56\nv_mul_f32 v58, v54, v58\nv_fmac_f32 v56, v53, v57\nv_fmac_f32 v58, v55, v59\nv_add_f32 v56, v56, v58")
        a("v_cvt_pk_bf16_f32 v56, v56, v56\ns_nop 1")
        abuild(56, 0, 0)
        for u in range(8):
            if u < 7: abuild(56, u + 1, (u + 1) & 1)
            else: a("s_nop 1")
            A = A0 + 4 * (u & 1)
            for cb in range(5):
                r = W + 4 * (5 * u + cb)
                acc = YA + 4 * cb
                cin = "0" if (u == 0 and not self.f2) else f"v[{acc}:{acc+3}]"
                a(f"v_mfma_f32_16x16x32_bf16 v[{acc}:{acc+3}], v[{A}:{A+3}], v[{r}:{r+3}], {cin}")
        a("s_nop 3")
        for cb in range(5):
            if cb == 4: a("s_nop 3")
            a(f"ds_write_b128 v10, v[{YA+4*cb}:{YA+4*cb+3}] offset:{YP+512*cb}")
        a("s_waitcnt lgkmcnt(0)")
        a("s_barrier")
        a("s_mov_b32 exec_hi, 0xff")
        for w in range(4): a(f"ds_read_b128 v[{64+4*w}:{64+4*w+3}], v11 offset:{YP+2560*w}")
        a("s_waitcnt lgkmcnt(0)")
        a("v_pk_add_f32 v[64:65], v[64:65], v[68:69]\nv_pk_add_f32 v[66:67], v[66:67], v[70:71]")
        a("v_pk_add_f32 v[72:73], v[72:73], v[76:77]\nv_pk_add_f32 v[74:75], v[74:75], v[78:79]")
        a("v_pk_add_f32 v[64:65], v[64:65], v[72:73]\nv_pk_add_f32 v[66:67], v[66:67], v[74:75]")
        a("buffer_store_dwordx4 v[64:67], v11, s[20:23], s49 offen sc1")
        a("s_mov_b64 exec, -1")
        self.stamp(4)
        l_fin = self.label("fin")
        a(f"s_cmp_eq_u32 s{HW}, 0\ns_cbranch_scc0 {l_fin}\ns_cmp_lt_u32 s2, 80\ns_cbranch_scc0 {l_fin}")
        self.final_reduce()
        a(f"{l_fin}:")
        self.stamp(5)
        self.stamp_flush("h")
        a("s_endpgm")

    def slot_addr(self, sa, sb):
        a = self.a
        if self.cloc:
            a(f"s_lshr_b32 s{sa}, s2, 3\ns_and_b32 s{sb}, s2, 7\ns_lshl_b32 s{sb}, s{sb}, 8\ns_add_u32 s{sb}, s{sb}, {PS_OFF}")
        else:
            a(f"s_lshr_b32 s{sa}, s2, 3\ns_add_u32 s{sb}, s{sa}, s2\ns_and_b32 s{sb}, s{sb}, 7\ns_lshl_b32 s{sb}, s{sb}, 7\ns_add_u32 s{sb}, s{sb}, {PS_OFF}")
        a(f"s_lshl_b32 s{sa}, s{sa}, 2\ns_add_u32 s{sa}, s{sa}, s{sb}")
    def monitor(self):
        a = self.a
        self.c("---- wave 6: balances the V phase by steering each streaming wave's lookahead depth ----")
        l, d = self.spin_head("mw6", 48)
        a(f"v_mov_b32 v9, {MW}\nds_read_b128 v[52:55], v9\ns_waitcnt lgkmcnt(0)")
        a("v_max3_u32 v9, v52, v53, v54\nv_max_u32 v9, v9, v55\nv_cmp_eq_u32 vcc, -1, v9")
        a(f"s_cbranch_vccz {d}")
        a(f"s_sub_u32 s48, s48, 1\ns_cmp_lg_u32 s48, 0\ns_cbranch_scc1 {l}")
        a(f"{d}:")
        if self.psp == 2: self.signal_check("clr6")
        if not self.psp:
            l, d = self.spin_head("clr6", 48)
            a("buffer_load_dword v58, off, s[24:27], 0 sc1\ns_waitcnt vmcnt(0)")
            a(f"v_cmp_gt_u32 vcc, {0 if self.xclr else 256}, v58")
            a(f"s_cbranch_vccz {d}")
            a(f"s_sub_u32 s48, s48, 1\ns_cmp_lg_u32 s48, 0\ns_cbranch_scc1 {l}")
            a(f"{d}:")
        self.slot_addr(49, 50)
        a(f"v_and_b32 v52, 3, v0\nv_lshlrev_b32 v53, 2, v52\nv_add_u32 v53, {MODE}, v53")
        a(f"v_lshlrev_b32 v52, 8, v52\nv_add_u32 v52, {PRG}, v52")
        if not self.gx:
            a("v_and_b32 v54, 31, v0\nv_lshlrev_b32 v54, 2, v54\nv_mov_b32 v9, 0\ns_mov_b32 s51, 0")
        else:
            a("v_lshlrev_b32 v54, 2, v0\nv_min_u32 v54, 128, v54\nv_mov_b32 v9, 0\ns_mov_b32 s51, 0")
            a(f"s_mov_b32 s58, 0\ns_mov_b32 s59, 0\ns_and_b32 s57, s2, 7\ns_lshl_b32 s57, s57, {8 if self.gx == 3 else 2}\ns_add_u32 s57, s57, {GL_OFF}")
        if self.lb: a(f"s_mov_b32 s34, {self.cbias}\ns_cmp_ge_u32 s2, 248\ns_cselect_b32 s34, {self.cbias + self.lb}, s34")
        l, d = self.spin_head("mon", 48)
        a("ds_read_b32 v55, v52\ns_waitcnt lgkmcnt(0)")
        a("v_add_u32_dpp v56, v55, v55 quad_perm:[1,0,3,2] row_mask:0xf bank_mask:0xf\ns_nop 1")
        a("v_add_u32_dpp v56, v56, v56 quad_perm:[2,3,0,1] row_mask:0xf bank_mask:0xf\ns_nop 1")
        a("v_readfirstlane_b32 s52, v56")
        a(f"s_nop 1\ns_cmp_ge_u32 s52, {self.cthr}\ns_cbranch_scc1 {d}")
        a(f"s_mov_b64 exec, 1\nbuffer_store_dword v56, v9, s[20:23], s49 offen {self.mst}\ns_mov_b64 exec, -1")
        a(f"buffer_load_dword v57, v54, s[20:23], s50 offen {self.mld}\ns_waitcnt vmcnt(0)")
        if self.gx:
            a("v_readlane_b32 s55, v57, 32\ns_mov_b32 exec_lo, 0\nv_mov_b32 v57, 0\ns_mov_b32 exec_lo, -1\ns_nop 1")
        self.wave_reduce(57, "v_add_u32", 53)
        if self.gx:
            a("s_lshl_b32 s53, s53, 1")
            nl = self.label("nolead")
            a(f"s_cmp_ge_u32 s2, 248\ns_cbranch_scc0 {nl}")
            if self.gM > 1: a(f"s_and_b32 s32, s48, {self.gM-1}\ns_cmp_eq_u32 s32, 0\ns_cbranch_scc0 {nl}")
            a("v_mov_b32 v58, s53\ns_mov_b64 exec, 1\nbuffer_store_dword v58, v9, s[20:23], s57 offen sc1\ns_mov_b64 exec, -1")
            if self.gx == 1:
                a(f"s_waitcnt vmcnt(0)\ns_load_dwordx8 s[32:39], s[86:87], {hex(GL_OFF)} glc\ns_waitcnt lgkmcnt(0)")
                a("s_add_u32 s32, s32, s33\ns_add_u32 s34, s34, s35\ns_add_u32 s36, s36, s37\ns_add_u32 s38, s38, s39")
                a("s_add_u32 s32, s32, s34\ns_add_u32 s36, s36, s38\ns_add_u32 s32, s32, s36")
            else:
                a(f"v_and_b32 v58, 7, v0\nv_lshlrev_b32 v58, {8 if self.gx == 3 else 2}, v58\ns_mov_b32 s32, {GL_OFF}\nbuffer_load_dword v59, v58, s[20:23], s32 offen sc1\ns_waitcnt vmcnt(0)")
                a("v_add_u32_dpp v59, v59, v59 row_ror:4 row_mask:0xf bank_mask:0xf\ns_nop 1")
                a("v_add_u32_dpp v59, v59, v59 row_ror:2 row_mask:0xf bank_mask:0xf\ns_nop 1")
                a("v_add_u32_dpp v59, v59, v59 row_ror:1 row_mask:0xf bank_mask:0xf\ns_nop 1")
                a("v_readfirstlane_b32 s32, v59\ns_nop 1")
            a("s_lshr_b32 s32, s32, 3\ns_sub_u32 s55, s32, s53")
            if self.gg == 1: a("s_lshl_b32 s55, s55, 1")
            elif self.gg == 2: a("s_ashr_i32 s33, s55, 1\ns_add_u32 s55, s55, s33")
            if self.gbias: a(f"s_add_u32 s55, s55, {self.gbias}")
            if self.gsh: a(f"s_ashr_i32 s55, s55, {self.gsh}")
            a("v_mov_b32 v58, s55\ns_mov_b64 exec, 1")
            a(f"buffer_store_dword v58, v9, s[20:23], s50 offen offset:128 {self.mst}\ns_mov_b64 exec, -1")
            if self.stamps: a("s_mov_b32 s58, s32\ns_mov_b32 s59, s53")
            a(f"{nl}:")
        a("s_sub_u32 s54, s52, s51\ns_lshl_b32 s54, s54, 6\ns_add_u32 s54, s54, s53")
        if self.gx: a("s_add_u32 s54, s54, s55")
        a(f"s_add_u32 s54, s54, {'s34' if self.lb else self.cbias}\ns_mov_b32 s51, s52")
        a("v_lshlrev_b32 v55, 8, v55\nv_sub_u32 v55, s54, v55")
        a(f"v_ashrrev_i32 v55, {self.csh}, v55\nv_add_u32 v55, {self.R}, v55")
        a(f"v_max_i32 v55, {self.Rlo}, v55\nv_min_i32 v55, {self.Rhi}, v55")
        a("ds_write_b32 v53, v55")
        a(f"s_sub_u32 s48, s48, 1\ns_cmp_lg_u32 s48, 0\ns_cbranch_scc1 {l}")
        a(f"{d}:")
        a(f"v_mov_b32 v56, 0x400\ns_mov_b64 exec, 1\nbuffer_store_dword v56, v9, s[20:23], s49 offen {self.mst}\ns_mov_b64 exec, -1")
        if self.gx:
            nl = self.label("nolead")
            a(f"s_cmp_ge_u32 s2, 248\ns_cbranch_scc0 {nl}")
            a("v_mov_b32 v58, 0x10000\ns_mov_b64 exec, 1\nbuffer_store_dword v58, v9, s[20:23], s57 offen sc1\ns_mov_b64 exec, -1")
            if self.stamps and self.clw == 'w4':
                a("s_and_b32 s32, s2, 7\ns_lshl_b32 s32, s32, 2\nv_mov_b32 v58, s58\nv_mov_b32 v59, s59\ns_mov_b64 exec, 1")
                a("buffer_store_dword v58, v9, s[24:27], s32 offen offset:64\nbuffer_store_dword v59, v9, s[24:27], s32 offen offset:96\ns_mov_b64 exec, -1")
            a(f"{nl}:")

    def wave4_mid(self):
        a = self.a
        self.c("---- wave 4: softmax statistics of this half, exchange with the other half ----")
        l, d = self.spin_head("mw", 48)
        a(f"v_mov_b32 v9, {MW}\nds_read_b128 v[52:55], v9\ns_waitcnt lgkmcnt(0)")
        a("v_max3_u32 v9, v52, v53, v54\nv_max_u32 v9, v9, v55\nv_cmp_eq_u32 vcc, -1, v9")
        a(f"s_cbranch_vccz {d}")
        if self.sleep: a("s_sleep 16")
        a(f"s_sub_u32 s48, s48, 1\ns_cmp_lg_u32 s48, 0\ns_cbranch_scc1 {l}")
        a(f"{d}:")
        self.stamp(6)
        a("v_max3_f32 v56, v52, v53, v54\nv_max_f32 v56, v56, v55")
        a(f"v_lshlrev_b32 v9, 4, v0\nv_add_u32 v9, {SC}, v9\nv_mov_b32 v57, 0\ns_mov_b32 s48, 4")
        lp = self.label("lsum")
        a(f"{lp}:")
        for i in range(4): a(f"ds_read_b128 v[{224+4*i}:{227+4*i}], v9 offset:{1024*i}")
        a("v_add_u32 v9, 4096, v9\ns_waitcnt lgkmcnt(0)")
        for i in range(16): a(f"v_sub_f32 v{224+i}, v{224+i}, v56")
        for i in range(16): a(f"v_mul_f32 v{224+i}, {LOG2E}, v{224+i}")
        for i in range(16): a(f"v_exp_f32 v{224+i}, v{224+i}")
        a("s_nop 0")
        for i in range(16): a(f"v_add_f32 v57, v57, v{224+i}")
        a(f"s_sub_u32 s48, s48, 1\ns_cmp_lg_u32 s48, 0\ns_cbranch_scc1 {lp}")
        a("s_nop 1")
        self.wave_reduce(57, "v_add_f32", 50)
        a("v_mov_b32 v57, s50")
        a(f"s_lshl_b32 s49, s47, 7\ns_add_u32 s49, s49, {ML_OFF}")
        a("v_mov_b32 v9, 0\ns_mov_b64 exec, 1")
        a(f"buffer_store_dwordx2 v[56:57], v9, s[20:23], s49 offen {self.mlfl}")
        a("s_mov_b64 exec, -1")
        if self.f2: self.ffn2()
        if self.clw == 'w4':
            l, d = self.spin_head("clr", 48)
            a("buffer_load_dword v58, off, s[24:27], 0 sc1\ns_waitcnt vmcnt(0)")
            a(f"v_cmp_gt_u32 vcc, {0 if self.xclr else 256}, v58")
            a(f"s_cbranch_vccz {d}")
            a(f"s_sub_u32 s48, s48, 1\ns_cmp_lg_u32 s48, 0\ns_cbranch_scc1 {l}")
            a(f"{d}:")
        a(f"s_xor_b32 s49, s47, 1\ns_lshl_b32 s49, s49, 7\ns_add_u32 s49, s49, {ML_OFF}\nv_mov_b32 v9, 0")
        l, d = self.spin_head("ml", 48)
        a(f"buffer_load_dwordx2 v[58:59], v9, s[20:23], s49 offen {'nt' if self.mlfl != 'sc1' else 'sc1'}\ns_waitcnt vmcnt(0)")
        a("v_max_u32 v60, v58, v59\nv_cmp_eq_u32 vcc, -1, v60")
        a(f"s_cbranch_vccz {d}")
        a(f"s_sub_u32 s48, s48, 1\ns_cmp_lg_u32 s48, 0\ns_cbranch_scc1 {l}")
        a(f"{d}:")
        a("v_max_f32 v60, v56, v58")
        a("v_sub_f32 v56, v56, v60\nv_sub_f32 v58, v58, v60")
        for i in range(4): a(f"v_sub_f32 v{52+i}, v{52+i}, v60")
        a(f"v_mul_f32 v56, {LOG2E}, v56\nv_mul_f32 v58, {LOG2E}, v58")
        for i in range(4): a(f"v_mul_f32 v{52+i}, {LOG2E}, v{52+i}")
        a("v_exp_f32 v56, v56\nv_exp_f32 v58, v58")
        for i in range(4): a(f"v_exp_f32 v{52+i}, v{52+i}")
        a("v_mul_f32 v57, v57, v56\nv_fmac_f32 v57, v59, v58\nv_rcp_f32 v57, v57\ns_nop 0")
        for i in range(4): a(f"v_mul_f32 v{52+i}, v{52+i}, v57")
        a(f"v_mov_b32 v9, {FW}\nds_write_b128 v9, v[52:55]\ns_waitcnt lgkmcnt(0)")
        l_nr = self.label("nored")
        a(f"s_cmp_lt_u32 s2, 80\ns_cbranch_scc0 {l_nr}")
        a("s_mul_i32 s62, s2, 205\ns_lshr_b32 s62, s62, 12\ns_mul_i32 s63, s62, 20\ns_sub_u32 s63, s2, s63")
        if self.f2:
            a("v_and_b32 v59, 7, v0\ns_mul_i32 s48, s62, 1280\ns_lshl_b32 s49, s63, 6\ns_add_u32 s48, s48, s49\nv_lshlrev_b32 v61, 3, v59")
            a("buffer_load_dwordx2 v[246:247], v61, s[8:11], s48 offen\ns_waitcnt vmcnt(0)")
            a("v_lshlrev_b32 v244, 16, v246\nv_and_b32 v245, 0xffff0000, v246\nv_lshlrev_b32 v246, 16, v247\nv_and_b32 v247, 0xffff0000, v247")
            a(f"{l_nr}:")
            return
        l, d = self.spin_head("zc", 48)
        a("buffer_load_dword v58, off, s[24:27], 0 offset:128 sc1\ns_waitcnt vmcnt(0)")
        a("v_cmp_gt_u32 vcc, 27, v58")
        a(f"s_cbranch_vccz {d}")
        a(f"s_sub_u32 s48, s48, 1\ns_cmp_lg_u32 s48, 0\ns_cbranch_scc1 {l}")
        a(f"{d}:")
        a("v_lshrrev_b32 v58, 3, v0\nv_and_b32 v59, 7, v0")
        a("v_mul_u32_u24 v60, 10240, v58\nv_lshlrev_b32 v61, 4, v59\nv_add_u32 v60, v60, v61")
        a(f"s_mul_i32 s48, s62, 2560\ns_lshl_b32 s49, s63, 7\ns_add_u32 s48, s48, s49\ns_add_u32 s48, s48, {Z_OFF}")
        for i in range(3):
            a(f"buffer_load_dwordx4 v[{224+4*i}:{227+4*i}], v60, s[20:23], s48 offen sc1")
            a(f"s_add_u32 s48, s48, {8*10240}")
        a("v_cmp_gt_u32 vcc, 3, v58\nv_mov_b32 v61, 0x7ffffff0\ns_nop 0\nv_cndmask_b32 v60, v61, v60, vcc")
        a("buffer_load_dwordx4 v[236:239], v60, s[20:23], s48 offen sc1")
        a("s_mul_i32 s48, s62, 1280\ns_lshl_b32 s49, s63, 6\ns_add_u32 s48, s48, s49\nv_lshlrev_b32 v61, 3, v59")
        a("buffer_load_dwordx2 v[246:247], v61, s[8:11], s48 offen")
        a("s_waitcnt vmcnt(0)")
        for j in range(4):
            a(f"v_add_f32 v{224+j}, v{224+j}, v{228+j}\nv_add_f32 v{232+j}, v{232+j}, v{236+j}\nv_add_f32 v{240+j}, v{224+j}, v{232+j}")
        self.reduce_hq(240, 4, 248)
        for j in range(4): self.rbf16(240 + j)
        a("v_lshlrev_b32 v244, 16, v246\nv_and_b32 v245, 0xffff0000, v246\nv_lshlrev_b32 v246, 16, v247\nv_and_b32 v247, 0xffff0000, v247")
        a(f"{l_nr}:")

    def final_reduce(self):
        a = self.a
        self.c("---- final sum over the 64 (head, half) rows for 32 output columns of one batch row ----")
        a("v_lshrrev_b32 v58, 3, v0\nv_and_b32 v59, 7, v0")
        a("v_mul_u32_u24 v60, 2560, v58\nv_lshlrev_b32 v61, 4, v59\nv_add_u32 v60, v60, v61")
        a(f"s_mul_i32 s48, s62, {64*2560}\ns_lshl_b32 s49, s63, 7\ns_add_u32 s48, s48, s49\ns_add_u32 s48, s48, {Y_OFF}")
        for i in range(1, 8): a(f"s_add_u32 s{48+i}, s{47+i}, {8*2560}")
        if self.yp > 1:
            S = self.yp
            def issue(st):
                for i in range(8): a(f"buffer_load_dwordx4 v[{64+32*st+4*i}:{67+32*st+4*i}], v60, s[20:23], s{48+i} offen sc1")
            l, fin = self.label("y"), self.label("yfin")
            dn = [self.label("ydone") for _ in range(S)]
            a(f"s_mov_b32 s56, {SPIN_MAX}")
            for st in range(S): issue(st)
            a(f"{l}:")
            for st in range(S):
                b0 = 64 + 32 * st
                a(f"s_waitcnt vmcnt({8*(S-1)})")
                for k in (16, 8, 4):
                    for i in range(0, k, 2):
                        a(f"v_pk_add_f32 v[{b0+i}:{b0+i+1}], v[{b0+i}:{b0+i+1}], v[{b0+k+i}:{b0+k+i+1}]")
                a(f"v_add_f32 v{b0+4}, v{b0}, v{b0+1}\nv_add_f32 v{b0+5}, v{b0+2}, v{b0+3}\nv_add_f32 v{b0+4}, v{b0+4}, v{b0+5}\nv_cmp_u_f32 vcc, v{b0+4}, v{b0+4}")
                a(f"s_cbranch_vccz {dn[st]}")
                issue(st)
            a(f"s_sub_u32 s56, s56, 1\ns_cmp_lg_u32 s56, 0\ns_cbranch_scc1 {l}")
            O = 64 + 32 * S
            for st in range(S):
                a(f"{dn[st]}:")
                for j in range(4): a(f"v_mov_b32 v{O+j}, v{64+32*st+j}")
                if st < S - 1: a(f"s_branch {fin}")
            a(f"{fin}:")
            self.reduce_hq(O, 4, O + 4)
            for j in range(4): a(f"v_add_f32 v{O+j}, v{244+j}, v{O+j}")
            a(f"v_cvt_pk_bf16_f32 v{O}, v{O}, v{O+1}\nv_cvt_pk_bf16_f32 v{O+1}, v{O+2}, v{O+3}")
            a("s_mul_i32 s48, s62, 1280\ns_lshl_b32 s49, s63, 6\ns_add_u32 s57, s48, s49\nv_lshlrev_b32 v61, 3, v59")
            a("s_mov_b64 exec, 0xff")
            a(f"buffer_store_dwordx2 v[{O}:{O+1}], v61, s[28:31], s57 offen {self.ofl}")
            a("s_mov_b64 exec, -1")
            return
        l, d = self.spin_head("y", 56)
        for i in range(8):
            a(f"buffer_load_dwordx4 v[{64+4*i}:{67+4*i}], v60, s[20:23], s{48+i} offen sc1")
        a("s_waitcnt vmcnt(0)")
        for st in (16, 8, 4):
            for i in range(0, st, 2):
                a(f"v_pk_add_f32 v[{64+i}:{65+i}], v[{64+i}:{65+i}], v[{64+st+i}:{65+st+i}]")
        a("v_add_f32 v68, v64, v65\nv_add_f32 v69, v66, v67\nv_add_f32 v68, v68, v69\nv_cmp_u_f32 vcc, v68, v68")
        a(f"s_cbranch_vccz {d}")
        a(f"s_sub_u32 s56, s56, 1\ns_cmp_lg_u32 s56, 0\ns_cbranch_scc1 {l}")
        a(f"{d}:")
        self.reduce_hq(64, 4, 68)
        if self.f2:
            for j in range(4): a(f"v_add_f32 v{64+j}, v{244+j}, v{64+j}")
        else:
            for j in range(4): self.rbf16(64 + j)
            for j in range(4): a(f"v_add_f32 v{64+j}, v{244+j}, v{64+j}")
            for j in range(4): self.rbf16(64 + j)
            for j in range(4): a(f"v_add_f32 v{64+j}, v{64+j}, v{240+j}")
        a("v_cvt_pk_bf16_f32 v64, v64, v65\nv_cvt_pk_bf16_f32 v65, v66, v67")
        a("s_mul_i32 s48, s62, 1280\ns_lshl_b32 s49, s63, 6\ns_add_u32 s48, s48, s49\nv_lshlrev_b32 v61, 3, v59")
        a("s_mov_b64 exec, 0xff")
        a("buffer_store_dwordx2 v[64:65], v61, s[28:31], s48 offen")
        a("s_mov_b64 exec, -1")

    def ffn1(self):
        a = self.a
        self.c("---- FFN stage 1: columns 64*(s2>>3).., rows 80*(s2&7).. ----")
        Wg, X, M2, A0, DG, DU, XA = 64, 144, 44, 20, 28, 32, 184
        self.srd(32, 76, 2211840); self.srd(36, 78, 2211840)
        a("v_mul_u32_u24 v11, 3456, v2\nv_lshlrev_b32 v12, 3, v1\nv_add_u32 v11, v11, v12")
        a("s_lshr_b32 s54, s2, 3\ns_and_b32 s55, s2, 7")
        if self.fe == 1: a(f"s_lshr_b32 s48, s{self.HW}, 1\ns_add_u32 s55, s55, s48")
        if self.fe == 2: a(f"s_lshr_b32 s55, s55, 1\ns_lshr_b32 s48, s{self.HW}, 1\ns_lshl_b32 s48, s48, 2\ns_add_u32 s55, s55, s48")
        if self.fe == 3: a(f"s_lshr_b32 s48, s{self.HW}, 1\ns_add_u32 s55, s55, s48\ns_sub_u32 s55, s55, 1")
        a(f"s_lshl_b32 s48, s54, 7\ns_mul_i32 s49, s55, {80*3456}\ns_add_u32 s48, s48, s49")
        for u in range(20):
            if self.f1win and 2 * u >= self.f1win: a(f"s_waitcnt vmcnt({self.f1win-2})")
            a(f"buffer_load_dwordx2 v[{Wg+4*u}:{Wg+1+4*u}], v11, s[32:35], s48 offen nt")
            a(f"buffer_load_dwordx2 v[{Wg+2+4*u}:{Wg+3+4*u}], v11, s[36:39], s48 offen nt")
            if u < 19: a(f"s_add_u32 s48, s48, {4*3456}")
        a("v_lshlrev_b32 v8, 2, v1\nv_add_u32 v8, v8, v2\nv_lshlrev_b32 v8, 1, v8")
        a("s_mov_b32 s48, 0\ns_mov_b32 s49, 1280\ns_mov_b32 s50, 2560\ns_mov_b32 s51, 3840")
        for b in range(4):
            for r in range(10):
                a(f"buffer_load_ushort v{X+10*b+r}, v8, s[8:11], s{48+b} offen offset:{128*r}")
        self.const64(60, 0xAAAAAAAAAAAAAAAA)
        a("v_mov_b32 v52, 0xffff\nv_mov_b32 v53, 0xffff0000\nv_cndmask_b32_e64 v52, v52, v53, s[60:61]")
        for jj in range(2):
            self.const64(60, 0x3333333333333333 << (2 * jj))
            a(f"v_cndmask_b32_e64 v{M2+jj}, 0, v52, s[60:61]")
        a(f"v_mul_u32_u24 v9, 640, v2\nv_lshlrev_b32 v52, 2, v1\nv_add_u32 v9, v9, v52")
        for b in range(4):
            a(f"s_waitcnt vmcnt({30-10*b})")
            self.layernorm(X + 10 * b, 10, 52, 52)
            for r in range(10):
                a(f"ds_write_b32 v9, v{X+10*b+r} offset:{XNL+2560*b+64*r}")
        a("v_lshrrev_b32 v9, 2, v1\nv_lshlrev_b32 v9, 2, v9\nv_add_u32 v9, v9, v2\nv_mul_u32_u24 v10, 640, v9")
        a(f"s_mul_i32 s48, s55, 80\ns_add_u32 s48, s48, {XNL}\nv_add_u32 v10, s48, v10")
        a("s_waitcnt lgkmcnt(0)")
        for i in range(5): a(f"ds_read_b128 v[{XA+4*i}:{XA+3+4*i}], v10 offset:{16*i}")
        a("s_waitcnt lgkmcnt(0)")
        for u in range(20):
            A = A0 + 2 * (u & 1)
            for jj in range(2): a(f"v_and_b32 v{A+jj}, v{XA+u}, v{M2+jj}")
            a("s_nop 1")
            cg = "0" if u == 0 else f"v[{DG}:{DG+3}]"
            cu = "0" if u == 0 else f"v[{DU}:{DU+3}]"
            a(f"v_mfma_f32_16x16x16_bf16 v[{DG}:{DG+3}], v[{A}:{A+1}], v[{Wg+4*u}:{Wg+1+4*u}], {cg}")
            a(f"v_mfma_f32_16x16x16_bf16 v[{DU}:{DU+3}], v[{A}:{A+1}], v[{Wg+2+4*u}:{Wg+3+4*u}], {cu}")
        a("v_mul_u32_u24 v12, 6912, v2\nv_lshlrev_b32 v13, 4, v1\nv_add_u32 v12, v12, v13")
        a(f"s_mul_i32 s48, s55, {2*27648}\ns_lshl_b32 s49, s54, 8\ns_add_u32 s48, s48, s49\ns_add_u32 s48, s48, {P_OFF}\ns_add_u32 s49, s48, 27648")
        a("s_nop 7")
        a(f"buffer_store_dwordx4 v[{DG}:{DG+3}], v12, s[20:23], s48 offen {self.psfl}")
        a(f"buffer_store_dwordx4 v[{DU}:{DU+3}], v12, s[20:23], s49 offen {self.psfl}")
        if self.clw == 's':
            a("s_waitcnt vmcnt(0)")
            if self.fe:
                l5, le = self.label("f5"), self.label("f7e")
                a(f"v_mov_b32 v9, {F7}\ns_cmp_eq_u32 s{self.HW}, 1\ns_cbranch_scc1 {l5}")
                a(f"v_mov_b32 v52, 1\nds_write_b32 v9, v52\ns_branch {le}")
                a(f"{l5}:")
                l, d = self.spin_head("f7", 48)
                a("ds_read_b32 v52, v9\ns_waitcnt lgkmcnt(0)\nv_cmp_eq_u32 vcc, -1, v52")
                a(f"s_cbranch_vccz {d}")
                a(f"s_sub_u32 s48, s48, 1\ns_cmp_lg_u32 s48, 0\ns_cbranch_scc1 {l}")
                a(f"{d}:")
                self.signal()
                a(f"{le}:")
                return
            self.signal()
            return
        a("s_waitcnt vmcnt(0)\nv_mov_b32 v52, 1\ns_mov_b64 exec, 1")
        if not self.xzc: a("buffer_atomic_add v52, off, s[24:27], 0 offset:128 sc1")
        a("s_mov_b64 exec, -1")

    def ffn2(self):
        a = self.a
        MK, A0, YA, T = 4, 20, 32, 224
        self.c("---- FFN stage 2: hidden columns 27*(2h+half).. of batch row b ----")
        self.srd(40, 80, 2211840)
        if self.clw == 's':
            if not self.xchk: self.signal_check("zc")
        else:
            l, d = self.spin_head("zc", 48)
            a("buffer_load_dword v58, off, s[24:27], 0 offset:128 sc1\ns_waitcnt vmcnt(0)")
            a(f"v_cmp_gt_u32 vcc, {0 if self.xzc else 216}, v58")
            a(f"s_cbranch_vccz {d}")
            a(f"s_sub_u32 s48, s48, 1\ns_cmp_lg_u32 s48, 0\ns_cbranch_scc1 {l}")
            a(f"{d}:")
        a("s_lshl_b32 s54, s45, 1\ns_add_u32 s54, s54, s46\ns_mul_i32 s54, s54, 27")
        a("v_lshrrev_b32 v58, 2, v0\nv_mul_u32_u24 v58, 27648, v58\nv_and_b32 v59, 3, v0\nv_lshlrev_b32 v60, 5, v59\nv_add_u32 v58, v58, v60")
        a(f"s_mul_i32 s48, s44, 6912\ns_lshl_b32 s49, s54, 2\ns_add_u32 s48, s48, s49\ns_add_u32 s48, s48, {P_OFF}")
        a(f"buffer_load_dwordx4 v[{T}:{T+3}], v58, s[20:23], s48 offen {self.pfl}")
        a(f"buffer_load_dwordx4 v[{T+4}:{T+7}], v58, s[20:23], s48 offen offset:16 {self.pfl}")
        a("s_waitcnt vmcnt(0)")
        self.reduce_hq(T, 8, T + 8)
        for j in range(8): self.rbf16(T + j)
        a("s_nop 1")
        for j in range(8): a(f"v_mov_b32_dpp v{T+8+j}, v{T+j} row_ror:12 row_mask:0xf bank_mask:0xf")
        for j in range(8):
            a(f"v_max_f32 v{T+j}, 0, v{T+j}\nv_mul_f32 v{T+j}, v{T+j}, v{T+8+j}\nv_cvt_pk_bf16_f32 v{T+j}, v{T+j}, v{T+j}")
        a("v_cmp_gt_u32 vcc, 3, v59\ns_nop 1")
        for j in range(3, 8): a(f"v_cndmask_b32 v{T+j}, 0, v{T+j}, vcc")
        a(f"v_add_u32 v60, {HL}, v60\ns_mov_b64 exec, 15")
        a(f"ds_write_b128 v60, v[{T}:{T+3}]\nds_write_b128 v60, v[{T+4}:{T+7}] offset:16")
        a("s_mov_b64 exec, -1\ns_waitcnt lgkmcnt(0)")
        a(f"v_and_b32 v60, 7, v1\nv_lshlrev_b32 v60, 2, v60\nv_add_u32 v60, v60, v2\nv_lshlrev_b32 v60, 2, v60\nv_add_u32 v60, {HL}, v60")
        a("ds_read_b32 v61, v60")
        a("v_mul_u32_u24 v58, 1280, v2\nv_lshlrev_b32 v59, 4, v1\nv_add_u32 v58, v58, v59")
        a("s_mul_i32 s48, s54, 1280")
        for i in range(7):
            for cb in range(5):
                a(f"buffer_load_dwordx4 v[{T+4*cb}:{T+3+4*cb}], v58, s[40:43], s48 offen offset:{256*cb} nt")
            if i < 6: a(f"s_add_u32 s48, s48, {4*1280}")
            if i == 0: a("s_waitcnt lgkmcnt(0)")
            for jj in range(4):
                a(f"v_and_b32_dpp v{A0+4*(i&1)+jj}, v61, v{MK+jj} row_newbcast:{i} row_mask:0xf bank_mask:0xf")
            A = A0 + 4 * (i & 1)
            a("s_nop 1")
            for cb in range(5):
                acc = YA + 4 * cb
                cin = "0" if i == 0 else f"v[{acc}:{acc+3}]"
                a(f"s_waitcnt vmcnt({4-cb})")
                a(f"v_mfma_f32_16x16x32_bf16 v[{acc}:{acc+3}], v[{A}:{A+3}], v[{T+4*cb}:{T+3+4*cb}], {cin}")
            a("s_nop 7")

    def ffn(self):
        a = self.a
        self.c("---- FFN unit s2: 64 hidden columns for all four rows ----")
        X, M2, A0, DG, DU = 64, 44, 20, 28, 32
        self.srd(32, 76, 2211840); self.srd(36, 78, 2211840); self.srd(40, 80, 2211840)
        a("v_lshlrev_b32 v8, 2, v1\nv_add_u32 v8, v8, v2\nv_lshlrev_b32 v8, 1, v8")
        a("s_mov_b32 s48, 0\ns_mov_b32 s49, 1280\ns_mov_b32 s50, 2560\ns_mov_b32 s51, 3840")
        for b in range(4):
            for r in range(10):
                a(f"buffer_load_ushort v{X+10*b+r}, v8, s[8:11], s{48+b} offen offset:{128*r}")
        self.const64(60, 0xAAAAAAAAAAAAAAAA)
        a("v_mov_b32 v52, 0xffff\nv_mov_b32 v53, 0xffff0000\nv_cndmask_b32_e64 v52, v52, v53, s[60:61]")
        for jj in range(2):
            self.const64(60, 0x3333333333333333 << (2 * jj))
            a(f"v_cndmask_b32_e64 v{M2+jj}, 0, v52, s[60:61]")
        a(f"v_mul_u32_u24 v9, 640, v2\nv_lshlrev_b32 v52, 2, v1\nv_add_u32 v9, v9, v52")
        for b in range(4):
            a(f"s_waitcnt vmcnt({30-10*b})")
            self.layernorm(X + 10 * b, 10, 52, 52)
            for r in range(10):
                a(f"ds_write_b32 v9, v{X+10*b+r} offset:{XNL+2560*b+64*r}")
        a("v_lshrrev_b32 v9, 2, v1\nv_lshlrev_b32 v9, 2, v9\nv_add_u32 v9, v9, v2\nv_mul_u32_u24 v10, 640, v9")
        a(f"v_add_u32 v10, {XNL}, v10")
        a("v_mul_u32_u24 v11, 3456, v2\nv_lshlrev_b32 v12, 3, v1\nv_add_u32 v11, v11, v12")
        a("s_lshl_b32 s48, s2, 7")
        GUSTEP = 4 * 3456
        if self.ffn_exp == 2:
            a("v_lshlrev_b32 v11, 3, v0\ns_mul_i32 s48, s2, 81920")
            GUSTEP = 512
        G = self.ffn_gu
        def issue(u):
            u %= G
            a(f"buffer_load_dwordx2 v[{64+4*u}:{65+4*u}], v11, s[32:35], s48 offen nt")
            a(f"buffer_load_dwordx2 v[{66+4*u}:{67+4*u}], v11, s[36:39], s48 offen nt")
            a(f"s_add_u32 s48, s48, {GUSTEP}")
        a("s_waitcnt lgkmcnt(0)")
        for u in range(G): issue(u)
        for j in range(8): a(f"v_mov_b32 v{DG+j}, 0")
        def rnd(last):
            for i in range(4): a(f"ds_read_b128 v[{128+4*i}:{131+4*i}], v10 offset:{16*i}")
            a("v_add_u32 v10, 64, v10\ns_waitcnt lgkmcnt(0)")
            for u in range(16):
                A = A0 + 2 * (u & 1)
                r = 64 + 4 * (u % G)
                for jj in range(2): a(f"v_and_b32 v{A+jj}, v{128+u}, v{M2+jj}")
                a(f"s_waitcnt vmcnt({2*(G-1) if not last else 2*min(G-1, 15-u)})\ns_nop 0")
                if self.ffn_exp != 1:
                    a(f"v_mfma_f32_16x16x16_bf16 v[{DG}:{DG+3}], v[{A}:{A+1}], v[{r}:{r+1}], v[{DG}:{DG+3}]")
                    a(f"v_mfma_f32_16x16x16_bf16 v[{DU}:{DU+3}], v[{A}:{A+1}], v[{r+2}:{r+3}], v[{DU}:{DU+3}]")
                if not last or u + G < 16: issue(u)
        a("s_mov_b32 s49, 9")
        lp = self.label("gu")
        a(f"{lp}:")
        rnd(False)
        a(f"s_sub_u32 s49, s49, 1\ns_cmp_lg_u32 s49, 0\ns_cbranch_scc1 {lp}")
        rnd(True)
        DN = self.ffn_dn
        a("v_mul_u32_u24 v11, 1280, v2\nv_lshlrev_b32 v12, 3, v1\nv_add_u32 v11, v11, v12")
        a(f"s_mul_i32 s48, s2, {64*1280}")
        def issue2(u2):
            for cb in range(10):
                r = 64 + 2 * (10 * (u2 % DN) + cb)
                a(f"buffer_load_dwordx2 v[{r}:{r+1}], v11, s[40:43], s48 offen offset:{128*cb} nt")
            a(f"s_add_u32 s48, s48, {4*1280}")
        a("s_nop 7")
        for j in range(8): self.rbf16(DG + j)
        for uu in range(DN): issue2(uu)
        for j in range(4):
            a(f"v_max_f32 v{DG+j}, 0, v{DG+j}\nv_mul_f32 v{DG+j}, v{DG+j}, v{DU+j}\nv_cvt_pk_bf16_f32 v{DG+j}, v{DG+j}, v{DG+j}")
        a("v_lshlrev_b32 v12, 8, v2\nv_lshlrev_b32 v13, 2, v1\nv_add_u32 v12, v12, v13")
        for j in range(4): a(f"ds_write_b32 v12, v{DG+j} offset:{HL+64*j}")
        a(f"s_waitcnt lgkmcnt(0)\nv_lshlrev_b32 v12, 6, v9\nv_add_u32 v12, {HL}, v12")
        for i in range(4): a(f"ds_read_b128 v[{208+4*i}:{211+4*i}], v12 offset:{16*i}")
        for j in range(40): a(f"v_mov_b32 v{144+j}, 0")
        a("s_waitcnt lgkmcnt(0)")
        for u2 in range(16):
            A = A0 + 2 * (u2 & 1)
            for jj in range(2): a(f"v_and_b32 v{A+jj}, v{208+u2}, v{M2+jj}")
            for cb in range(10):
                r = 64 + 2 * (10 * (u2 % DN) + cb)
                left = (9 - cb) + 10 * (min(u2 + DN - 1, 15) - u2)
                a(f"s_waitcnt vmcnt({left})")
                if cb == 0: a("s_nop 0")
                a(f"v_mfma_f32_16x16x16_bf16 v[{144+4*cb}:{147+4*cb}], v[{A}:{A+1}], v[{r}:{r+1}], v[{144+4*cb}:{147+4*cb}]")
            if u2 + DN < 16: issue2(u2)
        a("v_mul_u32_u24 v12, 2560, v2\nv_lshlrev_b32 v13, 4, v1\nv_add_u32 v12, v12, v13")
        a(f"s_mul_i32 s48, s2, 10240\ns_add_u32 s48, s48, {Z_OFF}\ns_nop 7")
        for cb in range(10):
            a(f"buffer_store_dwordx4 v[{144+4*cb}:{147+4*cb}], v12, s[20:23], s48 offen offset:{256*cb} sc1")
        a("s_waitcnt vmcnt(0)\nv_mov_b32 v52, 1\ns_mov_b64 exec, 1")
        a("buffer_atomic_add v52, off, s[24:27], 0 offset:128 sc1")
        a("s_mov_b64 exec, -1")

    def build(self):
        a = self.a
        a("s_cmp_ge_u32 s2, 256\ns_cbranch_scc1 L_exit")
        if self.stamps: a("s_memrealtime s[96:97]")
        a("s_load_dwordx16 s[64:79], s[0:1], 0\ns_load_dwordx8 s[80:87], s[0:1], 64")
        a("v_lshrrev_b32 v1, 6, v0\nv_and_b32 v0, 63, v0\nv_readfirstlane_b32 s3, v1")
        if self.stamps:
            for k in range(8): a(f"s_mov_b32 s{88+k}, 0")
        a("s_and_b32 s40, s2, 7\ns_lshr_b32 s41, s2, 3")
        if self.cpf:
            a(f"s_cmp_eq_u32 s3, {self.cpw}\ns_cbranch_scc0 L_nocpf\ns_getpc_b64 s[60:61]\nL_cpfpc:")
            a(f"s_sub_u32 s60, s60, L_cpfpc-{NAME}\ns_subb_u32 s61, s61, 0\ns_lshl_b32 s62, s41, 10")
            a(f"v_lshl_add_u32 v248, v0, 4, s62\nv_min_u32 v248, L_exit-{NAME}-12, v248")
            a("global_load_dwordx4 v[252:255], v248, s[60:61]\nL_nocpf:")
        if self.mapping == "m4":
            a("s_lshr_b32 s43, s41, 1\ns_and_b32 s43, s43, 3\ns_lshl_b32 s45, s43, 3\ns_add_u32 s45, s45, s40")
            a("s_lshr_b32 s44, s41, 3\ns_and_b32 s46, s41, 1")
        elif self.mapping == "m6":
            a("s_lshr_b32 s43, s41, 1\ns_and_b32 s43, s43, 3\ns_add_u32 s45, s40, s43\ns_and_b32 s45, s45, 7\ns_lshl_b32 s43, s43, 3\ns_add_u32 s45, s45, s43")
            a("s_lshr_b32 s44, s41, 3\ns_and_b32 s46, s41, 1")
        elif self.mapping == "m7":
            a("s_lshr_b32 s43, s41, 1\ns_and_b32 s43, s43, 3\ns_lshl_b32 s45, s43, 3\ns_xor_b32 s43, s40, 1\ns_add_u32 s45, s45, s43")
            a("s_lshr_b32 s44, s41, 3\ns_and_b32 s46, s41, 1")
        elif self.mapping == "m8":
            a("s_lshr_b32 s43, s41, 1\ns_and_b32 s43, s43, 3\ns_lshl_b32 s45, s40, 2\ns_add_u32 s45, s45, s43")
            a("s_lshr_b32 s44, s41, 3\ns_and_b32 s46, s41, 1")
        elif self.mapping == "m3":
            a("s_and_b32 s43, s41, 3\ns_lshl_b32 s45, s43, 3\ns_add_u32 s45, s45, s40")
            a("s_lshr_b32 s44, s41, 2\ns_and_b32 s44, s44, 3\ns_lshr_b32 s46, s41, 4")
        elif self.mapping == "n":
            a("s_and_b32 s46, s2, 1\ns_lshr_b32 s45, s2, 1\ns_and_b32 s45, s45, 31\ns_lshr_b32 s44, s2, 6")
        a("s_lshl_b32 s47, s44, 5\ns_add_u32 s47, s47, s45\ns_lshl_b32 s47, s47, 1\ns_add_u32 s47, s47, s46")
        if self.hfirst:
            a("s_cmp_lt_u32 s3, 4\ns_cbranch_scc1 L_stream\nL_helper:")
            self.helper()
            a("L_stream:")
            self.stream()
            a("L_exit:\ns_endpgm")
            return "\n".join(self.L)
        a("s_cmp_ge_u32 s3, 4\ns_cbranch_scc1 L_helper")
        if self.Rsplit:
            if self.splitx: a("s_and_b32 s18, s2, 1\ns_cmp_eq_u32 s18, 0\ns_cbranch_scc0 L_streamB")
            else: a("s_cmp_eq_u32 s46, 0\ns_cbranch_scc0 L_streamB")
            self.R = self.Rsplit[0]; self.stream()
            a("L_streamB:")
            self.R = self.Rsplit[1]; self.stream()
        else:
            self.stream()
        a("L_helper:")
        self.helper()
        a("L_exit:\ns_endpgm")
        return "\n".join(self.L)

HEADER = open("parallel_sum__gqa_block_cached__glu_gated_reglu__decode.s.ref").read().split("; Override launch")[0]

def full_source(g, nfv=256):
    body = g.build()
    s = HEADER
    s += "; Override launch geometry by editing the next line (default: block=256,\n"
    s += f"; @launch grid=(256,1,1) block=(512,1,1) lds={LDS_SIZE}\n"
    s += f""".amdgcn_target "amdgcn-amd-amdhsa--gfx950"
.text
.globl {NAME}
.p2align 8
.type {NAME},@function
{NAME}:
{body}
.section .rodata,"a"
.p2align 6
.amdhsa_kernel {NAME}
  .amdhsa_next_free_vgpr {nfv}
  .amdhsa_next_free_sgpr 102
  .amdhsa_accum_offset 256
  .amdhsa_group_segment_fixed_size 0
  .amdhsa_kernarg_size 96
  .amdhsa_user_sgpr_count 2
  .amdhsa_user_sgpr_kernarg_segment_ptr 1
  .amdhsa_system_sgpr_workgroup_id_x 1
.end_amdhsa_kernel
"""
    return s

if __name__ == "__main__":
    import argparse
    p = argparse.ArgumentParser()
    p.add_argument("-R", type=int, default=5); p.add_argument("--PG", type=int, default=1)
    p.add_argument("--stamps", action="store_true"); p.add_argument("--map", default="m4")
    p.add_argument("-o", default="/dev/stdout")
    x = p.parse_args()
    g = Gen(R=x.R, PG=x.PG, stamps=x.stamps, mapping=x.map)
    open(x.o, "w").write(full_source(g))
```
